```python
import torch

def _softmax(x, axis=-1):
    return torch.softmax(x, dim=axis)
def _gelu(x):
    return torch.nn.functional.gelu(x, approximate="tanh")
def _silu(x):
    return torch.nn.functional.silu(x)
def _sigmoid(x):
    return torch.sigmoid(x)
def _layernorm(x, axis=-1, eps=1e-5):
    m = x.mean(dim=axis, keepdim=True)
    v = x.var(dim=axis, keepdim=True, unbiased=False)
    return (x - m) / torch.sqrt(v + eps)
def _scatter_add(tgt, idx, src, axis=0):
    return tgt.clone().index_add_(axis, idx, src)
def _segment_sum(src, seg, n):
    out = torch.zeros((n,) + src.shape[1:], dtype=src.dtype)
    return out.index_add_(0, seg, src)
def _pad(x, pw):
    flat = tuple(v for pair in reversed(pw) for v in pair)
    return torch.nn.functional.pad(x, flat)

kernel_name = 'concat_heads__sliding_block_cached__sliding_block_cached__decode'

def setup_inputs():

    _w = (lambda a: (lambda t: t.to(torch.bfloat16) if t.is_floating_point() else t)(torch.as_tensor(a)))
    def _A_setup():
        B, Sq, D = 1, 1, 1024
        Hq, Hkv, Sk, Dh = 32, 4, 65536, 128
        assert Hq % Hkv == 0, (Hq, Hkv)
        return {
            "x": _w((lambda *s: torch.randn(*s, dtype=torch.bfloat16) * 1.6)(B, Sq, D)),
            "k_cache": _w((lambda *s: torch.randn(*s, dtype=torch.bfloat16) * 1.6)(B, Hkv, Sk, Dh)),
            "v_cache": _w((lambda *s: torch.randn(*s, dtype=torch.bfloat16) * 0.05)(B, Hkv, Sk, Dh)),
            "wq": _w((lambda *s: torch.randn(*s, dtype=torch.bfloat16) * 1.6)(D, Hq * Dh) * (D ** -0.5)),
            "wo": _w((lambda *s: torch.randn(*s, dtype=torch.bfloat16) * 0.05)(Hq * Dh, D) * ((Hq * Dh) ** -0.5)),
        }
    _A_in = _A_setup()

    def _B_setup():
        B, Sq, D = 1, 1, 1024
        Hq, Hkv, Sk, Dh = 32, 4, 65536, 128
        assert Hq % Hkv == 0, (Hq, Hkv)
        return {
            "x": _w((lambda *s: torch.randn(*s, dtype=torch.bfloat16) * 1.6)(B, Sq, D)),
            "k_cache": _w((lambda *s: torch.randn(*s, dtype=torch.bfloat16) * 1.6)(B, Hkv, Sk, Dh)),
            "v_cache": _w((lambda *s: torch.randn(*s, dtype=torch.bfloat16) * 0.05)(B, Hkv, Sk, Dh)),
            "wq": _w((lambda *s: torch.randn(*s, dtype=torch.bfloat16) * 1.6)(D, Hq * Dh) * (D ** -0.5)),
            "wo": _w((lambda *s: torch.randn(*s, dtype=torch.bfloat16) * 0.05)(Hq * Dh, D) * ((Hq * Dh) ** -0.5)),
        }
    _B_in = _B_setup()

    return {
        "A_x": _A_in["x"],
        "A_k_cache": _A_in["k_cache"],
        "A_v_cache": _A_in["v_cache"],
        "A_wq": _A_in["wq"],
        "A_wo": _A_in["wo"],
        "B_x": _B_in["x"],
        "B_k_cache": _B_in["k_cache"],
        "B_v_cache": _B_in["v_cache"],
        "B_wq": _B_in["wq"],
        "B_wo": _B_in["wo"],
    }

def reference(A_x, A_k_cache, A_v_cache, A_wq, A_wo, B_x, B_k_cache, B_v_cache, B_wq, B_wo):
    def _A_ref(x, k_cache, v_cache, wq, wo):
        B, Sq, D = x.shape
        Hq, Dh = 32, 128
        Hkv, Sk = k_cache.shape[1], k_cache.shape[2]
        W = min(4096, max(256, Sk // 4))
        rep = Hq // Hkv
        q = (lambda x, *d: x.permute(*d))((x @ wq).reshape(B, Sq, Hq, Dh), 0, 2, 1, 3)
        k = (lambda x, n, axis: torch.repeat_interleave(x, n, dim=axis))(k_cache[:, :, Sk - W:, :], rep, axis=1)
        v = (lambda x, n, axis: torch.repeat_interleave(x, n, dim=axis))(v_cache[:, :, Sk - W:, :], rep, axis=1)
        scores = torch.einsum("bhqd,bhkd->bhqk", q, k) * (Dh ** -0.5)
        p = _softmax(scores, axis=-1)
        o = torch.einsum("bhqk,bhkd->bhqd", p, v)
        return (lambda x, *d: x.permute(*d))(o, 0, 2, 1, 3).reshape(B, Sq, Hq * Dh) @ wo

    def _B_ref(x, k_cache, v_cache, wq, wo):
        B, Sq, D = x.shape
        Hq, Dh = 32, 128
        Hkv, Sk = k_cache.shape[1], k_cache.shape[2]
        W = min(4096, max(256, Sk // 4))
        rep = Hq // Hkv
        q = (lambda x, *d: x.permute(*d))((x @ wq).reshape(B, Sq, Hq, Dh), 0, 2, 1, 3)
        k = (lambda x, n, axis: torch.repeat_interleave(x, n, dim=axis))(k_cache[:, :, Sk - W:, :], rep, axis=1)
        v = (lambda x, n, axis: torch.repeat_interleave(x, n, dim=axis))(v_cache[:, :, Sk - W:, :], rep, axis=1)
        scores = torch.einsum("bhqd,bhkd->bhqk", q, k) * (Dh ** -0.5)
        p = _softmax(scores, axis=-1)
        o = torch.einsum("bhqk,bhkd->bhqd", p, v)
        return (lambda x, *d: x.permute(*d))(o, 0, 2, 1, 3).reshape(B, Sq, Hq * Dh) @ wo

    a = _A_ref(A_x, A_k_cache, A_v_cache, A_wq, A_wo)
    b = _B_ref(B_x, B_k_cache, B_v_cache, B_wq, B_wo)
    return torch.concatenate([a, b], axis=-1)
```

```python
import re

_REG = re.compile(r"(?<![\w.])([vas])(?:\[(\d+):(\d+)\]|(\d+))(?![\w])")
TRANS = ("v_exp_f32", "v_log_f32", "v_rcp_f32", "v_rsq_f32", "v_sqrt_f32", "v_sin_f32", "v_cos_f32")


def _regs(tok):
    out = []
    for m in _REG.finditer(tok):
        k = m.group(1)
        if m.group(2) is not None:
            out += [(k, i) for i in range(int(m.group(2)), int(m.group(3)) + 1)]
        else:
            out.append((k, int(m.group(4))))
    if re.search(r"\bvcc\b", tok):
        out.append(("x", "vcc"))
    if re.search(r"\bexec\b", tok):
        out.append(("x", "exec"))
    if re.search(r"\bm0\b", tok):
        out.append(("x", "m0"))
    return out


class Ins:
    def __init__(self, text):
        self.text = text
        t = text.split(";")[0].strip()
        self.label = t.endswith(":")
        self.directive = t.startswith(".")
        parts = t.split(None, 1)
        self.op = parts[0] if parts else ""
        ops = [x.strip() for x in parts[1].split(",")] if len(parts) > 1 else []
        self.ops = ops
        op = self.op
        self.mfma = op.startswith("v_mfma")
        self.valu = op.startswith("v_") and not self.mfma
        self.dpp = "row_" in t or "quad_perm" in t or "_dpp" in op
        self.permlane = op.startswith("v_permlane")
        self.trans = any(op.startswith(x) for x in TRANS)
        self.vmem = op.startswith(("buffer_", "global_"))
        self.ds = op.startswith("ds_")
        self.salu = op.startswith("s_")
        self.ldsdma = self.vmem and re.search(r"\blds\b", t) is not None
        self.store = self.vmem and "store" in op
        self.wide_store = self.store and ("x3" in op or "x4" in op)
        self.w = []
        self.r = []
        self.srcc = []
        if self.label or self.directive or not ops:
            pass
        elif self.mfma:
            self.w = _regs(ops[0])
            self.r = _regs(ops[1]) + _regs(ops[2])
            self.srcc = _regs(ops[3])
        elif self.permlane and "swap" in op:
            self.w = _regs(ops[0]) + _regs(ops[1])
            self.r = list(self.w)
        elif self.valu:
            self.w = _regs(ops[0])
            rest = ops[1:]
            if op.startswith(("v_add_co", "v_addc_co", "v_sub_co", "v_subb_co")):
                self.w += _regs(ops[1])
                rest = ops[2:]
            if op.startswith("v_cmpx"):
                self.w.append(("x", "exec"))
            for x in rest:
                self.r += _regs(x)
            if op.startswith(("v_fmac", "v_dot2c")) or self.dpp or op.startswith("v_writelane"):
                self.r += _regs(ops[0])
        elif self.vmem:
            if self.store or self.ldsdma or "atomic" in op:
                for x in ops:
                    self.r += _regs(x.split()[0])
                if self.ldsdma:
                    self.r.append(("x", "m0"))
            else:
                self.w = _regs(ops[0])
                for x in ops[1:]:
                    self.r += _regs(x.split()[0])
        elif self.ds:
            if op.startswith("ds_read") or "permute" in op or "swizzle" in op:
                self.w = _regs(ops[0])
                for x in ops[1:]:
                    self.r += _regs(x.split()[0])
            else:
                for x in ops:
                    self.r += _regs(x.split()[0])
        elif self.salu:
            if op.startswith(("s_cmp", "s_cbranch", "s_branch", "s_waitcnt", "s_nop", "s_barrier", "s_endpgm",
                              "s_setprio", "s_sleep")):
                for x in ops:
                    self.r += _regs(x)
            else:
                self.w = _regs(ops[0])
                for x in ops[1:]:
                    self.r += _regs(x.split()[0])
                if "saveexec" in op:
                    self.w.append(("x", "exec"))
        self.states = 1
        if op == "s_nop":
            self.states = int(ops[0], 0) + 1
        if self.label or self.directive or not op:
            self.states = 0


def need(p, c):
    pw, cr, cw = set(p.w), set(c.r), set(c.w)
    n = 0
    vreg = lambda s: {x for x in s if x[0] in "va"}
    sreg = lambda s: {x for x in s if x[0] == "s" or x == ("x", "vcc")}
    if p.valu:
        pv = vreg(pw)
        if c.mfma and pv & (cr | set(c.srcc)):
            n = max(n, 2)
        if c.valu and c.dpp and pv & cr:
            n = max(n, 2)
        if c.permlane and pv & cr:
            n = max(n, 2)
        if c.op.startswith(("v_readlane", "v_readfirstlane")) and pv & cr:
            n = max(n, 1)
        if p.trans and c.valu and not c.trans and pv & cr:
            n = max(n, 1)
        ps = sreg(pw)
        if ps & cr:
            if c.op.startswith(("v_readlane", "v_writelane")):
                n = max(n, 4)
            elif c.valu:
                n = max(n, 2)
            elif c.vmem:
                n = max(n, 5)
            elif c.salu and not c.op.startswith("s_cbranch"):
                n = max(n, 1)
        if ("x", "exec") in pw:
            if c.dpp:
                n = max(n, 5)
            if c.mfma or c.permlane or c.op.startswith(("v_readlane", "v_readfirstlane", "v_writelane")):
                n = max(n, 4)
    if p.op.startswith("v_dot") and vreg(pw) & (cr | cw | set(c.srcc)):
        n = max(n, 3)
    if p.mfma:
        assert "16x16x32" in p.op
        if c.mfma:
            if pw & set(c.srcc):
                n = max(n, 0 if set(c.srcc) == pw else 6)
            if pw & cr:
                n = max(n, 8)
        elif (c.valu or c.vmem or c.ds) and pw & (cr | cw):
            n = max(n, 8)
        if c.valu and set(p.srcc) & cw:
            n = max(n, 3)
    if p.wide_store and vreg(set(p.r)) & cw:
        n = max(n, 2)
    if p.salu and ("x", "m0") in pw and c.ldsdma:
        n = max(n, 1)
    return n


class Prog:
    def __init__(self):
        self.ins = []
        self.nvm = 0
        self.pads = 0

    def e(self, text):
        for line in text.strip().split("\n"):
            line = line.strip()
            if not line:
                continue
            c = Ins(line)
            if c.states:
                dist = 0
                req = 0
                for p in reversed(self.ins):
                    if dist >= 12:
                        break
                    k = need(p, c)
                    if k > dist:
                        req = max(req, k - dist)
                    dist += p.states
                if req:
                    self.ins.append(Ins("s_nop %d" % (req - 1)))
                    self.pads += req
            self.ins.append(c)
            if c.vmem:
                self.nvm += 1
        return self.nvm

    def vm(self, text):
        before = self.nvm
        self.e(text)
        assert self.nvm == before + 1
        return self.nvm

    def wait_vm(self, seq, lgkm=False):
        n = self.nvm - seq
        assert 0 <= n <= 63, n
        self.e("s_waitcnt vmcnt(%d)%s" % (n, " lgkmcnt(0)" if lgkm else ""))

    def text(self):
        out = []
        for i in self.ins:
            out.append(i.text if (i.label or i.directive) else "    " + i.text)
        return "\n".join(out) + "\n"
```

```python
import struct
import sys
from asmlib import Prog

KN = "concat_heads__sliding_block_cached__sliding_block_cached__decode"
WS_BYTES = 301993984
TS_OFF = 200 << 20

EPOCH = 0x0
E1 = 0x1000
ML = 0x30000
E3 = 0x40000
E2O = 0x100000
KB = 0
QRED = 32768
QB = 34816
ORED = 37120
MLR = 54016
OUTRED = 54272
LDS_BYTES = 58368
TAGMASK = 0x3FF

DEFAULTS = dict(W=6, G1=4, B1=6, G2=12, B2=4, qil=False, stamps=False, mimic=False, st="sc1", ld="sc1",
                nt="nt", prefetch=True, spr=(1, 1, 1, 1, 1, 1), dump=False, retry=1 << 20)


def f32bits(x):
    return struct.unpack("<I", struct.pack("<f", x))[0]


def vr(a, n=4):
    return "v[%d:%d]" % (a, a + n - 1)


def gen(**kw):
    o = dict(DEFAULTS)
    o.update(kw)
    W = o["W"]
    p = Prog()
    e = p.e
    st, ld, nt = o["st"], o["ld"], o["nt"]
    stamp_n = [0]

    def stamp():
        if o["stamps"]:
            k = 70 + 2 * stamp_n[0]
            assert k <= 98
            e("s_memrealtime s[%d:%d]" % (k, k + 1))
            stamp_n[0] += 1

    def dump(reg, n, slot):
        if o["dump"]:
            e("s_mov_b32 s69, %d" % (TS_OFF + (1 << 20) + slot * (4 << 20)))
            for i in range(n):
                p.vm("buffer_store_dword v%d, v60, s[36:39], s69 offen offset:%d" % (reg + i, 4 * i))
            e("s_waitcnt vmcnt(0)")

    SCALE = 128 ** -0.5
    LOG2E = 1.4426950408889634
    DATA = 64
    KOP = 128
    VRAW = 160
    VT = 192
    G1R = 224
    QOP = 240
    AB = (10, 14)
    QACC = 18
    MASK = 6

    e("%s_kernel:" % KN)
    e("s_cmp_ge_u32 s2, 256")
    e("s_cbranch_scc1 L_end")
    e("""
    s_and_b32 s3, s2, 7
    s_lshr_b32 s5, s3, 2
    s_mul_i32 s7, s5, 40
    s_add_u32 s8, s0, s7
    s_addc_u32 s9, s1, 0
    s_load_dwordx2 s[24:25], s[8:9], 24
    s_load_dwordx2 s[12:13], s[8:9], 0
    s_load_dwordx2 s[36:37], s[0:1], 96
    s_load_dwordx2 s[16:17], s[8:9], 8
    s_load_dwordx2 s[20:21], s[8:9], 16
    s_load_dwordx2 s[28:29], s[8:9], 32
    s_load_dwordx2 s[32:33], s[0:1], 80
    """)
    if o["prefetch"]:
        e("""
        s_getpc_b64 s[10:11]
        L_pc:
        v_lshlrev_b32 v47, 6, v0
        v_min_u32 v47, (L_codeend - L_pc - 4), v47
        v_mov_b32 v49, s11
        v_add_co_u32 v48, vcc, s10, v47
        v_addc_co_u32 v49, vcc, 0, v49, vcc
        """)
        p.vm("global_load_dword v47, v[48:49], off")
    stamp()
    e("""
    v_lshrrev_b32 v50, 6, v0
    v_and_b32 v1, 63, v0
    v_readfirstlane_b32 s40, v50
    v_lshrrev_b32 v2, 4, v1
    v_and_b32 v3, 15, v0
    s_lshr_b32 s4, s2, 3
    s_and_b32 s6, s3, 3
    s_mov_b32 s26, 0x800000
    s_mov_b32 s27, 0x20000
    s_mov_b32 s14, 2048
    s_mov_b32 s15, 0x20000
    s_mov_b32 s38, %d
    s_mov_b32 s39, 0x20000
    s_mov_b32 s18, 0x4000000
    s_mov_b32 s19, 0x20000
    s_mov_b32 s22, 0x4000000
    s_mov_b32 s23, 0x20000
    s_mov_b32 s30, 0x800000
    s_mov_b32 s31, 0x20000
    s_mov_b32 s34, 4096
    s_mov_b32 s35, 0x20000
    """ % WS_BYTES)
    nrows = 16 if o["qil"] else 4
    wrows = 4 if o["qil"] else 64
    e("""
    v_lshlrev_b32 v4, %d, v3
    v_lshl_add_u32 v4, v2, 1, v4
    v_lshlrev_b32 v5, 4, v3
    v_lshl_add_u32 v5, v2, 13, v5
    s_lshr_b32 s60, s4, 3
    s_lshl_b32 s60, s60, 8
    s_mul_i32 s61, s40, %d
    s_add_u32 s60, s60, s61
    s_lshl_b32 s44, s60, 1
    s_lshl_b32 s45, s60, 13
    s_lshl_b32 s61, s6, 11
    s_add_u32 s45, s45, s61
    s_and_b32 s61, s4, 7
    s_lshl_b32 s61, s61, 8
    s_add_u32 s45, s45, s61
    """ % ((nrows.bit_length() - 1) + 1, wrows))
    e("""
    s_lshl_b32 s46, s6, 24
    s_lshl_b32 s61, s4, 15
    s_add_u32 s46, s46, s61
    s_lshl_b32 s58, s40, 10
    s_add_u32 s46, s46, s58
    s_add_u32 s46, s46, %d
    s_mov_b32 s47, s46
    """ % (61440 * 256))
    if KB:
        e("s_add_u32 s58, s58, %d" % KB)
    e("""
    s_lshl_b32 s48, s6, 21
    s_lshr_b32 s61, s4, 2
    s_lshl_b32 s61, s61, 18
    s_add_u32 s48, s48, s61
    s_lshl_b32 s61, s40, 16
    s_add_u32 s48, s48, s61
    s_and_b32 s61, s4, 3
    s_lshl_b32 s61, s61, 9
    s_add_u32 s48, s48, s61
    s_lshl_b32 s7, s5, 8
    """)
    e("s_waitcnt lgkmcnt(0)")
    e("s_load_dword s43, s[36:37], s7")
    xop = p.vm("buffer_load_ushort v4, v4, s[12:15], s44 offen")

    stream = []

    def add(fn):
        stream.append(fn)

    for t in range(16):
        def f(t=t):
            s = p.vm("buffer_load_dwordx4 %s, v5, s[24:27], s45 offen %s" % (vr(DATA + 4 * t), nt))
            if t < 15:
                e("s_add_u32 s45, s45, %d" % (nrows * 8192))
            return s
        add(f)
    for jj in range(8):
        def f(jj=jj):
            e("s_mov_b32 m0, s58")
            if jj < 7:
                e("s_add_u32 s58, s58, 4096")
            s = p.vm("buffer_load_dwordx4 v%d, s[16:19], s46 offen %s lds" % (22 + (jj & 3), nt))
            if jj < 7:
                e("s_add_u32 s46, s46, 4096")
            return s
        add(f)
    for jj in range(8):
        def f(jj=jj):
            s = p.vm("buffer_load_dwordx4 %s, v26, s[20:23], s47 offen %s" % (vr(VRAW + 4 * jj), nt))
            if jj < 7:
                e("s_add_u32 s47, s47, 4096")
            return s
        add(f)
    for t in range(8):
        for c2 in range(2):
            def f(t=t, c2=c2):
                s = p.vm("buffer_load_dwordx4 %s, v27, s[28:31], s48 offen offset:%d %s" % (
                    vr(DATA + 8 * t + 4 * c2), 256 * c2, nt))
                if c2 == 1 and t < 7:
                    e("s_add_u32 s48, s48, 2048")
                return s
            add(f)
    seq = []
    done = [0]
    actions = {}

    def issue(k=1):
        for _ in range(k):
            if len(seq) < len(stream):
                seq.append(stream[len(seq)]())

    def arrive(idx):
        if idx < done[0]:
            return
        assert idx < len(seq)
        p.wait_vm(seq[idx])
        while done[0] <= idx:
            a = actions.get(done[0])
            if a:
                a()
            done[0] += 1

    def pace(upto):
        upto = min(upto, len(stream))
        while len(seq) < upto:
            if len(seq) - W >= done[0]:
                arrive(len(seq) - W)
            issue(1)

    issue(W)
    stamp()

    e("""
    v_and_b32 v50, 1, v3
    v_lshlrev_b32 v50, 4, v50
    v_mov_b32 v51, 0xffff
    v_lshlrev_b32 v50, v50, v51
    v_lshrrev_b32 v51, 1, v3
    """)
    for d in range(4):
        e("v_cmp_eq_u32 vcc, %d, v51" % d)
        e("v_cndmask_b32 v%d, 0, v50, vcc" % (MASK + d))
    e("""
    v_lshlrev_b32 v26, 4, v1
    v_lshlrev_b32 v27, 4, v3
    v_lshl_add_u32 v27, v2, 14, v27
    v_lshlrev_b32 v50, 2, v2
    v_xor_b32 v50, v50, v3
    v_lshlrev_b32 v50, 4, v50
    v_lshl_add_u32 v22, v2, 8, v50
    v_xor_b32 v23, 16, v22
    v_xor_b32 v24, 32, v22
    v_xor_b32 v25, 48, v22
    """)
    e("""
    v_and_b32 v50, 3, v3
    v_lshlrev_b32 v50, 4, v50
    v_lshrrev_b32 v51, 2, v3
    v_add_u32 v50, v50, v51
    v_lshlrev_b32 v50, 8, v50
    v_add_u32 v50, s58, v50
    v_xor_b32 v51, v2, v3
    v_lshl_add_u32 v28, v51, 4, v50
    v_xor_b32 v29, 64, v28
    v_xor_b32 v30, 0x80, v28
    v_xor_b32 v31, 0xc0, v28
    """)
    assert KB % 256 == 0
    e("""
    v_lshrrev_b32 v52, 5, v1
    v_and_b32 v53, 31, v1
    v_lshlrev_b32 v54, 4, v53
    v_lshl_add_u32 v33, v52, 11, v54
    s_lshl_b32 s60, s40, 1
    v_add_u32 v55, s60, v52
    v_mul_u32_u24 v34, 288, v55
    v_lshl_add_u32 v34, v53, 3, v34
    v_add_u32 v34, %d, v34
    v_and_b32 v56, 7, v3
    v_mul_u32_u24 v35, 288, v56
    v_lshl_add_u32 v35, v2, 4, v35
    v_add_u32 v35, %d, v35
    v_mul_u32_u24 v36, 528, v56
    v_lshl_add_u32 v36, v2, 7, v36
    v_lshrrev_b32 v57, 3, v3
    v_lshl_add_u32 v36, v57, 6, v36
    s_mul_i32 s60, s40, 4224
    s_add_u32 s60, s60, %d
    v_add_u32 v36, s60, v36
    v_mul_u32_u24 v37, 528, v55
    v_add_u32 v37, v37, v54
    v_add_u32 v37, %d, v37
    s_lshl_b32 s60, s40, 3
    s_add_u32 s60, s60, %d
    v_lshlrev_b32 v38, 5, v56
    v_add_u32 v38, s60, v38
    v_lshlrev_b32 v39, 5, v55
    v_add_u32 v39, %d, v39
    v_lshl_add_u32 v40, v52, 14, v54
    v_and_b32 v58, 1, v1
    v_lshlrev_b32 v41, 7, v58
    v_lshl_add_u32 v41, v52, 8, v41
    v_lshrrev_b32 v59, 3, v1
    v_and_b32 v61, 7, v1
    v_lshlrev_b32 v42, 4, v61
    v_lshl_add_u32 v42, v59, 9, v42
    v_lshlrev_b32 v43, 4, v59
    v_lshl_add_u32 v62, v3, 1, v2
    v_lshlrev_b32 v62, 4, v62
    s_lshl_b32 s60, s40, 10
    s_add_u32 s60, s60, %d
    v_add_u32 v44, s60, v62
    s_lshl_b32 s60, s40, 9
    s_add_u32 s60, s60, %d
    v_add_u32 v62, s60, v62
    v_lshrrev_b32 v45, 1, v1
    v_lshlrev_b32 v45, 10, v45
    v_lshl_add_u32 v45, v58, 4, v45
    v_lshl_add_u32 v46, v3, 2, v2
    v_lshlrev_b32 v46, 1, v46
    s_lshl_b32 s60, s40, 7
    s_add_u32 s60, s60, %d
    v_add_u32 v63, s60, v26
    s_lshl_b32 s60, s40, 8
    s_add_u32 s60, s60, %d
    v_add_u32 v61, s60, v26
    v_lshlrev_b32 v60, 6, v0
    """ % (QB, QB, ORED, ORED, MLR, MLR, OUTRED, QRED, QRED, OUTRED))
    if o["dump"]:
        e("s_lshl_b32 s60, s2, 14\nv_add_u32 v60, s60, v60")
    e("""
    s_lshl_b32 s50, s3, 14
    s_add_u32 s50, s50, %d
    s_and_b32 s60, s4, 7
    s_lshl_b32 s60, s60, 11
    s_add_u32 s49, s50, s60
    s_lshr_b32 s60, s4, 3
    s_lshl_b32 s60, s60, 9
    s_add_u32 s49, s49, s60
    s_lshl_b32 s60, s40, 7
    s_add_u32 s49, s49, s60
    s_lshl_b32 s60, s40, 12
    s_add_u32 s50, s50, s60
    s_lshl_b32 s53, s3, 17
    s_add_u32 s53, s53, %d
    s_lshl_b32 s60, s40, 15
    s_add_u32 s51, s53, s60
    s_lshl_b32 s60, s4, 9
    s_add_u32 s51, s51, s60
    s_lshr_b32 s61, s4, 2
    s_lshl_b32 s60, s61, 14
    s_add_u32 s53, s53, s60
    s_lshl_b32 s60, s40, 7
    s_add_u32 s53, s53, s60
    s_add_u32 s66, s53, 4096
    s_add_u32 s67, s53, 8192
    s_add_u32 s68, s53, 12288
    s_lshl_b32 s54, s3, 11
    s_add_u32 s54, s54, %d
    s_lshl_b32 s60, s40, 9
    s_add_u32 s52, s54, s60
    s_and_b32 s60, s4, 7
    s_lshl_b32 s60, s60, 4
    s_add_u32 s52, s52, s60
    s_lshr_b32 s60, s4, 3
    s_lshl_b32 s60, s60, 2
    s_add_u32 s52, s52, s60
    s_lshl_b32 s60, s61, 8
    s_add_u32 s54, s54, s60
    s_lshl_b32 s55, s5, 2
    s_and_b32 s60, s4, 3
    s_add_u32 s55, s55, s60
    s_lshl_b32 s55, s55, 5
    s_lshl_b32 s60, s6, 3
    s_add_u32 s55, s55, s60
    s_add_u32 s55, s55, s61
    s_lshl_b32 s55, s55, 10
    s_lshl_b32 s60, s40, 8
    s_add_u32 s55, s55, s60
    s_add_u32 s55, s55, %d
    s_lshl_b32 s56, s3, 15
    s_lshl_b32 s60, s4, 5
    s_add_u32 s56, s56, s60
    s_add_u32 s56, s56, %d
    s_lshl_b32 s57, s3, 9
    s_lshl_b32 s60, s4, 4
    s_add_u32 s57, s57, s60
    s_mov_b32 s42, %d
    s_mov_b32 s59, %d
    s_mov_b32 s62, 0x05040100
    s_mov_b32 s63, 0x07060302
    s_mov_b32 s64, 0x00ff00ff
    s_mov_b32 s65, 0x00ff00ff
    """ % (E1, E2O, ML, E3, E3, TAGMASK, o["retry"]))
    e("s_waitcnt lgkmcnt(0)")
    e("""
    s_add_u32 s43, s43, 1
    s_and_b32 s41, s43, s42
    v_mov_b32 v32, s41
    """)
    p.wait_vm(xop)
    e("v_lshl_or_b32 v4, v4, 16, v4")

    def build_a(dst, src, t):
        for d in range(4):
            e("v_and_b32_dpp v%d, v%d, v%d row_newbcast:%d row_mask:0xf bank_mask:0xf" % (dst + d, src, MASK + d, t))

    for t in range(16):
        build_a(AB[t & 1], 4, t)
        arrive(t)
        e("v_mfma_f32_16x16x32_bf16 %s, %s, %s, %s" % (
            vr(QACC), vr(AB[t & 1]), vr(DATA + 4 * t), "0" if t == 0 else vr(QACC)))
        issue(1)
    stamp()
    e("s_mov_b32 exec_hi, 0")
    e("ds_write_b128 v62, %s" % vr(QACC))
    e("s_mov_b64 exec, 0xff")
    e("s_waitcnt lgkmcnt(0)")
    e("s_barrier")
    for w2 in range(4):
        e("ds_read_b128 %s, v63 offset:%d" % (vr(G1R + 4 * w2), 512 * w2))
    e("s_waitcnt lgkmcnt(0)")
    for r in (0, 2):
        e("v_pk_add_f32 %s, %s, %s" % (vr(G1R + r, 2), vr(G1R + r, 2), vr(G1R + 4 + r, 2)))
        e("v_pk_add_f32 %s, %s, %s" % (vr(G1R + 8 + r, 2), vr(G1R + 8 + r, 2), vr(G1R + 12 + r, 2)))
    for r in (0, 2):
        e("v_pk_add_f32 %s, %s, %s" % (vr(G1R + r, 2), vr(G1R + r, 2), vr(G1R + 8 + r, 2)))
    for r in range(4):
        e("v_bfi_b32 v%d, s42, v32, v%d" % (G1R + r, G1R + r))
    p.vm("buffer_store_dwordx4 %s, v26, s[36:39], s49 offen %s" % (vr(G1R), st))
    e("s_mov_b64 exec, -1")
    stamp()

    def k_read():
        for T in range(2):
            for s in range(4):
                e("ds_read_b128 %s, v%d offset:%d" % (vr(KOP + 16 * T + 4 * s), 28 + s, 16384 * T))
    actions[23] = k_read

    def v_perm(d):
        def f():
            for ee in range(8):
                e("v_perm_b32 v%d, v%d, v%d, s%d" % (
                    VT + 4 * ee + d, VRAW + 4 * (2 * d + 1) + (ee >> 1), VRAW + 4 * (2 * d) + (ee >> 1), 62 + (ee & 1)))
        return f
    for d in range(4):
        actions[24 + 2 * d + 1] = v_perm(d)

    def checklist(regs, tmp):
        regs = list(regs)
        e("v_or3_b32 v%d, v%d, v%d, v%d" % (tmp, regs[0], regs[1], regs[2]))
        regs = regs[3:]
        while len(regs) >= 2:
            e("v_or3_b32 v%d, v%d, v%d, v%d" % (tmp, tmp, regs[0], regs[1]))
            regs = regs[2:]
        if regs:
            e("v_or_b32 v%d, v%d, v%d" % (tmp, tmp, regs[0]))
        e("v_and_b32 v%d, s42, v%d" % (tmp, tmp))
        e("v_cmp_ne_u32 vcc, 0, v%d" % tmp)

    retries = []

    def gather1():
        s = None
        for s4 in range(4):
            s = p.vm("buffer_load_dwordx4 %s, v33, s[36:39], s50 offen offset:%d %s" % (vr(G1R + 4 * s4), 512 * s4, ld))
        return s

    pos1 = 24 + o["G1"]
    pace(pos1)
    g1 = gather1()
    stamp()
    pace(len(seq) + o["B1"])
    arrive(23)
    p.wait_vm(g1)
    e("L_chk1:")
    stamp_slot = stamp_n[0]
    stamp()
    for r in range(16):
        e("v_xor_b32 v%d, s41, v%d" % (G1R + r, G1R + r))
    for r in (0, 2):
        e("v_pk_add_f32 %s, %s, %s" % (vr(50 + r, 2), vr(G1R + r, 2), vr(G1R + 4 + r, 2)))
        e("v_pk_add_f32 %s, %s, %s" % (vr(54 + r, 2), vr(G1R + 8 + r, 2), vr(G1R + 12 + r, 2)))
    for r in (0, 2):
        e("v_pk_add_f32 %s, %s, %s" % (vr(50 + r, 2), vr(50 + r, 2), vr(54 + r, 2)))
    e("v_cvt_pk_bf16_f32 v50, v50, v51")
    e("v_cvt_pk_bf16_f32 v51, v52, v53")
    e("ds_write_b64 v34, v[50:51]")
    checklist(range(G1R, G1R + 16), 54)
    e("s_cbranch_vccnz L_retry1")
    retries.append(("L_retry1", "L_chk1", gather1))
    e("s_waitcnt lgkmcnt(0)")
    e("s_barrier")
    for s4 in range(4):
        e("ds_read_b128 %s, v35 offset:%d" % (vr(QOP + 4 * s4), 64 * s4))
    spr = list(o["spr"])
    issue(spr[0])
    for r in range(4):
        e("v_mov_b32 v%d, 0x3f803f80" % (56 + r))
    for r in range(8):
        e("v_mov_b32 v%d, 0" % (G1R + 8 + r))
    e("s_waitcnt lgkmcnt(0)")
    dump(QOP, 16, 0)
    S = G1R
    for s4 in range(4):
        for T in range(2):
            e("v_mfma_f32_16x16x32_bf16 %s, %s, %s, %s" % (
                vr(S + 4 * T), vr(KOP + 16 * T + 4 * s4), vr(QOP + 4 * s4), "0" if s4 == 0 else vr(S + 4 * T)))
    issue(spr[1])
    C = SCALE * LOG2E
    if o["mimic"]:
        e("s_mov_b32 s60, 0x%x" % f32bits(SCALE))
        for rnd in range(2):
            for d in range(4):
                e("v_cvt_pk_bf16_f32 v%d, v%d, v%d" % (50 + d, S + 2 * d, S + 2 * d + 1))
            for d in range(4):
                e("v_lshlrev_b32 v%d, 16, v%d" % (S + 2 * d, 50 + d))
                e("v_and_b32 v%d, 0xffff0000, v%d" % (S + 2 * d + 1, 50 + d))
            if rnd == 0:
                for r in range(8):
                    e("v_mul_f32 v%d, s60, v%d" % (S + r, S + r))
        C = LOG2E
    dump(S, 8, 1)
    e("s_mov_b32 s60, 0x%x" % f32bits(C))
    e("v_max3_f32 v50, v%d, v%d, v%d" % (S, S + 1, S + 2))
    e("v_max3_f32 v51, v%d, v%d, v%d" % (S + 3, S + 4, S + 5))
    e("v_max3_f32 v50, v50, v%d, v%d" % (S + 6, S + 7))
    e("v_max_f32 v50, v50, v51")
    e("v_mov_b32 v51, v50")
    e("v_permlane16_swap_b32 v50, v51")
    e("v_max_f32 v50, v50, v51")
    e("v_mov_b32 v51, v50")
    e("v_permlane32_swap_b32 v50, v51")
    e("v_max_f32 v50, v50, v51")
    e("v_mul_f32 v50, s60, v50")
    for r in range(8):
        e("v_fma_f32 v%d, v%d, s60, -v50" % (S + r, S + r))
    for r in range(8):
        e("v_exp_f32 v%d, v%d" % (S + r, S + r))
    PLO, PHI = S + 8, S + 12
    e("s_mov_b64 exec, s[64:65]")
    for d in range(4):
        e("v_cvt_pk_bf16_f32 v%d, v%d, v%d" % (PLO + d, S + 2 * d, S + 2 * d + 1))
    e("s_not_b64 exec, s[64:65]")
    for d in range(4):
        e("v_cvt_pk_bf16_f32 v%d, v%d, v%d" % (PHI + d, S + 2 * d, S + 2 * d + 1))
    e("s_mov_b64 exec, -1")
    stamp()
    issue(spr[2])
    arrive(31)
    OA = VRAW
    LA = VRAW + 16
    for ep in range(4):
        e("v_mfma_f32_16x16x32_bf16 %s, %s, %s, 0" % (vr(OA + 4 * ep), vr(VT + 4 * ep), vr(PLO)))
    e("v_mfma_f32_16x16x32_bf16 %s, %s, %s, 0" % (vr(LA), vr(56), vr(PLO)))
    e("v_mfma_f32_16x16x32_bf16 %s, %s, %s, %s" % (vr(LA), vr(56), vr(PHI), vr(LA)))
    for ep in range(4):
        e("v_mfma_f32_16x16x32_bf16 %s, %s, %s, %s" % (vr(OA + 4 * ep), vr(VT + 4 * (ep + 4)), vr(PHI), vr(OA + 4 * ep)))
    issue(spr[3])
    e("s_mov_b64 exec, 0xff")
    e("ds_write2_b32 v38, v50, v%d offset0:0 offset1:1" % LA)
    e("s_mov_b64 exec, -1")
    for ep in range(4):
        e("ds_write_b128 v36, %s offset:%d" % (vr(OA + 4 * ep), 16 * ep))
    dump(OA, 16, 2)
    e("s_waitcnt lgkmcnt(0)")
    e("s_barrier")
    R = VT
    e("ds_read_b128 %s, v39" % vr(R + 16))
    e("ds_read_b128 %s, v39 offset:16" % vr(R + 20))
    for w2 in range(4):
        e("ds_read_b128 %s, v37 offset:%d" % (vr(R + 4 * w2), 4224 * w2))
    issue(spr[4])
    e("s_waitcnt lgkmcnt(4)" if not o["stamps"] else "s_waitcnt lgkmcnt(0)")
    e("v_max3_f32 v50, v%d, v%d, v%d" % (R + 16, R + 18, R + 20))
    e("v_max_f32 v50, v50, v%d" % (R + 22))
    for w2 in range(4):
        e("v_sub_f32 v%d, v%d, v50" % (52 + w2, R + 16 + 2 * w2))
    for w2 in range(4):
        e("v_exp_f32 v%d, v%d" % (52 + w2, 52 + w2))
    e("v_mul_f32 v51, v52, v%d" % (R + 17))
    for w2 in range(1, 4):
        e("v_fmac_f32 v51, v%d, v%d" % (52 + w2, R + 17 + 2 * w2))
    e("v_and_b32 v56, 1, v1")
    e("v_cmp_eq_u32 vcc, 1, v56")
    e("s_waitcnt lgkmcnt(0)")
    for r in range(4):
        e("v_mul_f32 v%d, v52, v%d" % (R + r, R + r))
    for w2 in range(1, 4):
        for r in range(4):
            e("v_fmac_f32 v%d, v%d, v%d" % (R + r, 52 + w2, R + 4 * w2 + r))
    e("v_cndmask_b32 v50, v50, v51, vcc")
    for r in range(4):
        e("v_bfi_b32 v%d, s42, v32, v%d" % (R + r, R + r))
    e("v_bfi_b32 v50, s42, v32, v50")
    p.vm("buffer_store_dwordx4 %s, v40, s[36:39], s51 offen %s" % (vr(R), st))
    e("s_mov_b32 exec_lo, 3\ns_mov_b32 exec_hi, 3")
    p.vm("buffer_store_dword v50, v41, s[36:39], s52 offen %s" % st)
    e("s_mov_b64 exec, -1")
    stamp()
    issue(spr[5])

    G2R = KOP

    def gather2():
        p.vm("buffer_load_dwordx4 %s, v43, s[36:39], s54 offen %s" % (vr(G2R + 16), ld))
        p.vm("buffer_load_dwordx4 %s, v43, s[36:39], s54 offen offset:128 %s" % (vr(G2R + 20), ld))
        s = None
        for u, sr in enumerate((53, 66, 67, 68)):
            s = p.vm("buffer_load_dwordx4 %s, v42, s[36:39], s%d offen %s" % (vr(G2R + 4 * u), sr, ld))
        return s

    pace(32 + o["G2"])
    g2 = gather2()
    stamp()
    pace(len(seq) + o["B2"])
    p.wait_vm(g2)
    e("L_chk2:")
    stamp()
    for r in range(16, 24):
        e("v_xor_b32 v%d, s41, v%d" % (G2R + r, G2R + r))
    M0 = G2R + 16
    e("v_max3_f32 v50, v%d, v%d, v%d" % (M0, M0 + 1, M0 + 2))
    e("v_max_f32 v50, v50, v%d" % (M0 + 3))
    for r in range(0, 2):
        e("v_xor_b32 v%d, s41, v%d" % (G2R + r, G2R + r))
    e("v_max_f32_dpp v50, v50, v50 row_ror:8 row_mask:0xf bank_mask:0xf")
    e("v_xor_b32 v%d, s41, v%d" % (G2R + 2, G2R + 2))
    e("v_mov_b32 v51, v50")
    for r in range(3, 5):
        e("v_xor_b32 v%d, s41, v%d" % (G2R + r, G2R + r))
    e("v_permlane16_swap_b32 v50, v51")
    e("v_max_f32 v50, v50, v51")
    e("v_mov_b32 v51, v50")
    for r in range(5, 7):
        e("v_xor_b32 v%d, s41, v%d" % (G2R + r, G2R + r))
    e("v_permlane32_swap_b32 v50, v51")
    e("v_max_f32 v50, v50, v51")
    for u in range(4):
        e("v_sub_f32 v%d, v%d, v50" % (52 + u, M0 + u))
    for u in range(4):
        e("v_exp_f32 v%d, v%d" % (52 + u, 52 + u))
    for r in range(7, 16):
        e("v_xor_b32 v%d, s41, v%d" % (G2R + r, G2R + r))
    e("v_mul_f32 v51, v52, v%d" % (M0 + 4))
    for u in range(1, 4):
        e("v_fmac_f32 v51, v%d, v%d" % (52 + u, M0 + 4 + u))
    A4 = 56
    for r in range(4):
        e("v_mul_f32 v%d, v52, v%d" % (A4 + r, G2R + r))
    e("v_add_f32_dpp v51, v51, v51 row_ror:8 row_mask:0xf bank_mask:0xf")
    for u in range(1, 4):
        for r in range(4):
            e("v_fmac_f32 v%d, v%d, v%d" % (A4 + r, 52 + u, G2R + 4 * u + r))
    e("v_mov_b32 v50, v51")
    e("v_or3_b32 v52, v%d, v%d, v%d" % (G2R, G2R + 1, G2R + 2))
    e("v_permlane32_swap_b32 v%d, v%d" % (A4, A4 + 2))
    e("v_permlane32_swap_b32 v%d, v%d" % (A4 + 1, A4 + 3))
    e("v_permlane16_swap_b32 v50, v51")
    e("v_add_f32 v%d, v%d, v%d" % (A4, A4, A4 + 2))
    e("v_add_f32 v%d, v%d, v%d" % (A4 + 1, A4 + 1, A4 + 3))
    e("v_add_f32 v51, v50, v51")
    e("v_mov_b32 v50, v51")
    e("v_permlane16_swap_b32 v%d, v%d" % (A4, A4 + 1))
    e("v_or3_b32 v52, v52, v%d, v%d" % (G2R + 3, G2R + 4))
    e("v_permlane32_swap_b32 v50, v51")
    e("v_add_f32 v%d, v%d, v%d" % (A4, A4, A4 + 1))
    e("v_add_f32 v51, v50, v51")
    e("v_rcp_f32 v51, v51")
    e("v_add_f32_dpp v%d, v%d, v%d row_ror:8 row_mask:0xf bank_mask:0xf" % (A4, A4, A4))
    for r in range(5, 23, 2):
        e("v_or3_b32 v52, v52, v%d, v%d" % (G2R + r, G2R + r + 1))
    e("v_or_b32 v52, v52, v%d" % (G2R + 23))
    e("v_mul_f32 v%d, v%d, v51" % (A4, A4))
    e("v_and_b32 v52, s42, v52")
    e("v_cmp_ne_u32 vcc, 0, v52")
    e("v_cvt_pk_bf16_f32 v4, v%d, v%d" % (A4, A4))
    e("s_cbranch_vccnz L_retry2")
    retries.append(("L_retry2", "L_chk2", gather2))
    dump(4, 1, 3)
    stamp()
    issue(16)
    OUT0, OUT1 = G1R, G1R + 4
    for t in range(8):
        build_a(AB[t & 1], 4, t)
        for c2, acc in ((0, OUT0), (1, OUT1)):
            arrive(32 + 2 * t + c2)
            e("v_mfma_f32_16x16x32_bf16 %s, %s, %s, %s" % (
                vr(acc), vr(AB[t & 1]), vr(DATA + 8 * t + 4 * c2), "0" if t == 0 else vr(acc)))
    stamp()
    e("s_mov_b32 exec_hi, 0")
    e("ds_write_b128 v44, %s" % vr(OUT0))
    e("ds_write_b128 v44, %s offset:512" % vr(OUT1))
    e("s_mov_b64 exec, 0xffff")
    e("s_waitcnt lgkmcnt(0)")
    e("s_barrier")
    for w2 in range(4):
        e("ds_read_b128 %s, v61 offset:%d" % (vr(R + 4 * w2), 1024 * w2))
    e("s_waitcnt lgkmcnt(0)")
    for r in (0, 2):
        e("v_pk_add_f32 %s, %s, %s" % (vr(R + r, 2), vr(R + r, 2), vr(R + 4 + r, 2)))
        e("v_pk_add_f32 %s, %s, %s" % (vr(R + 8 + r, 2), vr(R + 8 + r, 2), vr(R + 12 + r, 2)))
    for r in (0, 2):
        e("v_pk_add_f32 %s, %s, %s" % (vr(R + r, 2), vr(R + r, 2), vr(R + 8 + r, 2)))
    for r in range(4):
        e("v_bfi_b32 v%d, s42, v32, v%d" % (R + r, R + r))
    p.vm("buffer_store_dwordx4 %s, v26, s[36:39], s55 offen sc1" % vr(R))
    e("s_mov_b64 exec, -1")
    stamp()
    e("s_cmp_lg_u32 s40, 0")
    e("s_cbranch_scc1 L_fin")

    def gather3():
        return p.vm("buffer_load_dwordx4 %s, v45, s[36:39], s56 offen sc1" % vr(A4))
    e("L_retry3:")
    e("s_sub_u32 s59, s59, 1")
    e("s_cbranch_scc1 L_end")
    g3 = gather3()
    p.wait_vm(g3)
    for r in range(4):
        e("v_xor_b32 v%d, s41, v%d" % (A4 + r, A4 + r))
    checklist(range(A4, A4 + 4), 52)
    e("s_cbranch_vccnz L_retry3")
    e("v_permlane32_swap_b32 v%d, v%d" % (A4, A4 + 2))
    e("v_permlane32_swap_b32 v%d, v%d" % (A4 + 1, A4 + 3))
    e("v_add_f32 v%d, v%d, v%d" % (A4, A4, A4 + 2))
    e("v_add_f32 v%d, v%d, v%d" % (A4 + 1, A4 + 1, A4 + 3))
    e("v_permlane16_swap_b32 v%d, v%d" % (A4, A4 + 1))
    e("v_add_f32 v%d, v%d, v%d" % (A4, A4, A4 + 1))
    for k in (2, 4, 8):
        e("v_add_f32_dpp v%d, v%d, v%d row_ror:%d row_mask:0xf bank_mask:0xf" % (A4, A4, A4, k))
    e("v_cvt_pk_bf16_f32 v%d, v%d, v%d" % (A4, A4, A4))
    e("s_mov_b32 exec_lo, 0x00030003\ns_mov_b32 exec_hi, 0x00030003")
    p.vm("buffer_store_short v%d, v46, s[32:35], s57 offen" % A4)
    e("s_and_b32 s60, s2, 0xfb")
    e("s_cmp_lg_u32 s60, 0")
    e("s_cbranch_scc1 L_fin")
    e("s_mov_b64 exec, 1")
    e("v_mov_b32 v50, s43")
    e("v_mov_b32 v51, 0")
    p.vm("buffer_store_dword v50, v51, s[36:39], s7 offen sc1")
    e("L_fin:")
    if o["stamps"]:
        stamp()
        e("s_mov_b64 exec, 1")
        e("s_getreg_b32 s68, hwreg(HW_REG_XCC_ID)")
        e("s_mov_b32 s69, s59")
        e("s_waitcnt lgkmcnt(0)")
        for i in range(32):
            e("v_mov_b32 v%d, s%d" % (64 + i, 68 + i))
        e("s_lshl_b32 s60, s2, 2\ns_add_u32 s60, s60, s40\ns_lshl_b32 s60, s60, 7\ns_add_u32 s60, s60, %d" % TS_OFF)
        e("v_mov_b32 v51, 0")
        for i in range(8):
            p.vm("buffer_store_dwordx4 %s, v51, s[36:39], s60 offen offset:%d" % (vr(64 + 4 * i), 16 * i))
    e("L_end:")
    e("s_endpgm")
    for lab, chk, g in retries:
        e("%s:" % lab)
        e("s_sub_u32 s59, s59, 1")
        e("s_cbranch_scc1 L_end")
        g()
        e("s_waitcnt vmcnt(0)")
        e("s_branch %s" % chk)
    e("L_codeend:")

    head = """; Fused decode attention for both branches: q = x Wq, GQA attention over the last 4096 keys, out = o Wo.
; 256 workgroups, 32 per (branch, kv head); partial results are handed over through d_ws in 16-byte
; granules whose words carry a 10-bit launch tag in their low mantissa bits.
; @launch grid=(256,1,1) block=(256,1,1) lds=%d
.amdgcn_target "amdgcn-amd-amdhsa--gfx950"
.text
.globl %s_kernel
.p2align 8
.type %s_kernel,@function
""" % (LDS_BYTES, KN, KN)
    tail = """.section .rodata,"a"
.p2align 6
.amdhsa_kernel %s_kernel
  .amdhsa_next_free_vgpr 256
  .amdhsa_next_free_sgpr 102
  .amdhsa_accum_offset 256
  .amdhsa_group_segment_fixed_size 0
  .amdhsa_kernarg_size 104
  .amdhsa_user_sgpr_count 2
  .amdhsa_user_sgpr_kernarg_segment_ptr 1
  .amdhsa_system_sgpr_workgroup_id_x 1
  .amdhsa_float_denorm_mode_32 3
.end_amdhsa_kernel
""" % KN
    return head + p.text() + tail


if __name__ == "__main__":
    kw = eval("dict(%s)" % (sys.argv[2] if len(sys.argv) > 2 else ""))
    open(sys.argv[1], "w").write(gen(**kw))
```

```python
import struct
import sys
from asmlib import Prog

KN = "concat_heads__sliding_block_cached__sliding_block_cached__decode"
WS_BYTES = 301993984
TS_OFF = 200 << 20

EPOCH = 0x0
E1 = 0x1000
ML = 0x30000
E3 = 0x40000
E2O = 0x100000
KB = 0
QRED = 32768
QB = 34816
ORED = 37120
MLR = 54016
OUTRED = 54272
LDS_BYTES = 58368
TAGMASK = 0x3FF

DEFAULTS = dict(W=6, G1=4, B1=6, G2=12, B2=4, qil=False, stamps=False, mimic=False, st="sc1", ld="sc1",
                nt="nt", prefetch=True, spr=(1, 1, 1, 1, 1, 1), dump=False, retry=1 << 20)


def f32bits(x):
    return struct.unpack("<I", struct.pack("<f", x))[0]


def vr(a, n=4):
    return "v[%d:%d]" % (a, a + n - 1)


def gen(**kw):
    o = dict(DEFAULTS)
    o.update(kw)
    W = o["W"]
    p = Prog()
    e = p.e
    st, ld, nt = o["st"], o["ld"], o["nt"]
    stamp_n = [0]

    def stamp():
        if o["stamps"]:
            k = 70 + 2 * stamp_n[0]
            assert k <= 98
            e("s_memrealtime s[%d:%d]" % (k, k + 1))
            stamp_n[0] += 1

    def dump(reg, n, slot):
        if o["dump"]:
            e("s_mov_b32 s69, %d" % (TS_OFF + (1 << 20) + slot * (4 << 20)))
            for i in range(n):
                p.vm("buffer_store_dword v%d, v60, s[36:39], s69 offen offset:%d" % (reg + i, 4 * i))
            e("s_waitcnt vmcnt(0)")

    SCALE = 128 ** -0.5
    LOG2E = 1.4426950408889634
    DATA = 64
    KOP = 128
    VRAW = 160
    VT = 192
    G1R = 224
    QOP = 240
    AB = (10, 14)
    QACC = 18
    MASK = 6

    e("%s_kernel:" % KN)
    e("s_cmp_ge_u32 s2, 256")
    e("s_cbranch_scc1 L_end")
    e("""
    s_and_b32 s3, s2, 7
    s_lshr_b32 s5, s3, 2
    s_mul_i32 s7, s5, 40
    s_add_u32 s8, s0, s7
    s_addc_u32 s9, s1, 0
    s_load_dwordx2 s[24:25], s[8:9], 24
    s_load_dwordx2 s[12:13], s[8:9], 0
    s_load_dwordx2 s[36:37], s[0:1], 96
    s_load_dwordx2 s[16:17], s[8:9], 8
    s_load_dwordx2 s[20:21], s[8:9], 16
    s_load_dwordx2 s[28:29], s[8:9], 32
    s_load_dwordx2 s[32:33], s[0:1], 80
    """)
    if o["prefetch"]:
        e("""
        s_getpc_b64 s[10:11]
        L_pc:
        v_lshlrev_b32 v47, 6, v0
        v_min_u32 v47, (L_codeend - L_pc - 4), v47
        v_mov_b32 v49, s11
        v_add_co_u32 v48, vcc, s10, v47
        v_addc_co_u32 v49, vcc, 0, v49, vcc
        """)
        p.vm("global_load_dword v47, v[48:49], off")
    stamp()
    e("""
    v_lshrrev_b32 v50, 6, v0
    v_and_b32 v1, 63, v0
    v_readfirstlane_b32 s40, v50
    v_lshrrev_b32 v2, 4, v1
    v_and_b32 v3, 15, v0
    s_lshr_b32 s4, s2, 3
    s_and_b32 s6, s3, 3
    s_mov_b32 s26, 0x800000
    s_mov_b32 s27, 0x20000
    s_mov_b32 s14, 2048
    s_mov_b32 s15, 0x20000
    s_mov_b32 s38, %d
    s_mov_b32 s39, 0x20000
    s_mov_b32 s18, 0x4000000
    s_mov_b32 s19, 0x20000
    s_mov_b32 s22, 0x4000000
    s_mov_b32 s23, 0x20000
    s_mov_b32 s30, 0x800000
    s_mov_b32 s31, 0x20000
    s_mov_b32 s34, 4096
    s_mov_b32 s35, 0x20000
    """ % WS_BYTES)
    nrows = 16 if o["qil"] else 4
    wrows = 4 if o["qil"] else 64
    e("""
    v_lshlrev_b32 v4, %d, v3
    v_lshl_add_u32 v4, v2, 1, v4
    v_lshlrev_b32 v5, 4, v3
    v_lshl_add_u32 v5, v2, 13, v5
    s_lshr_b32 s60, s4, 3
    s_lshl_b32 s60, s60, 8
    s_mul_i32 s61, s40, %d
    s_add_u32 s60, s60, s61
    s_lshl_b32 s44, s60, 1
    s_lshl_b32 s45, s60, 13
    s_lshl_b32 s61, s6, 11
    s_add_u32 s45, s45, s61
    s_and_b32 s61, s4, 7
    s_lshl_b32 s61, s61, 8
    s_add_u32 s45, s45, s61
    """ % ((nrows.bit_length() - 1) + 1, wrows))
    e("""
    s_lshl_b32 s46, s6, 24
    s_lshl_b32 s61, s4, 15
    s_add_u32 s46, s46, s61
    s_lshl_b32 s58, s40, 10
    s_add_u32 s46, s46, s58
    s_add_u32 s46, s46, %d
    s_mov_b32 s47, s46
    """ % (61440 * 256))
    if KB:
        e("s_add_u32 s58, s58, %d" % KB)
    e("""
    s_lshl_b32 s48, s6, 21
    s_lshr_b32 s61, s4, 2
    s_lshl_b32 s61, s61, 18
    s_add_u32 s48, s48, s61
    s_lshl_b32 s61, s40, 16
    s_add_u32 s48, s48, s61
    s_and_b32 s61, s4, 3
    s_lshl_b32 s61, s61, 9
    s_add_u32 s48, s48, s61
    s_lshl_b32 s7, s5, 8
    """)
    e("s_waitcnt lgkmcnt(0)")
    e("s_load_dword s43, s[36:37], s7")
    xop = p.vm("buffer_load_ushort v4, v4, s[12:15], s44 offen")

    stream = []

    def add(fn):
        stream.append(fn)

    for t in range(16):
        def f(t=t):
            s = p.vm("buffer_load_dwordx4 %s, v5, s[24:27], s45 offen %s" % (vr(DATA + 4 * t), nt))
            if t < 15:
                e("s_add_u32 s45, s45, %d" % (nrows * 8192))
            return s
        add(f)
    for jj in range(8):
        def f(jj=jj):
            e("s_mov_b32 m0, s58")
            if jj < 7:
                e("s_add_u32 s58, s58, 4096")
            s = p.vm("buffer_load_dwordx4 v%d, s[16:19], s46 offen %s lds" % (22 + (jj & 3), nt))
            if jj < 7:
                e("s_add_u32 s46, s46, 4096")
            return s
        add(f)
    for jj in range(8):
        def f(jj=jj):
            s = p.vm("buffer_load_dwordx4 %s, v26, s[20:23], s47 offen %s" % (vr(VRAW + 4 * jj), nt))
            if jj < 7:
                e("s_add_u32 s47, s47, 4096")
            return s
        add(f)
    for t in range(8):
        for c2 in range(2):
            def f(t=t, c2=c2):
                s = p.vm("buffer_load_dwordx4 %s, v27, s[28:31], s48 offen offset:%d %s" % (
                    vr(DATA + 8 * t + 4 * c2), 256 * c2, nt))
                if c2 == 1 and t < 7:
                    e("s_add_u32 s48, s48, 2048")
                return s
            add(f)
    seq = []
    done = [0]
    actions = {}

    def issue(k=1):
        for _ in range(k):
            if len(seq) < len(stream):
                seq.append(stream[len(seq)]())

    def arrive(idx):
        if idx < done[0]:
            return
        assert idx < len(seq)
        p.wait_vm(seq[idx])
        while done[0] <= idx:
            a = actions.get(done[0])
            if a:
                a()
            done[0] += 1

    def pace(upto):
        upto = min(upto, len(stream))
        while len(seq) < upto:
            if len(seq) - W >= done[0]:
                arrive(len(seq) - W)
            issue(1)

    issue(W)
    stamp()

    e("""
    v_and_b32 v50, 1, v3
    v_lshlrev_b32 v50, 4, v50
    v_mov_b32 v51, 0xffff
    v_lshlrev_b32 v50, v50, v51
    v_lshrrev_b32 v51, 1, v3
    """)
    for d in range(4):
        e("v_cmp_eq_u32 vcc, %d, v51" % d)
        e("v_cndmask_b32 v%d, 0, v50, vcc" % (MASK + d))
    e("""
    v_lshlrev_b32 v26, 4, v1
    v_lshlrev_b32 v27, 4, v3
    v_lshl_add_u32 v27, v2, 14, v27
    v_lshlrev_b32 v50, 2, v2
    v_xor_b32 v50, v50, v3
    v_lshlrev_b32 v50, 4, v50
    v_lshl_add_u32 v22, v2, 8, v50
    v_xor_b32 v23, 16, v22
    v_xor_b32 v24, 32, v22
    v_xor_b32 v25, 48, v22
    """)
    e("""
    v_and_b32 v50, 3, v3
    v_lshlrev_b32 v50, 4, v50
    v_lshrrev_b32 v51, 2, v3
    v_add_u32 v50, v50, v51
    v_lshlrev_b32 v50, 8, v50
    v_add_u32 v50, s58, v50
    v_xor_b32 v51, v2, v3
    v_lshl_add_u32 v28, v51, 4, v50
    v_xor_b32 v29, 64, v28
    v_xor_b32 v30, 0x80, v28
    v_xor_b32 v31, 0xc0, v28
    """)
    assert KB % 256 == 0
    e("""
    v_lshrrev_b32 v52, 5, v1
    v_and_b32 v53, 31, v1
    v_lshlrev_b32 v54, 4, v53
    v_lshl_add_u32 v33, v52, 11, v54
    s_lshl_b32 s60, s40, 1
    v_add_u32 v55, s60, v52
    v_mul_u32_u24 v34, 288, v55
    v_lshl_add_u32 v34, v53, 3, v34
    v_add_u32 v34, %d, v34
    v_and_b32 v56, 7, v3
    v_mul_u32_u24 v35, 288, v56
    v_lshl_add_u32 v35, v2, 4, v35
    v_add_u32 v35, %d, v35
    v_mul_u32_u24 v36, 528, v56
    v_lshl_add_u32 v36, v2, 7, v36
    v_lshrrev_b32 v57, 3, v3
    v_lshl_add_u32 v36, v57, 6, v36
    s_mul_i32 s60, s40, 4224
    s_add_u32 s60, s60, %d
    v_add_u32 v36, s60, v36
    v_mul_u32_u24 v37, 528, v55
    v_add_u32 v37, v37, v54
    v_add_u32 v37, %d, v37
    s_lshl_b32 s60, s40, 3
    s_add_u32 s60, s60, %d
    v_lshlrev_b32 v38, 5, v56
    v_add_u32 v38, s60, v38
    v_lshlrev_b32 v39, 5, v55
    v_add_u32 v39, %d, v39
    v_lshl_add_u32 v40, v52, 14, v54
    v_and_b32 v58, 1, v1
    v_lshlrev_b32 v41, 7, v58
    v_lshl_add_u32 v41, v52, 8, v41
    v_lshrrev_b32 v59, 3, v1
    v_and_b32 v61, 7, v1
    v_lshlrev_b32 v42, 4, v61
    v_lshl_add_u32 v42, v59, 9, v42
    v_lshlrev_b32 v43, 4, v59
    v_lshl_add_u32 v62, v3, 1, v2
    v_lshlrev_b32 v62, 4, v62
    s_lshl_b32 s60, s40, 10
    s_add_u32 s60, s60, %d
    v_add_u32 v44, s60, v62
    s_lshl_b32 s60, s40, 9
    s_add_u32 s60, s60, %d
    v_add_u32 v62, s60, v62
    v_lshrrev_b32 v45, 1, v1
    v_lshlrev_b32 v45, 10, v45
    v_lshl_add_u32 v45, v58, 4, v45
    v_lshl_add_u32 v46, v3, 2, v2
    v_lshlrev_b32 v46, 1, v46
    s_lshl_b32 s60, s40, 7
    s_add_u32 s60, s60, %d
    v_add_u32 v63, s60, v26
    s_lshl_b32 s60, s40, 8
    s_add_u32 s60, s60, %d
    v_add_u32 v61, s60, v26
    v_lshlrev_b32 v60, 6, v0
    """ % (QB, QB, ORED, ORED, MLR, MLR, OUTRED, QRED, QRED, OUTRED))
    if o["dump"]:
        e("s_lshl_b32 s60, s2, 14\nv_add_u32 v60, s60, v60")
    e("""
    s_lshl_b32 s50, s3, 14
    s_add_u32 s50, s50, %d
    s_and_b32 s60, s4, 7
    s_lshl_b32 s60, s60, 11
    s_add_u32 s49, s50, s60
    s_lshr_b32 s60, s4, 3
    s_lshl_b32 s60, s60, 9
    s_add_u32 s49, s49, s60
    s_lshl_b32 s60, s40, 7
    s_add_u32 s49, s49, s60
    s_lshl_b32 s60, s40, 12
    s_add_u32 s50, s50, s60
    s_lshl_b32 s53, s3, 17
    s_add_u32 s53, s53, %d
    s_lshl_b32 s60, s40, 15
    s_add_u32 s51, s53, s60
    s_lshl_b32 s60, s4, 9
    s_add_u32 s51, s51, s60
    s_lshr_b32 s61, s4, 2
    s_lshl_b32 s60, s61, 14
    s_add_u32 s53, s53, s60
    s_lshl_b32 s60, s40, 7
    s_add_u32 s53, s53, s60
    s_add_u32 s66, s53, 4096
    s_add_u32 s67, s53, 8192
    s_add_u32 s68, s53, 12288
    s_lshl_b32 s54, s3, 11
    s_add_u32 s54, s54, %d
    s_lshl_b32 s60, s40, 9
    s_add_u32 s52, s54, s60
    s_and_b32 s60, s4, 7
    s_lshl_b32 s60, s60, 4
    s_add_u32 s52, s52, s60
    s_lshr_b32 s60, s4, 3
    s_lshl_b32 s60, s60, 2
    s_add_u32 s52, s52, s60
    s_lshl_b32 s60, s61, 8
    s_add_u32 s54, s54, s60
    s_lshl_b32 s55, s5, 2
    s_and_b32 s60, s4, 3
    s_add_u32 s55, s55, s60
    s_lshl_b32 s55, s55, 5
    s_lshl_b32 s60, s6, 3
    s_add_u32 s55, s55, s60
    s_add_u32 s55, s55, s61
    s_lshl_b32 s55, s55, 10
    s_lshl_b32 s60, s40, 8
    s_add_u32 s55, s55, s60
    s_add_u32 s55, s55, %d
    s_lshl_b32 s56, s3, 15
    s_lshl_b32 s60, s4, 5
    s_add_u32 s56, s56, s60
    s_add_u32 s56, s56, %d
    s_lshl_b32 s57, s3, 9
    s_lshl_b32 s60, s4, 4
    s_add_u32 s57, s57, s60
    s_mov_b32 s42, %d
    s_mov_b32 s59, %d
    s_mov_b32 s62, 0x05040100
    s_mov_b32 s63, 0x07060302
    s_mov_b32 s64, 0x00ff00ff
    s_mov_b32 s65, 0x00ff00ff
    """ % (E1, E2O, ML, E3, E3, TAGMASK, o["retry"]))
    e("s_waitcnt lgkmcnt(0)")
    e("""
    s_add_u32 s43, s43, 1
    s_and_b32 s41, s43, s42
    v_mov_b32 v32, s41
    """)
    p.wait_vm(xop)
    e("v_lshl_or_b32 v4, v4, 16, v4")

    def build_a(dst, src, t):
        for d in range(4):
            e("v_and_b32_dpp v%d, v%d, v%d row_newbcast:%d row_mask:0xf bank_mask:0xf" % (dst + d, src, MASK + d, t))

    for t in range(16):
        build_a(AB[t & 1], 4, t)
        arrive(t)
        e("v_mfma_f32_16x16x32_bf16 %s, %s, %s, %s" % (
            vr(QACC), vr(AB[t & 1]), vr(DATA + 4 * t), "0" if t == 0 else vr(QACC)))
        issue(1)
    stamp()
    e("s_mov_b32 exec_hi, 0")
    e("ds_write_b128 v62, %s" % vr(QACC))
    e("s_mov_b64 exec, 0xff")
    e("s_waitcnt lgkmcnt(0)")
    e("s_barrier")
    for w2 in range(4):
        e("ds_read_b128 %s, v63 offset:%d" % (vr(G1R + 4 * w2), 512 * w2))
    e("s_waitcnt lgkmcnt(0)")
    for r in (0, 2):
        e("v_pk_add_f32 %s, %s, %s" % (vr(G1R + r, 2), vr(G1R + r, 2), vr(G1R + 4 + r, 2)))
        e("v_pk_add_f32 %s, %s, %s" % (vr(G1R + 8 + r, 2), vr(G1R + 8 + r, 2), vr(G1R + 12 + r, 2)))
    for r in (0, 2):
        e("v_pk_add_f32 %s, %s, %s" % (vr(G1R + r, 2), vr(G1R + r, 2), vr(G1R + 8 + r, 2)))
    for r in range(4):
        e("v_bfi_b32 v%d, s42, v32, v%d" % (G1R + r, G1R + r))
    p.vm("buffer_store_dwordx4 %s, v26, s[36:39], s49 offen %s" % (vr(G1R), st))
    e("s_mov_b64 exec, -1")
    stamp()

    def k_read():
        for T in range(2):
            for s in range(4):
                e("ds_read_b128 %s, v%d offset:%d" % (vr(KOP + 16 * T + 4 * s), 28 + s, 16384 * T))
    actions[23] = k_read

    def v_perm(d):
        def f():
            for ee in range(8):
                e("v_perm_b32 v%d, v%d, v%d, s%d" % (
                    VT + 4 * ee + d, VRAW + 4 * (2 * d + 1) + (ee >> 1), VRAW + 4 * (2 * d) + (ee >> 1), 62 + (ee & 1)))
        return f
    for d in range(4):
        actions[24 + 2 * d + 1] = v_perm(d)

    def checklist(regs, tmp):
        regs = list(regs)
        e("v_or3_b32 v%d, v%d, v%d, v%d" % (tmp, regs[0], regs[1], regs[2]))
        regs = regs[3:]
        while len(regs) >= 2:
            e("v_or3_b32 v%d, v%d, v%d, v%d" % (tmp, tmp, regs[0], regs[1]))
            regs = regs[2:]
        if regs:
            e("v_or_b32 v%d, v%d, v%d" % (tmp, tmp, regs[0]))
        e("v_and_b32 v%d, s42, v%d" % (tmp, tmp))
        e("v_cmp_ne_u32 vcc, 0, v%d" % tmp)

    retries = []

    def gather1():
        s = None
        for s4 in range(4):
            s = p.vm("buffer_load_dwordx4 %s, v33, s[36:39], s50 offen offset:%d %s" % (vr(G1R + 4 * s4), 512 * s4, ld))
        return s

    pos1 = 24 + o["G1"]
    pace(pos1)
    g1 = gather1()
    stamp()
    pace(len(seq) + o["B1"])
    arrive(23)
    p.wait_vm(g1)
    e("L_chk1:")
    stamp_slot = stamp_n[0]
    stamp()
    for r in range(16):
        e("v_xor_b32 v%d, s41, v%d" % (G1R + r, G1R + r))
    for r in (0, 2):
        e("v_pk_add_f32 %s, %s, %s" % (vr(50 + r, 2), vr(G1R + r, 2), vr(G1R + 4 + r, 2)))
        e("v_pk_add_f32 %s, %s, %s" % (vr(54 + r, 2), vr(G1R + 8 + r, 2), vr(G1R + 12 + r, 2)))
    for r in (0, 2):
        e("v_pk_add_f32 %s, %s, %s" % (vr(50 + r, 2), vr(50 + r, 2), vr(54 + r, 2)))
    e("v_cvt_pk_bf16_f32 v50, v50, v51")
    e("v_cvt_pk_bf16_f32 v51, v52, v53")
    e("ds_write_b64 v34, v[50:51]")
    checklist(range(G1R, G1R + 16), 54)
    e("s_cbranch_vccnz L_retry1")
    retries.append(("L_retry1", "L_chk1", gather1))
    e("s_waitcnt lgkmcnt(0)")
    e("s_barrier")
    for s4 in range(4):
        e("ds_read_b128 %s, v35 offset:%d" % (vr(QOP + 4 * s4), 64 * s4))
    spr = list(o["spr"])
    issue(spr[0])
    for r in range(4):
        e("v_mov_b32 v%d, 0x3f803f80" % (56 + r))
    for r in range(8):
        e("v_mov_b32 v%d, 0" % (G1R + 8 + r))
    e("s_waitcnt lgkmcnt(0)")
    dump(QOP, 16, 0)
    S = G1R
    for s4 in range(4):
        for T in range(2):
            e("v_mfma_f32_16x16x32_bf16 %s, %s, %s, %s" % (
                vr(S + 4 * T), vr(KOP + 16 * T + 4 * s4), vr(QOP + 4 * s4), "0" if s4 == 0 else vr(S + 4 * T)))
    issue(spr[1])
    C = SCALE * LOG2E
    if o["mimic"]:
        e("s_mov_b32 s60, 0x%x" % f32bits(SCALE))
        for rnd in range(2):
            for d in range(4):
                e("v_cvt_pk_bf16_f32 v%d, v%d, v%d" % (50 + d, S + 2 * d, S + 2 * d + 1))
            for d in range(4):
                e("v_lshlrev_b32 v%d, 16, v%d" % (S + 2 * d, 50 + d))
                e("v_and_b32 v%d, 0xffff0000, v%d" % (S + 2 * d + 1, 50 + d))
            if rnd == 0:
                for r in range(8):
                    e("v_mul_f32 v%d, s60, v%d" % (S + r, S + r))
        C = LOG2E
    dump(S, 8, 1)
    e("s_mov_b32 s60, 0x%x" % f32bits(C))
    e("v_max3_f32 v50, v%d, v%d, v%d" % (S, S + 1, S + 2))
    e("v_max3_f32 v51, v%d, v%d, v%d" % (S + 3, S + 4, S + 5))
    e("v_max3_f32 v50, v50, v%d, v%d" % (S + 6, S + 7))
    e("v_max_f32 v50, v50, v51")
    e("v_mov_b32 v51, v50")
    e("v_permlane16_swap_b32 v50, v51")
    e("v_max_f32 v50, v50, v51")
    e("v_mov_b32 v51, v50")
    e("v_permlane32_swap_b32 v50, v51")
    e("v_max_f32 v50, v50, v51")
    e("v_mul_f32 v50, s60, v50")
    for r in range(8):
        e("v_fma_f32 v%d, v%d, s60, -v50" % (S + r, S + r))
    for r in range(8):
        e("v_exp_f32 v%d, v%d" % (S + r, S + r))
    PLO, PHI = S + 8, S + 12
    e("s_mov_b64 exec, s[64:65]")
    for d in range(4):
        e("v_cvt_pk_bf16_f32 v%d, v%d, v%d" % (PLO + d, S + 2 * d, S + 2 * d + 1))
    e("s_not_b64 exec, s[64:65]")
    for d in range(4):
        e("v_cvt_pk_bf16_f32 v%d, v%d, v%d" % (PHI + d, S + 2 * d, S + 2 * d + 1))
    e("s_mov_b64 exec, -1")
    stamp()
    issue(spr[2])
    arrive(31)
    OA = VRAW
    LA = VRAW + 16
    for ep in range(4):
        e("v_mfma_f32_16x16x32_bf16 %s, %s, %s, 0" % (vr(OA + 4 * ep), vr(VT + 4 * ep), vr(PLO)))
    e("v_mfma_f32_16x16x32_bf16 %s, %s, %s, 0" % (vr(LA), vr(56), vr(PLO)))
    e("v_mfma_f32_16x16x32_bf16 %s, %s, %s, %s" % (vr(LA), vr(56), vr(PHI), vr(LA)))
    for ep in range(4):
        e("v_mfma_f32_16x16x32_bf16 %s, %s, %s, %s" % (vr(OA + 4 * ep), vr(VT + 4 * (ep + 4)), vr(PHI), vr(OA + 4 * ep)))
    issue(spr[3])
    e("s_mov_b64 exec, 0xff")
    e("ds_write2_b32 v38, v50, v%d offset0:0 offset1:1" % LA)
    e("s_mov_b64 exec, -1")
    for ep in range(4):
        e("ds_write_b128 v36, %s offset:%d" % (vr(OA + 4 * ep), 16 * ep))
    dump(OA, 16, 2)
    e("s_waitcnt lgkmcnt(0)")
    e("s_barrier")
    R = VT
    e("ds_read_b128 %s, v39" % vr(R + 16))
    e("ds_read_b128 %s, v39 offset:16" % vr(R + 20))
    for w2 in range(4):
        e("ds_read_b128 %s, v37 offset:%d" % (vr(R + 4 * w2), 4224 * w2))
    issue(spr[4])
    e("s_waitcnt lgkmcnt(4)" if not o["stamps"] else "s_waitcnt lgkmcnt(0)")
    e("v_max3_f32 v50, v%d, v%d, v%d" % (R + 16, R + 18, R + 20))
    e("v_max_f32 v50, v50, v%d" % (R + 22))
    for w2 in range(4):
        e("v_sub_f32 v%d, v%d, v50" % (52 + w2, R + 16 + 2 * w2))
    for w2 in range(4):
        e("v_exp_f32 v%d, v%d" % (52 + w2, 52 + w2))
    e("v_mul_f32 v51, v52, v%d" % (R + 17))
    for w2 in range(1, 4):
        e("v_fmac_f32 v51, v%d, v%d" % (52 + w2, R + 17 + 2 * w2))
    e("v_and_b32 v56, 1, v1")
    e("v_cmp_eq_u32 vcc, 1, v56")
    e("s_waitcnt lgkmcnt(0)")
    for r in range(4):
        e("v_mul_f32 v%d, v52, v%d" % (R + r, R + r))
    for w2 in range(1, 4):
        for r in range(4):
            e("v_fmac_f32 v%d, v%d, v%d" % (R + r, 52 + w2, R + 4 * w2 + r))
    e("v_cndmask_b32 v50, v50, v51, vcc")
    for r in range(4):
        e("v_bfi_b32 v%d, s42, v32, v%d" % (R + r, R + r))
    e("v_bfi_b32 v50, s42, v32, v50")
    p.vm("buffer_store_dwordx4 %s, v40, s[36:39], s51 offen %s" % (vr(R), st))
    e("s_mov_b32 exec_lo, 3\ns_mov_b32 exec_hi, 3")
    p.vm("buffer_store_dword v50, v41, s[36:39], s52 offen %s" % st)
    e("s_mov_b64 exec, -1")
    stamp()
    issue(spr[5])

    G2R = KOP

    def gather2():
        p.vm("buffer_load_dwordx4 %s, v43, s[36:39], s54 offen %s" % (vr(G2R + 16), ld))
        p.vm("buffer_load_dwordx4 %s, v43, s[36:39], s54 offen offset:128 %s" % (vr(G2R + 20), ld))
        s = None
        for u, sr in enumerate((53, 66, 67, 68)):
            s = p.vm("buffer_load_dwordx4 %s, v42, s[36:39], s%d offen %s" % (vr(G2R + 4 * u), sr, ld))
        return s

    pace(32 + o["G2"])
    g2 = gather2()
    stamp()
    pace(len(seq) + o["B2"])
    p.wait_vm(g2)
    e("L_chk2:")
    stamp()
    for r in range(16, 24):
        e("v_xor_b32 v%d, s41, v%d" % (G2R + r, G2R + r))
    M0 = G2R + 16
    e("v_max3_f32 v50, v%d, v%d, v%d" % (M0, M0 + 1, M0 + 2))
    e("v_max_f32 v50, v50, v%d" % (M0 + 3))
    for r in range(0, 2):
        e("v_xor_b32 v%d, s41, v%d" % (G2R + r, G2R + r))
    e("v_max_f32_dpp v50, v50, v50 row_ror:8 row_mask:0xf bank_mask:0xf")
    e("v_xor_b32 v%d, s41, v%d" % (G2R + 2, G2R + 2))
    e("v_mov_b32 v51, v50")
    for r in range(3, 5):
        e("v_xor_b32 v%d, s41, v%d" % (G2R + r, G2R + r))
    e("v_permlane16_swap_b32 v50, v51")
    e("v_max_f32 v50, v50, v51")
    e("v_mov_b32 v51, v50")
    for r in range(5, 7):
        e("v_xor_b32 v%d, s41, v%d" % (G2R + r, G2R + r))
    e("v_permlane32_swap_b32 v50, v51")
    e("v_max_f32 v50, v50, v51")
    for u in range(4):
        e("v_sub_f32 v%d, v%d, v50" % (52 + u, M0 + u))
    for u in range(4):
        e("v_exp_f32 v%d, v%d" % (52 + u, 52 + u))
    for r in range(7, 16):
        e("v_xor_b32 v%d, s41, v%d" % (G2R + r, G2R + r))
    e("v_mul_f32 v51, v52, v%d" % (M0 + 4))
    for u in range(1, 4):
        e("v_fmac_f32 v51, v%d, v%d" % (52 + u, M0 + 4 + u))
    A4 = 56
    for r in range(4):
        e("v_mul_f32 v%d, v52, v%d" % (A4 + r, G2R + r))
    e("v_add_f32_dpp v51, v51, v51 row_ror:8 row_mask:0xf bank_mask:0xf")
    for u in range(1, 4):
        for r in range(4):
            e("v_fmac_f32 v%d, v%d, v%d" % (A4 + r, 52 + u, G2R + 4 * u + r))
    e("v_mov_b32 v50, v51")
    e("v_or3_b32 v52, v%d, v%d, v%d" % (G2R, G2R + 1, G2R + 2))
    e("v_permlane32_swap_b32 v%d, v%d" % (A4, A4 + 2))
    e("v_permlane32_swap_b32 v%d, v%d" % (A4 + 1, A4 + 3))
    e("v_permlane16_swap_b32 v50, v51")
    e("v_add_f32 v%d, v%d, v%d" % (A4, A4, A4 + 2))
    e("v_add_f32 v%d, v%d, v%d" % (A4 + 1, A4 + 1, A4 + 3))
    e("v_add_f32 v51, v50, v51")
    e("v_mov_b32 v50, v51")
    e("v_permlane16_swap_b32 v%d, v%d" % (A4, A4 + 1))
    e("v_or3_b32 v52, v52, v%d, v%d" % (G2R + 3, G2R + 4))
    e("v_permlane32_swap_b32 v50, v51")
    e("v_add_f32 v%d, v%d, v%d" % (A4, A4, A4 + 1))
    e("v_add_f32 v51, v50, v51")
    e("v_rcp_f32 v51, v51")
    e("v_add_f32_dpp v%d, v%d, v%d row_ror:8 row_mask:0xf bank_mask:0xf" % (A4, A4, A4))
    for r in range(5, 23, 2):
        e("v_or3_b32 v52, v52, v%d, v%d" % (G2R + r, G2R + r + 1))
    e("v_or_b32 v52, v52, v%d" % (G2R + 23))
    e("v_mul_f32 v%d, v%d, v51" % (A4, A4))
    e("v_and_b32 v52, s42, v52")
    e("v_cmp_ne_u32 vcc, 0, v52")
    e("v_cvt_pk_bf16_f32 v4, v%d, v%d" % (A4, A4))
    e("s_cbranch_vccnz L_retry2")
    retries.append(("L_retry2", "L_chk2", gather2))
    dump(4, 1, 3)
    stamp()
    issue(16)
    OUT0, OUT1 = G1R, G1R + 4
    for t in range(8):
        build_a(AB[t & 1], 4, t)
        for c2, acc in ((0, OUT0), (1, OUT1)):
            arrive(32 + 2 * t + c2)
            e("v_mfma_f32_16x16x32_bf16 %s, %s, %s, %s" % (
                vr(acc), vr(AB[t & 1]), vr(DATA + 8 * t + 4 * c2), "0" if t == 0 else vr(acc)))
    stamp()
    e("s_mov_b32 exec_hi, 0")
    e("ds_write_b128 v44, %s" % vr(OUT0))
    e("ds_write_b128 v44, %s offset:512" % vr(OUT1))
    e("s_mov_b64 exec, 0xffff")
    e("s_waitcnt lgkmcnt(0)")
    e("s_barrier")
    for w2 in range(4):
        e("ds_read_b128 %s, v61 offset:%d" % (vr(R + 4 * w2), 1024 * w2))
    e("s_waitcnt lgkmcnt(0)")
    for r in (0, 2):
        e("v_pk_add_f32 %s, %s, %s" % (vr(R + r, 2), vr(R + r, 2), vr(R + 4 + r, 2)))
        e("v_pk_add_f32 %s, %s, %s" % (vr(R + 8 + r, 2), vr(R + 8 + r, 2), vr(R + 12 + r, 2)))
    for r in (0, 2):
        e("v_pk_add_f32 %s, %s, %s" % (vr(R + r, 2), vr(R + r, 2), vr(R + 8 + r, 2)))
    for r in range(4):
        e("v_bfi_b32 v%d, s42, v32, v%d" % (R + r, R + r))
    p.vm("buffer_store_dwordx4 %s, v26, s[36:39], s55 offen sc1" % vr(R))
    e("s_mov_b64 exec, -1")
    stamp()
    e("s_cmp_lg_u32 s40, 0")
    e("s_cbranch_scc1 L_fin")

    def gather3():
        return p.vm("buffer_load_dwordx4 %s, v45, s[36:39], s56 offen sc1" % vr(A4))
    e("L_retry3:")
    e("s_sub_u32 s59, s59, 1")
    e("s_cbranch_scc1 L_end")
    g3 = gather3()
    p.wait_vm(g3)
    for r in range(4):
        e("v_xor_b32 v%d, s41, v%d" % (A4 + r, A4 + r))
    checklist(range(A4, A4 + 4), 52)
    e("s_cbranch_vccnz L_retry3")
    e("v_permlane32_swap_b32 v%d, v%d" % (A4, A4 + 2))
    e("v_permlane32_swap_b32 v%d, v%d" % (A4 + 1, A4 + 3))
    e("v_add_f32 v%d, v%d, v%d" % (A4, A4, A4 + 2))
    e("v_add_f32 v%d, v%d, v%d" % (A4 + 1, A4 + 1, A4 + 3))
    e("v_permlane16_swap_b32 v%d, v%d" % (A4, A4 + 1))
    e("v_add_f32 v%d, v%d, v%d" % (A4, A4, A4 + 1))
    for k in (2, 4, 8):
        e("v_add_f32_dpp v%d, v%d, v%d row_ror:%d row_mask:0xf bank_mask:0xf" % (A4, A4, A4, k))
    e("v_cvt_pk_bf16_f32 v%d, v%d, v%d" % (A4, A4, A4))
    e("s_mov_b32 exec_lo, 0x00030003\ns_mov_b32 exec_hi, 0x00030003")
    p.vm("buffer_store_short v%d, v46, s[32:35], s57 offen" % A4)
    e("s_and_b32 s60, s2, 0xfb")
    e("s_cmp_lg_u32 s60, 0")
    e("s_cbranch_scc1 L_fin")
    e("s_mov_b64 exec, 1")
    e("v_mov_b32 v50, s43")
    e("v_mov_b32 v51, 0")
    p.vm("buffer_store_dword v50, v51, s[36:39], s7 offen sc1")
    if o.get("burn"):
        e("s_mov_b32 s60, %d" % (o["burn"] // 64))
        e("L_burn:")
        for i in range(14):
            e("v_add_u32 v50, v50, v50")
        e("s_sub_u32 s60, s60, 1\ns_cmp_lg_u32 s60, 0\ns_cbranch_scc1 L_burn")
    e("L_fin:")
    if o["stamps"]:
        stamp()
        e("s_mov_b64 exec, 1")
        e("s_getreg_b32 s68, hwreg(HW_REG_XCC_ID)")
        e("s_mov_b32 s69, s59")
        e("s_waitcnt lgkmcnt(0)")
        for i in range(32):
            e("v_mov_b32 v%d, s%d" % (64 + i, 68 + i))
        e("s_lshl_b32 s60, s2, 2\ns_add_u32 s60, s60, s40\ns_lshl_b32 s60, s60, 7\ns_add_u32 s60, s60, %d" % TS_OFF)
        e("v_mov_b32 v51, 0")
        for i in range(8):
            p.vm("buffer_store_dwordx4 %s, v51, s[36:39], s60 offen offset:%d" % (vr(64 + 4 * i), 16 * i))
    e("L_end:")
    e("s_endpgm")
    for lab, chk, g in retries:
        e("%s:" % lab)
        e("s_sub_u32 s59, s59, 1")
        e("s_cbranch_scc1 L_end")
        g()
        e("s_waitcnt vmcnt(0)")
        e("s_branch %s" % chk)
    e("L_codeend:")

    head = """; Fused decode attention for both branches: q = x Wq, GQA attention over the last 4096 keys, out = o Wo.
; 256 workgroups, 32 per (branch, kv head); partial results are handed over through d_ws in 16-byte
; granules whose words carry a 10-bit launch tag in their low mantissa bits.
; @launch grid=(256,1,1) block=(256,1,1) lds=%d
.amdgcn_target "amdgcn-amd-amdhsa--gfx950"
.text
.globl %s_kernel
.p2align 8
.type %s_kernel,@function
""" % (LDS_BYTES, KN, KN)
    tail = """.section .rodata,"a"
.p2align 6
.amdhsa_kernel %s_kernel
  .amdhsa_next_free_vgpr 256
  .amdhsa_next_free_sgpr 102
  .amdhsa_accum_offset 256
  .amdhsa_group_segment_fixed_size 0
  .amdhsa_kernarg_size 104
  .amdhsa_user_sgpr_count 2
  .amdhsa_user_sgpr_kernarg_segment_ptr 1
  .amdhsa_system_sgpr_workgroup_id_x 1
  .amdhsa_float_denorm_mode_32 3
.end_amdhsa_kernel
""" % KN
    return head + p.text() + tail


if __name__ == "__main__":
    kw = eval("dict(%s)" % (sys.argv[2] if len(sys.argv) > 2 else ""))
    open(sys.argv[1], "w").write(gen(**kw))
```

```python
import struct
import sys
from asmlib import Prog

KN = "concat_heads__sliding_block_cached__sliding_block_cached__decode"
WS_BYTES = 301993984
TS_OFF = 200 << 20

EPOCH = 0x0
E0 = 0x1000
E1 = 0x4000
ML = 0x30000
E3 = 0x40000
E2O = 0x100000
KB = 0
QRED = 32768
QB = 34816
ORED = 37120
MLR = 54016
OUTRED = 54272
LDS_BYTES = 58368
TAGMASK = 0x3FF

DEFAULTS = dict(Wq=6, Wk=6, Wv=6, W=6, G1=2, B1=6, G2=10, B2=6, stamps=False, mimic=False, nt="nt", prefetch=True,
                spr=(1, 1, 1, 1, 1, 1), dump=False, retry=1 << 20, mapW=False, ocol=False, local="check", kvmap="band",
                poll=2, ack3=True, first=0, ld3="sc1", wbl2=False, early_chunks=2, A1=0, A2=0, late1=False, st3x="", sleep3=0, nochk=0, pretouch=False, tlb=False)


def f32bits(x):
    return struct.unpack("<I", struct.pack("<f", x))[0]


def vr(a, n=4):
    return "v[%d:%d]" % (a, a + n - 1)


def gen(**kw):
    o = dict(DEFAULTS)
    o.update(kw)
    p = Prog()
    e = p.e
    nt, ld = o["nt"], "sc1"
    stamp_n = [0]
    names = []
    ocol, mapW = o["ocol"], o["mapW"]

    def stamp(name, level=0):
        want = o["stamps"]
        if want and (name in want if isinstance(want, (list, tuple)) else level == 0):
            k = 70 + 2 * stamp_n[0]
            assert k <= 98
            e("s_memrealtime s[%d:%d]" % (k, k + 1))
            stamp_n[0] += 1
            names.append(name)

    def dump(reg, n, slot):
        if o["dump"]:
            e("s_mov_b32 s61, %d" % (TS_OFF + (1 << 20) + slot * (4 << 20)))
            for i in range(n):
                p.vm("buffer_store_dword v%d, v60, s[36:39], s61 offen offset:%d" % (reg + i, 4 * i))
            e("s_waitcnt vmcnt(0)")

    lab = [0]

    def handoff_store(text, local):
        if not local or o["local"] is False:
            return p.vm(text + " sc1")
        if o["local"] is True:
            return p.vm(text)
        lab[0] += 1
        e("s_cmp_eq_u32 s69, 0")
        e("s_cbranch_scc1 L_loc%d" % lab[0])
        e(text + " sc1")
        p.nvm -= 1
        e("s_branch L_st%d" % lab[0])
        e("L_loc%d:" % lab[0])
        s = p.vm(text)
        e("L_st%d:" % lab[0])
        return s

    SCALE = 128 ** -0.5
    LOG2E = 1.4426950408889634
    DATA = 64
    KOP = 128
    VRAW = 160
    VT = 192
    G1R = 224
    QOP = 240
    AB = (10, 14)
    QACC = 18
    MASK = 6
    W = o["W"]

    e("%s_kernel:" % KN)
    e("""
    s_cmp_ge_u32 s2, 256
    s_cbranch_scc1 L_end
    s_bfe_u32 s5, s2, 0x10002
    s_mul_i32 s7, s5, 40
    s_add_u32 s8, s0, s7
    s_addc_u32 s9, s1, 0
    s_load_dwordx2 s[24:25], s[8:9], 24
    s_load_dwordx2 s[12:13], s[8:9], 0
    s_load_dwordx2 s[36:37], s[0:1], 96
    v_lshrrev_b32 v50, 6, v0
    v_bfe_u32 v2, v0, 4, 2
    v_readfirstlane_b32 s40, v50
    v_and_b32 v3, 15, v0
    """)
    stamp("entry")
    pf_late = o["prefetch"] == "late"
    if o["prefetch"]:
        e("""
        s_getpc_b64 s[10:11]
        L_pc:
        v_lshlrev_b32 v47, 6, v0
        v_min_u32 v47, (L_codeend - L_pc - 4), v47
        v_mov_b32 v49, s11
        v_add_co_u32 v48, vcc, s10, v47
        v_lshlrev_b32 v5, 4, v3
        v_lshlrev_b32 v4, 7, v3
        v_addc_co_u32 v49, vcc, 0, v49, vcc
        """)
        if not pf_late:
            p.vm("global_load_dword v47, v[48:49], off")
    else:
        e("v_lshlrev_b32 v5, 4, v3\nv_lshlrev_b32 v4, 7, v3")
    e("""
    s_load_dwordx2 s[16:17], s[8:9], 8
    s_load_dwordx2 s[20:21], s[8:9], 16
    s_load_dwordx2 s[28:29], s[8:9], 32
    s_load_dwordx2 s[32:33], s[0:1], 80
    v_lshl_add_u32 v5, v2, 13, v5
    v_lshl_add_u32 v4, v2, 1, v4
    s_mov_b32 s26, 0x800000
    s_mov_b32 s27, 0x20000
    s_mov_b32 s14, 2048
    s_mov_b32 s15, 0x20000
    s_and_b32 s45, s2, 0xc3
    s_lshl_b32 s45, s45, 11
    s_and_b32 s60, s2, 0x38
    s_lshl_b32 s60, s60, 5
    s_add_u32 s45, s45, s60
    s_lshl_b32 s60, s40, 15
    s_add_u32 s45, s45, s60
    s_and_b32 s44, s2, 0xc0
    s_lshr_b32 s44, s44, 1
    s_lshl3_add_u32 s44, s40, s44
    s_lshl_b32 s7, s5, 8
    s_waitcnt lgkmcnt(0)
    """)
    stamp("karg", 1)
    xop = p.vm("buffer_load_ushort v4, v4, s[12:15], s44 offen")

    stream = []
    for t in range(16):
        def f(t=t):
            s = p.vm("buffer_load_dwordx4 %s, v5, s[24:27], s45 offen %s" % (vr(DATA + 4 * t), nt))
            if t < 15:
                e("s_add_u32 s45, s45, %d" % (64 * 8192))
            return s
        stream.append(f)
    kvstep = {"ilv": 4096, "band": 131072, "band4": 131072}[o["kvmap"]]
    for jj in range(8):
        def f(jj=jj):
            e("s_mov_b32 m0, s58")
            if jj < 7:
                e("s_add_u32 s58, s58, 4096")
            s = p.vm("buffer_load_dwordx4 v%d, s[16:19], s46 offen %s lds" % (22 + (jj & 3), nt))
            if jj < 7:
                e("s_add_u32 s46, s46, %d" % kvstep)
            return s
        stream.append(f)
    for jj in range(8):
        def f(jj=jj):
            s = p.vm("buffer_load_dwordx4 %s, v26, s[20:23], s47 offen %s" % (vr(VRAW + 4 * jj), nt))
            if jj < 7:
                e("s_add_u32 s47, s47, %d" % kvstep)
            return s
        stream.append(f)
    if ocol:
        for t in range(16):
            def f(t=t):
                s = p.vm("buffer_load_dwordx4 %s, v27, s[28:31], s48 offen %s" % (vr(DATA + 4 * t), nt))
                if t < 15:
                    e("s_add_u32 s48, s48, 16384")
                return s
            stream.append(f)
    else:
        for t in range(8):
            for c2 in range(2):
                def f(t=t, c2=c2):
                    s = p.vm("buffer_load_dwordx4 %s, v27, s[28:31], s48 offen offset:%d %s" % (
                        vr(DATA + 8 * t + 4 * c2), 256 * c2, nt))
                    if c2 == 1 and t < 7:
                        e("s_add_u32 s48, s48, %d" % (8192 if t % 2 == 0 else 57344))
                    return s
                stream.append(f)
    seq = []
    done = [0]
    actions = {}

    def issue(k=1):
        for _ in range(k):
            if len(seq) < len(stream):
                seq.append(stream[len(seq)]())

    def arrive(idx):
        if idx < done[0]:
            return
        assert idx < len(seq)
        p.wait_vm(seq[idx])
        while done[0] <= idx:
            a = actions.get(done[0])
            if a:
                a()
            done[0] += 1

    def win(idx):
        return o["Wq"] if idx < 16 else o["Wk"] if idx < 24 else o["Wv"] if idx < 32 else W

    def pace(upto):
        upto = min(upto, len(stream))
        while len(seq) < upto:
            if len(seq) - win(len(seq)) >= done[0]:
                arrive(len(seq) - win(len(seq)))
            issue(1)

    def top_up():
        while len(seq) < len(stream) and len(seq) - win(len(seq)) < done[0]:
            issue(1)

    issue(win(0))
    if pf_late:
        p.vm("global_load_dword v47, v[48:49], off")
    e("s_load_dword s43, s[36:37], s7")
    stamp("issued")

    chunks = []
    c = """
    v_and_b32 v50, 1, v3
    v_lshlrev_b32 v50, 4, v50
    v_mov_b32 v51, 0xffff
    v_lshlrev_b32 v50, v50, v51
    v_lshrrev_b32 v51, 1, v3
    """
    for d in range(4):
        c += "v_cmp_eq_u32 vcc, %d, v51\nv_cndmask_b32 v%d, 0, v50, vcc\n" % (d, MASK + d)
    c += """
    v_and_b32 v1, 63, v0
    s_and_b32 s3, s2, 7
    s_lshr_b32 s4, s2, 3
    s_and_b32 s6, s2, 3
    s_mov_b32 s38, %d
    s_mov_b32 s39, 0x20000
    s_mov_b32 s42, %d
    s_mov_b32 s59, %d
    """ % (WS_BYTES, TAGMASK, o["retry"])
    chunks.append(c)
    jsh, wsh = {"ilv": (15, 10), "band": (12, 10), "band4": (10, 15)}[o["kvmap"]]
    chunks.append("""
    s_mov_b32 s18, 0x4000000
    s_mov_b32 s19, 0x20000
    s_mov_b32 s22, 0x4000000
    s_mov_b32 s23, 0x20000
    s_lshl_b32 s46, s6, 24
    s_lshl_b32 s61, s4, %d
    s_add_u32 s46, s46, s61
    s_lshl_b32 s61, s40, %d
    s_add_u32 s46, s46, s61
    s_add_u32 s46, s46, %d
    s_mov_b32 s47, s46
    s_lshl_b32 s58, s40, 10
    v_lshlrev_b32 v26, 4, v1
    v_lshlrev_b32 v50, 2, v2
    v_xor_b32 v50, v50, v3
    v_lshlrev_b32 v50, 4, v50
    v_lshl_add_u32 v22, v2, 8, v50
    v_xor_b32 v23, 16, v22
    v_xor_b32 v24, 32, v22
    v_xor_b32 v25, 48, v22
    v_and_b32 v50, 3, v3
    v_lshlrev_b32 v50, 4, v50
    v_lshrrev_b32 v51, 2, v3
    v_add_u32 v50, v50, v51
    v_lshlrev_b32 v50, 8, v50
    v_add_u32 v50, s58, v50
    v_xor_b32 v51, v2, v3
    v_lshl_add_u32 v28, v51, 4, v50
    v_xor_b32 v29, 64, v28
    v_xor_b32 v30, 0x80, v28
    v_xor_b32 v31, 0xc0, v28
    """ % (jsh, wsh, 61440 * 256))
    assert KB == 0
    c = """
    s_waitcnt lgkmcnt(0)
    s_add_u32 s43, s43, 1
    s_and_b32 s41, s43, s42
    v_mov_b32 v32, s41
    """
    chunks.append(c)
    if o["local"] == "check":
        def e0_store():
            e("""
            s_getreg_b32 s60, hwreg(HW_REG_XCC_ID, 0, 4)
            s_lshl_b32 s60, s60, 10
            s_or_b32 s69, s60, s41
            v_mov_b32 v52, s69
            s_lshl_b32 s60, s3, 2
            s_add_u32 s60, s60, s40
            s_lshl_b32 s60, s60, 7
            s_add_u32 s68, s60, %d
            s_lshl2_add_u32 s60, s4, s68
            v_mov_b32 v53, 0
            v_and_b32 v54, 31, v1
            v_lshlrev_b32 v33, 2, v54
            s_mov_b64 exec, 1
            """ % E0)
            p.vm("buffer_store_dword v52, v53, s[36:39], s60 offen sc1")
            e("s_mov_b64 exec, -1")
        chunks.append(e0_store)
    chunks.append("""
    v_lshl_add_u32 v62, v3, 1, v2
    v_lshlrev_b32 v62, 4, v62
    s_lshl_b32 s60, s40, 10
    s_add_u32 s60, s60, %d
    v_add_u32 v44, s60, v62
    s_lshl_b32 s60, s40, 9
    s_add_u32 s60, s60, %d
    v_add_u32 v62, s60, v62
    s_lshl_b32 s60, s40, 7
    s_add_u32 s60, s60, %d
    v_add_u32 v63, s60, v26
    s_lshl_b32 s60, s40, 8
    s_add_u32 s60, s60, %d
    v_add_u32 v61, s60, v26
    s_lshl_b32 s50, s3, 14
    s_add_u32 s50, s50, %d
    s_and_b32 s60, s4, 7
    s_lshl_b32 s60, s60, 11
    s_add_u32 s49, s50, s60
    s_lshr_b32 s60, s4, 3
    s_lshl_b32 s60, s60, 9
    s_add_u32 s49, s49, s60
    s_lshl_b32 s60, s40, 7
    s_add_u32 s49, s49, s60
    s_lshl_b32 s60, s40, 12
    s_add_u32 s50, s50, s60
    """ % (OUTRED, QRED, QRED, OUTRED, E1))
    chunks.append("""
    v_lshrrev_b32 v52, 5, v1
    v_and_b32 v53, 31, v1
    v_lshlrev_b32 v54, 4, v53
    v_lshl_add_u32 v45, v52, 11, v54
    s_lshl_b32 s60, s40, 1
    v_add_u32 v55, s60, v52
    v_mul_u32_u24 v34, 288, v55
    v_lshl_add_u32 v34, v53, 3, v34
    v_add_u32 v34, %d, v34
    v_and_b32 v56, 7, v3
    v_mul_u32_u24 v35, 288, v56
    v_lshl_add_u32 v35, v2, 4, v35
    v_add_u32 v35, %d, v35
    v_mul_u32_u24 v37, 528, v55
    v_add_u32 v37, v37, v54
    v_add_u32 v37, %d, v37
    v_lshlrev_b32 v39, 5, v55
    v_add_u32 v39, %d, v39
    v_lshl_add_u32 v40, v52, 14, v54
    v_and_b32 v58, 1, v1
    v_lshlrev_b32 v41, 7, v58
    v_lshl_add_u32 v41, v52, 8, v41
    """ % (QB, QB, ORED, MLR))
    chunks.append("""
    v_mul_u32_u24 v36, 528, v56
    v_lshl_add_u32 v36, v2, 5, v36
    v_lshrrev_b32 v57, 3, v3
    v_lshl_add_u32 v36, v57, 4, v36
    s_mul_i32 s60, s40, 4224
    s_add_u32 s60, s60, %d
    v_add_u32 v36, s60, v36
    s_lshl_b32 s60, s40, 3
    s_add_u32 s60, s60, %d
    v_lshlrev_b32 v38, 5, v56
    v_add_u32 v38, s60, v38
    v_lshrrev_b32 v59, 3, v1
    v_and_b32 v50, 7, v1
    v_lshlrev_b32 v42, 4, v50
    v_lshl_add_u32 v42, v59, 9, v42
    v_lshlrev_b32 v43, 4, v59
    v_lshrrev_b32 v19, 1, v1
    v_lshlrev_b32 v19, 10, v19
    v_lshl_add_u32 v19, v58, 4, v19
    v_lshl_add_u32 v46, v3, 2, v2
    v_lshlrev_b32 v46, 1, v46
    """.replace("v19", "v48") % (ORED, MLR))
    c = "s_mov_b32 s30, 0x800000\ns_mov_b32 s31, 0x20000\ns_mov_b32 s34, 4096\ns_mov_b32 s35, 0x20000\n"
    if mapW:
        c += "s_lshl_b32 s48, s4, 18\ns_lshl_b32 s61, s6, 9\ns_add_u32 s48, s48, s61\n"
    else:
        c += """
        s_lshl_b32 s48, s6, 21
        s_lshr_b32 s61, s4, 2
        s_lshl_b32 s61, s61, 18
        s_add_u32 s48, s48, s61
        s_and_b32 s61, s4, 3
        s_lshl_b32 s61, s61, 9
        s_add_u32 s48, s48, s61
        """
    if ocol:
        c += """
        s_lshl_b32 s61, s40, 7
        s_add_u32 s48, s48, s61
        v_lshlrev_b32 v27, 4, v50
        v_lshl_add_u32 v27, v59, 11, v27
        v_and_b32 v51, 1, v3
        v_lshlrev_b32 v51, 6, v51
        v_lshrrev_b32 v52, 1, v56
        v_lshl_add_u32 v51, v52, 2, v51
        v_add_u32 v51, v51, v2
        s_lshl_b32 s60, s40, 4
        v_add_u32 v51, s60, v51
        v_lshlrev_b32 v51, 1, v51
        v_add_u32 v44, %d, v51
        v_lshlrev_b32 v61, 5, v59
        v_add_u32 v61, %d, v61
        v_lshl_add_u32 v49, v3, 1, v2
        v_lshlrev_b32 v49, 4, v49
        """ % (OUTRED, OUTRED)
    else:
        c += """
        s_lshl_b32 s61, s40, 11
        s_add_u32 s48, s48, s61
        v_lshlrev_b32 v27, 4, v3
        v_lshl_add_u32 v27, v2, 14, v27
        """
    chunks.append(c)
    c = """
    s_lshl_b32 s51, s3, 17
    s_lshl_b32 s60, s40, 15
    s_add_u32 s51, s51, s60
    s_lshl_b32 s60, s4, 9
    s_add_u32 s51, s51, s60
    s_add_u32 s51, s51, %d
    s_lshl_b32 s52, s3, 11
    s_lshl_b32 s60, s40, 9
    s_add_u32 s52, s52, s60
    s_and_b32 s60, s4, 7
    s_lshl4_add_u32 s52, s60, s52
    s_lshr_b32 s60, s4, 3
    s_lshl2_add_u32 s52, s60, s52
    s_add_u32 s52, s52, %d
    """ % (E2O, ML)
    if mapW:
        c += "s_lshl_b32 s61, s5, 5\ns_add_u32 s61, s61, s4\n"
    else:
        c += "s_lshr_b32 s61, s4, 2\ns_lshl3_add_u32 s61, s3, s61\n"
    c += """
    s_lshl_b32 s53, s61, 14
    s_lshl_b32 s60, s40, 7
    s_add_u32 s53, s53, s60
    s_add_u32 s53, s53, %d
    s_add_u32 s66, s53, 4096
    s_add_u32 s67, s53, 8192
    s_add_u32 s44, s53, 12288
    s_lshl_b32 s54, s61, 8
    s_add_u32 s54, s54, %d
    """ % (E2O, ML)
    chunks.append(c)
    if mapW:
        c = "s_lshl_b32 s55, s3, 5\ns_add_u32 s55, s55, s4\n"
    else:
        c = """
        s_and_b32 s60, s4, 3
        s_lshl2_add_u32 s55, s5, s60
        s_lshl_b32 s55, s55, 5
        s_lshl3_add_u32 s55, s6, s55
        s_lshr_b32 s60, s4, 2
        s_add_u32 s55, s55, s60
        """
    c += """
    s_lshl_b32 s55, s55, 10
    s_lshl_b32 s60, s40, 8
    s_add_u32 s55, s55, s60
    s_add_u32 s55, s55, %d
    s_lshl_b32 s56, s3, 15
    s_lshl_b32 s60, s4, 5
    s_add_u32 s56, s56, s60
    s_add_u32 s56, s56, %d
    s_lshl_b32 s57, s3, 9
    s_lshl4_add_u32 s57, s4, s57
    s_mov_b32 s62, 0x05040100
    s_mov_b32 s63, 0x07060302
    s_mov_b32 s64, 0x00ff00ff
    s_mov_b32 s65, 0x00ff00ff
    """ % (E3, E3)
    if o["dump"]:
        c += "v_lshlrev_b32 v60, 6, v0\ns_lshl_b32 s60, s2, 14\nv_add_u32 v60, s60, v60\n"
    chunks.append(c)

    if o["tlb"]:
        wo_chunk = [i for i, x in enumerate(chunks) if isinstance(x, str) and "s_mov_b32 s30, 0x800000" in x][0]
        sc = [l for l in chunks[wo_chunk].split("\n") if l.strip().startswith("s_")]
        chunks[wo_chunk] = "\n".join(l for l in chunks[wo_chunk].split("\n") if not (l.strip().startswith("s_") and "s60" not in l))
        sc = [l for l in sc if "s60" not in l]

        def tlb():
            e("\n".join(sc))
            e("v_lshlrev_b32 v52, 21, v1\nv_mov_b32 v53, 0\ns_mov_b64 exec, 0xf")
            p.vm("buffer_load_dword v54, v52, s[24:27], 0 offen nt")
            e("s_mov_b64 exec, 1")
            p.vm("buffer_load_dword v54, v53, s[16:19], s46 offen nt")
            p.vm("buffer_load_dword v54, v53, s[20:23], s47 offen nt")
            p.vm("buffer_load_dword v54, v53, s[28:31], s48 offen nt")
            p.vm("buffer_load_dword v54, v53, s[36:39], 0 offen nt")
            e("s_mov_b64 exec, -1")
        chunks.insert(2, tlb)

    def chunk():
        if chunks:
            x = chunks.pop(0)
            x() if callable(x) else e(x)

    for _ in range(o["early_chunks"]):
        chunk()
    stamp("setup", 1)
    p.wait_vm(xop)
    e("v_lshl_or_b32 v4, v4, 16, v4")

    def build_a(dst, src, t):
        for d in range(4):
            e("v_and_b32_dpp v%d, v%d, v%d row_newbcast:%d row_mask:0xf bank_mask:0xf" % (dst + d, src, MASK + d, t))

    retries = []
    e0 = [None]

    def e0_load():
        return p.vm("buffer_load_dword v52, v33, s[36:39], s68 offen sc1")

    T0 = 15 - o["Wq"]
    for t in range(16):
        build_a(AB[t & 1], 4, t)
        arrive(t)
        if t in (0, 4, 8, 12):
            stamp("wq%d" % t, 1)
        e("v_mfma_f32_16x16x32_bf16 %s, %s, %s, %s" % (
            vr(QACC), vr(AB[t & 1]), vr(DATA + 4 * t), "0" if t == 0 else vr(QACC)))
        top_up()
        if o["pretouch"] and t == 10:
            p.vm("buffer_load_dword v53, v43, s[36:39], s54 offen sc1")
            p.vm("buffer_load_dword v53, v43, s[36:39], s54 offen offset:128 sc1")
        if o["local"] == "check" and t == T0:
            assert not chunks
            e0[0] = e0_load()
        chunk()
    assert not chunks
    stamp("qdone")
    e("s_mov_b32 exec_hi, 0")
    e("ds_write_b128 v62, %s" % vr(QACC))
    e("s_mov_b64 exec, -1")
    if o["local"] == "check":
        p.wait_vm(e0[0])
        e("L_chk0:")
        e("v_xor_b32 v52, s69, v52")
        e("v_and_b32 v53, s42, v52")
        e("v_cmp_ne_u32 vcc, 0, v53")
        e("s_cbranch_vccnz L_retry0")
        retries.append(("L_retry0", "L_chk0", e0_load))
        e("v_cmp_ne_u32 vcc, 0, v52")
        e("s_or_b32 s69, vcc_lo, vcc_hi")
    e("s_mov_b64 exec, 0xff")
    e("s_waitcnt lgkmcnt(0)")
    stamp("preB1", 1)
    e("s_barrier")
    stamp("B1", 1)
    for w2 in range(4):
        e("ds_read_b128 %s, v63 offset:%d" % (vr(G1R + 4 * w2), 512 * w2))
    e("s_waitcnt lgkmcnt(0)")

    def sum4(R):
        for r in (0, 2):
            e("v_pk_add_f32 %s, %s, %s" % (vr(R + r, 2), vr(R + r, 2), vr(R + 4 + r, 2)))
            e("v_pk_add_f32 %s, %s, %s" % (vr(R + 8 + r, 2), vr(R + 8 + r, 2), vr(R + 12 + r, 2)))
        for r in (0, 2):
            e("v_pk_add_f32 %s, %s, %s" % (vr(R + r, 2), vr(R + r, 2), vr(R + 8 + r, 2)))

    def tag4(R):
        for r in range(4):
            e("v_bfi_b32 v%d, s42, v32, v%d" % (R + r, R + r))

    sum4(G1R)
    tag4(G1R)
    handoff_store("buffer_store_dwordx4 %s, v26, s[36:39], s49 offen" % vr(G1R), True)
    e("s_mov_b64 exec, -1")
    stamp("E1pub")

    def k_read():
        for T in range(2):
            for s in range(4):
                e("ds_read_b128 %s, v%d offset:%d" % (vr(KOP + 16 * T + 4 * s), 28 + s, 16384 * T))
    actions[23] = k_read

    def v_perm(d):
        def f():
            for ee in range(8):
                e("v_perm_b32 v%d, v%d, v%d, s%d" % (
                    VT + 4 * ee + d, VRAW + 4 * (2 * d + 1) + (ee >> 1), VRAW + 4 * (2 * d) + (ee >> 1), 62 + (ee & 1)))
        return f
    for d in range(4):
        actions[24 + 2 * d + 1] = v_perm(d)

    def checklist(regs, tmp):
        regs = list(regs)
        e("v_or3_b32 v%d, v%d, v%d, v%d" % (tmp, regs[0], regs[1], regs[2]))
        regs = regs[3:]
        while len(regs) >= 2:
            e("v_or3_b32 v%d, v%d, v%d, v%d" % (tmp, tmp, regs[0], regs[1]))
            regs = regs[2:]
        if regs:
            e("v_or_b32 v%d, v%d, v%d" % (tmp, tmp, regs[0]))
        e("v_and_b32 v%d, s42, v%d" % (tmp, tmp))
        e("v_cmp_ne_u32 vcc, 0, v%d" % tmp)

    def gather1():
        s = None
        if o["nochk"] == 2:
            return p.nvm
        for s4 in range(4):
            s = p.vm("buffer_load_dwordx4 %s, v45, s[36:39], s50 offen offset:%d %s" % (vr(G1R + 4 * s4), 512 * s4, ld))
        return s

    pace(24 + o["G1"])
    if o["late1"]:
        arrive(16 + o["late1"])
    g1 = gather1() if o["nochk"] != 2 else seq[-1]
    stamp("g1iss")
    pace(len(seq) + o["B1"])
    arrive(23)
    p.wait_vm(g1)
    e("L_chk1:")
    stamp("g1arr")
    for r in range(16):
        e("v_xor_b32 v%d, s41, v%d" % (G1R + r, G1R + r))
    for r in (0, 2):
        e("v_pk_add_f32 %s, %s, %s" % (vr(50 + r, 2), vr(G1R + r, 2), vr(G1R + 4 + r, 2)))
        e("v_pk_add_f32 %s, %s, %s" % (vr(54 + r, 2), vr(G1R + 8 + r, 2), vr(G1R + 12 + r, 2)))
    for r in (0, 2):
        e("v_pk_add_f32 %s, %s, %s" % (vr(50 + r, 2), vr(50 + r, 2), vr(54 + r, 2)))
    e("v_cvt_pk_bf16_f32 v50, v50, v51")
    e("v_cvt_pk_bf16_f32 v51, v52, v53")
    e("ds_write_b64 v34, v[50:51]")
    checklist(range(G1R, G1R + 16), 54)
    if not o["nochk"]:
        e("s_cbranch_vccnz L_retry1")
    retries.append(("L_retry1", "L_chk1", gather1))
    issue(o["A1"])
    e("s_waitcnt lgkmcnt(0)")
    stamp("preB2", 1)
    e("s_barrier")
    stamp("B2", 1)
    for s4 in range(4):
        e("ds_read_b128 %s, v35 offset:%d" % (vr(QOP + 4 * s4), 64 * s4))
    spr = list(o["spr"])
    issue(spr[0])
    for r in range(4):
        e("v_mov_b32 v%d, 0x3f803f80" % (56 + r))
    for r in range(8):
        e("v_mov_b32 v%d, 0" % (G1R + 8 + r))
    e("s_waitcnt lgkmcnt(0)")
    stamp("qop", 1)
    dump(QOP, 16, 0)
    S = G1R
    for s4 in range(4):
        for T in range(2):
            e("v_mfma_f32_16x16x32_bf16 %s, %s, %s, %s" % (
                vr(S + 4 * T), vr(KOP + 16 * T + 4 * s4), vr(QOP + 4 * s4), "0" if s4 == 0 else vr(S + 4 * T)))
    issue(spr[1])
    C = SCALE * LOG2E
    if o["mimic"]:
        e("s_mov_b32 s60, 0x%x" % f32bits(SCALE))
        for rnd in range(2):
            for d in range(4):
                e("v_cvt_pk_bf16_f32 v%d, v%d, v%d" % (50 + d, S + 2 * d, S + 2 * d + 1))
            for d in range(4):
                e("v_lshlrev_b32 v%d, 16, v%d" % (S + 2 * d, 50 + d))
                e("v_and_b32 v%d, 0xffff0000, v%d" % (S + 2 * d + 1, 50 + d))
            if rnd == 0:
                for r in range(8):
                    e("v_mul_f32 v%d, s60, v%d" % (S + r, S + r))
        C = LOG2E
    dump(S, 8, 1)
    e("s_mov_b32 s60, 0x%x" % f32bits(C))
    e("v_max3_f32 v50, v%d, v%d, v%d" % (S, S + 1, S + 2))
    e("v_max3_f32 v51, v%d, v%d, v%d" % (S + 4, S + 5, S + 6))
    e("v_max3_f32 v50, v50, v%d, v%d" % (S + 3, S + 7))
    e("v_max_f32 v50, v50, v51")
    e("v_mov_b32 v51, v50")
    e("v_permlane16_swap_b32 v50, v51")
    e("v_max_f32 v50, v50, v51")
    e("v_mov_b32 v51, v50")
    e("v_permlane32_swap_b32 v50, v51")
    e("v_max_f32 v50, v50, v51")
    e("v_mul_f32 v50, s60, v50")
    for r in range(8):
        e("v_fma_f32 v%d, v%d, s60, -v50" % (S + r, S + r))
    for r in range(8):
        e("v_exp_f32 v%d, v%d" % (S + r, S + r))
    PLO, PHI = S + 8, S + 12
    e("s_mov_b64 exec, s[64:65]")
    for d in range(4):
        e("v_cvt_pk_bf16_f32 v%d, v%d, v%d" % (PLO + d, S + 2 * d, S + 2 * d + 1))
    e("s_not_b64 exec, s[64:65]")
    for d in range(4):
        e("v_cvt_pk_bf16_f32 v%d, v%d, v%d" % (PHI + d, S + 2 * d, S + 2 * d + 1))
    e("s_mov_b64 exec, -1")
    OA = VRAW
    LA = KOP
    e("v_mfma_f32_16x16x32_bf16 %s, %s, %s, 0" % (vr(LA), vr(56), vr(PLO)))
    e("v_mfma_f32_16x16x32_bf16 %s, %s, %s, %s" % (vr(LA), vr(56), vr(PHI), vr(LA)))
    stamp("smax")
    issue(spr[2])
    if ocol:
        SEL = QOP
        e("""
        v_and_b32 v52, 7, v3
        v_lshrrev_b32 v53, 1, v52
        v_and_b32 v52, 1, v3
        v_cmp_eq_u32 vcc, 1, v52
        v_mov_b32 v54, 0x0c0c0100
        v_mov_b32 v55, 0x01000c0c
        v_cndmask_b32 v54, v54, v55, vcc
        v_mov_b32 v52, 0x0c0c0302
        v_mov_b32 v55, 0x03020c0c
        v_cndmask_b32 v55, v52, v55, vcc
        v_mov_b32 v52, 0x0c0c0c0c
        """)
        for d in range(4):
            e("v_cmp_eq_u32 vcc, %d, v53" % d)
            e("v_cndmask_b32 v%d, v52, v54, vcc" % (SEL + 2 * d))
            e("v_cndmask_b32 v%d, v52, v55, vcc" % (SEL + 2 * d + 1))
    e("s_mov_b64 exec, 0xff")
    e("ds_write2_b32 v38, v50, v%d offset0:0 offset1:1" % LA)
    e("s_mov_b64 exec, -1")
    pace(32)
    arrive(31)
    stamp("varr", 1)
    for ep in range(4):
        e("v_mfma_f32_16x16x32_bf16 %s, %s, %s, 0" % (vr(OA + 4 * ep), vr(VT + 4 * ep), vr(PLO)))
    for ep in range(4):
        e("v_mfma_f32_16x16x32_bf16 %s, %s, %s, %s" % (vr(OA + 4 * ep), vr(VT + 4 * (ep + 4)), vr(PHI), vr(OA + 4 * ep)))
    issue(spr[3])
    for ep in range(4):
        e("ds_write_b128 v36, %s offset:%d" % (vr(OA + 4 * ep), 128 * ep))
    dump(OA, 16, 2)
    e("s_waitcnt lgkmcnt(0)")
    stamp("preB3", 1)
    e("s_barrier")
    stamp("B3", 1)
    R = VT
    e("ds_read_b128 %s, v39" % vr(R + 16))
    e("ds_read_b128 %s, v39 offset:16" % vr(R + 20))
    for w2 in range(4):
        e("ds_read_b128 %s, v37 offset:%d" % (vr(R + 4 * w2), 4224 * w2))
    issue(spr[4])
    e("v_and_b32 v56, 1, v1")
    e("v_cmp_eq_u32 vcc, 1, v56")
    e("s_waitcnt lgkmcnt(4)" if not o["stamps"] else "s_waitcnt lgkmcnt(0)")
    e("v_max3_f32 v50, v%d, v%d, v%d" % (R + 16, R + 18, R + 20))
    e("v_max_f32 v50, v50, v%d" % (R + 22))
    for w2 in range(4):
        e("v_sub_f32 v%d, v%d, v50" % (52 + w2, R + 16 + 2 * w2))
    for w2 in range(4):
        e("v_exp_f32 v%d, v%d" % (52 + w2, 52 + w2))
    e("s_waitcnt lgkmcnt(0)")
    for r in range(4):
        e("v_mul_f32 v%d, v52, v%d" % (R + r, R + r))
    for w2 in range(1, 4):
        for r in range(4):
            e("v_fmac_f32 v%d, v%d, v%d" % (R + r, 52 + w2, R + 4 * w2 + r))
    tag4(R)
    handoff_store("buffer_store_dwordx4 %s, v40, s[36:39], s51 offen" % vr(R), not mapW)
    e("v_mul_f32 v51, v52, v%d" % (R + 17))
    for w2 in range(1, 4):
        e("v_fmac_f32 v51, v%d, v%d" % (52 + w2, R + 17 + 2 * w2))
    e("v_cndmask_b32 v50, v50, v51, vcc")
    e("v_bfi_b32 v50, s42, v32, v50")
    e("s_mov_b32 exec_lo, 3\ns_mov_b32 exec_hi, 3")
    handoff_store("buffer_store_dword v50, v41, s[36:39], s52 offen", not mapW)
    e("s_mov_b64 exec, -1")
    stamp("E2pub")
    issue(spr[5])

    G2R = KOP

    def gather2():
        if o["nochk"] == 2:
            return p.nvm
        p.vm("buffer_load_dwordx4 %s, v43, s[36:39], s54 offen %s" % (vr(G2R + 16), ld))
        p.vm("buffer_load_dwordx4 %s, v43, s[36:39], s54 offen offset:128 %s" % (vr(G2R + 20), ld))
        s = None
        for u, sr in enumerate((53, 66, 67, 44)):
            s = p.vm("buffer_load_dwordx4 %s, v42, s[36:39], s%d offen %s" % (vr(G2R + 4 * u), sr, ld))
        return s

    pace(32 + o["G2"])
    g2 = gather2() if o["nochk"] != 2 else seq[-1]
    stamp("g2iss")
    pace(len(seq) + o["B2"])
    p.wait_vm(g2)
    e("L_chk2:")
    stamp("g2arr")
    for r in range(16, 24):
        e("v_xor_b32 v%d, s41, v%d" % (G2R + r, G2R + r))
    M0 = G2R + 16
    e("v_max3_f32 v50, v%d, v%d, v%d" % (M0, M0 + 1, M0 + 2))
    e("v_max_f32 v50, v50, v%d" % (M0 + 3))
    for r in range(0, 2):
        e("v_xor_b32 v%d, s41, v%d" % (G2R + r, G2R + r))
    e("v_max_f32_dpp v50, v50, v50 row_ror:8 row_mask:0xf bank_mask:0xf")
    e("v_xor_b32 v%d, s41, v%d" % (G2R + 2, G2R + 2))
    e("v_mov_b32 v51, v50")
    for r in range(3, 5):
        e("v_xor_b32 v%d, s41, v%d" % (G2R + r, G2R + r))
    e("v_permlane16_swap_b32 v50, v51")
    e("v_max_f32 v50, v50, v51")
    e("v_mov_b32 v51, v50")
    for r in range(5, 7):
        e("v_xor_b32 v%d, s41, v%d" % (G2R + r, G2R + r))
    e("v_permlane32_swap_b32 v50, v51")
    e("v_max_f32 v50, v50, v51")
    for u in range(4):
        e("v_sub_f32 v%d, v%d, v50" % (52 + u, M0 + u))
    for u in range(4):
        e("v_exp_f32 v%d, v%d" % (52 + u, 52 + u))
    for r in range(7, 16):
        e("v_xor_b32 v%d, s41, v%d" % (G2R + r, G2R + r))
    e("v_mul_f32 v51, v52, v%d" % (M0 + 4))
    for u in range(1, 4):
        e("v_fmac_f32 v51, v%d, v%d" % (52 + u, M0 + 4 + u))
    A4 = 56
    for r in range(4):
        e("v_mul_f32 v%d, v52, v%d" % (A4 + r, G2R + r))
    e("v_add_f32_dpp v51, v51, v51 row_ror:8 row_mask:0xf bank_mask:0xf")
    for u in range(1, 4):
        for r in range(4):
            e("v_fmac_f32 v%d, v%d, v%d" % (A4 + r, 52 + u, G2R + 4 * u + r))
    e("v_mov_b32 v50, v51")
    e("v_or3_b32 v52, v%d, v%d, v%d" % (G2R, G2R + 1, G2R + 2))
    e("v_permlane32_swap_b32 v%d, v%d" % (A4, A4 + 2))
    e("v_permlane32_swap_b32 v%d, v%d" % (A4 + 1, A4 + 3))
    e("v_permlane16_swap_b32 v50, v51")
    e("v_add_f32 v%d, v%d, v%d" % (A4, A4, A4 + 2))
    e("v_add_f32 v%d, v%d, v%d" % (A4 + 1, A4 + 1, A4 + 3))
    e("v_add_f32 v51, v50, v51")
    e("v_mov_b32 v50, v51")
    e("v_permlane16_swap_b32 v%d, v%d" % (A4, A4 + 1))
    e("v_or3_b32 v52, v52, v%d, v%d" % (G2R + 3, G2R + 4))
    e("v_permlane32_swap_b32 v50, v51")
    e("v_add_f32 v%d, v%d, v%d" % (A4, A4, A4 + 1))
    e("v_add_f32 v51, v50, v51")
    e("v_rcp_f32 v51, v51")
    e("v_add_f32_dpp v%d, v%d, v%d row_ror:8 row_mask:0xf bank_mask:0xf" % (A4, A4, A4))
    for r in range(5, 23, 2):
        e("v_or3_b32 v52, v52, v%d, v%d" % (G2R + r, G2R + r + 1))
    e("v_or_b32 v52, v52, v%d" % (G2R + 23))
    e("v_mul_f32 v%d, v%d, v51" % (A4, A4))
    e("v_and_b32 v52, s42, v52")
    e("v_cmp_ne_u32 vcc, 0, v52")
    e("v_cvt_pk_bf16_f32 v4, v%d, v%d" % (A4, A4))
    if not o["nochk"]:
        e("s_cbranch_vccnz L_retry2")
    retries.append(("L_retry2", "L_chk2", gather2))
    issue(o["A2"])
    dump(4, 1, 3)
    stamp("ordy")
    OUT0, OUT1 = G1R, G1R + 4
    if ocol:
        XD = QOP + 8
        e("s_mov_b64 exec, s[64:65]")
        e("ds_write_b16 v44, v4")
        e("s_mov_b64 exec, -1")
        issue(16)
        e("s_waitcnt lgkmcnt(0)")
        e("s_barrier")
        stamp("B4", 1)
        e("ds_read_b128 %s, v61" % vr(XD))
        e("ds_read_b128 %s, v61 offset:16" % vr(XD + 4))
        e("s_waitcnt lgkmcnt(0)")
        for t in range(16):
            for d in range(4):
                e("v_perm_b32 v%d, v%d, v%d, v%d" % (AB[t & 1] + d, XD + (t >> 1), XD + (t >> 1), SEL + 2 * d + (t & 1)))
            arrive(32 + t)
            e("v_mfma_f32_16x16x32_bf16 %s, %s, %s, %s" % (
                vr(OUT0), vr(AB[t & 1]), vr(DATA + 4 * t), "0" if t == 0 else vr(OUT0)))
        stamp("opdone")
        for r in range(4):
            e("v_permlane32_swap_b32 v%d, v%d" % (OUT0 + r, OUT1 + r))
    else:
        issue(16)
        for t in range(8):
            build_a(AB[t & 1], 4, t)
            for c2, acc in ((0, OUT0), (1, OUT1)):
                arrive(32 + 2 * t + c2)
                e("v_mfma_f32_16x16x32_bf16 %s, %s, %s, %s" % (
                    vr(acc), vr(AB[t & 1]), vr(DATA + 8 * t + 4 * c2), "0" if t == 0 else vr(acc)))
        stamp("opdone")
        e("s_mov_b32 exec_hi, 0")
        e("ds_write_b128 v44, %s" % vr(OUT0))
        e("ds_write_b128 v44, %s offset:512" % vr(OUT1))
        e("s_mov_b64 exec, 0xffff")
        e("s_waitcnt lgkmcnt(0)")
        stamp("preB4", 1)
        e("s_barrier")
        stamp("B4", 1)
        for w2 in range(4):
            e("ds_read_b128 %s, v61 offset:%d" % (vr(R + 4 * w2), 1024 * w2))
        e("s_waitcnt lgkmcnt(0)")
        sum4(R)
        tag4(R)
        handoff_store("buffer_store_dwordx4 %s, v26, s[36:39], s55 offen %s" % (vr(R), o["st3x"]), mapW)
    if ocol:
        for r in range(4):
            e("v_add_f32_dpp v%d, v%d, v%d row_ror:8 row_mask:0xf bank_mask:0xf" % (OUT0 + r, OUT1 + r, OUT0 + r))
        tag4(OUT0)
        e("s_mov_b32 exec_lo, 0x00ff00ff\ns_mov_b32 exec_hi, 0")
        handoff_store("buffer_store_dwordx4 %s, v49, s[36:39], s55 offen %s" % (vr(OUT0), o["st3x"]), mapW)
    e("s_mov_b64 exec, -1")
    stamp("E3pub")
    e("s_cmp_lg_u32 s40, 0")
    e("s_cbranch_scc1 L_fin")
    if o["nochk"]:
        e("s_branch L_fin")

    if o["wbl2"]:
        p.vm("buffer_wbl2 sc1")
    if o["ack3"]:
        e("s_waitcnt vmcnt(0)")
    stamp("ack3", 1)
    D = o["poll"]
    QR = [R + 4 * i for i in range(D)]

    def poll(i):
        p.vm("buffer_load_dwordx4 %s, v48, s[36:39], s56 offen %s" % (vr(QR[i]), o["ld3"]))
    for i in range(D - 1):
        poll(i)
    e("L_retry3:")
    e("s_sub_u32 s59, s59, 1")
    e("s_cbranch_scc1 L_end")
    if o["sleep3"]:
        e("s_sleep %d" % o["sleep3"])
    for i in range(D):
        poll((i + D - 1) % D)
        e("s_waitcnt vmcnt(%d)" % (D - 1))
        for r in range(4):
            e("v_xor_b32 v%d, s41, v%d" % (A4 + r, QR[i] + r))
        checklist(range(A4, A4 + 4), 52)
        e("s_cbranch_vccz L_got3" if i < D - 1 else "s_cbranch_vccnz L_retry3")
    e("L_got3:")
    stamp("got3", 1)
    e("v_permlane32_swap_b32 v%d, v%d" % (A4, A4 + 2))
    e("v_permlane32_swap_b32 v%d, v%d" % (A4 + 1, A4 + 3))
    e("v_add_f32 v%d, v%d, v%d" % (A4, A4, A4 + 2))
    e("v_add_f32 v%d, v%d, v%d" % (A4 + 1, A4 + 1, A4 + 3))
    e("v_permlane16_swap_b32 v%d, v%d" % (A4, A4 + 1))
    e("v_add_f32 v%d, v%d, v%d" % (A4, A4, A4 + 1))
    for k in (2, 4, 8):
        e("v_add_f32_dpp v%d, v%d, v%d row_ror:%d row_mask:0xf bank_mask:0xf" % (A4, A4, A4, k))
    e("v_cvt_pk_bf16_f32 v%d, v%d, v%d" % (A4, A4, A4))
    e("s_mov_b32 exec_lo, 0x00030003\ns_mov_b32 exec_hi, 0x00030003")
    p.vm("buffer_store_short v%d, v46, s[32:35], s57 offen" % A4)
    e("s_and_b32 s60, s2, 0xfb")
    e("s_cmp_lg_u32 s60, 0")
    e("s_cbranch_scc1 L_fin")
    e("s_mov_b64 exec, 1")
    e("v_mov_b32 v50, s43")
    e("v_mov_b32 v51, 0")
    p.vm("buffer_store_dword v50, v51, s[36:39], s7 offen sc1")
    e("L_fin:")
    if o.get("probe"):
        a, b, k, wg = o["probe"]
        stamp("fin")
        e("s_cmp_lg_u32 s2, %d\ns_cbranch_scc1 L_end\ns_cmp_lg_u32 s40, 0\ns_cbranch_scc1 L_end" % wg)
        e("s_waitcnt lgkmcnt(0)")
        e("s_sub_u32 s60, s%d, s%d" % (70 + 2 * names.index(b), 70 + 2 * names.index(a)))
        e("s_mul_i32 s60, s60, %d" % k)
        e("L_probe:")
        e("s_memrealtime s[62:63]\ns_waitcnt lgkmcnt(0)")
        e("s_sub_u32 s61, s62, s%d" % (70 + 2 * (stamp_n[0] - 1)))
        e("s_cmp_lt_u32 s61, s60\ns_cbranch_scc1 L_probe")
        e("s_branch L_end")
    elif o["stamps"]:
        stamp("fin")
        e("s_mov_b64 exec, 1")
        e("s_getreg_b32 s68, hwreg(HW_REG_XCC_ID)")
        e("s_mov_b32 s69, s59")
        e("s_waitcnt lgkmcnt(0)")
        for i in range(32):
            e("v_mov_b32 v%d, s%d" % (64 + i, 68 + i))
        e("s_lshl_b32 s60, s2, 2\ns_add_u32 s60, s60, s40\ns_lshl_b32 s60, s60, 7\ns_add_u32 s60, s60, %d" % TS_OFF)
        e("v_mov_b32 v51, 0")
        for i in range(8):
            p.vm("buffer_store_dwordx4 %s, v51, s[36:39], s60 offen offset:%d" % (vr(64 + 4 * i), 16 * i))
    e("L_end:")
    e("s_endpgm")
    for lb, chk, g in retries:
        e("%s:" % lb)
        e("s_sub_u32 s59, s59, 1")
        e("s_cbranch_scc1 L_end")
        g()
        e("s_waitcnt vmcnt(0)")
        e("s_branch %s" % chk)
    e("L_codeend:")

    head = """; Fused decode attention for both branches: q = x Wq, GQA attention over the last 4096 keys, out = o Wo.
; 256 workgroups, 32 per (branch, kv head); partial results are handed over through d_ws in 16-byte
; granules whose words carry a 10-bit launch tag in their low mantissa bits.
; @launch grid=(256,1,1) block=(256,1,1) lds=%d
.amdgcn_target "amdgcn-amd-amdhsa--gfx950"
.text
.globl %s_kernel
.p2align 8
.type %s_kernel,@function
""" % (LDS_BYTES, KN, KN)
    tail = """.section .rodata,"a"
.p2align 6
.amdhsa_kernel %s_kernel
  .amdhsa_next_free_vgpr 256
  .amdhsa_next_free_sgpr 102
  .amdhsa_accum_offset 256
  .amdhsa_group_segment_fixed_size 0
  .amdhsa_kernarg_size 104
  .amdhsa_user_sgpr_count 2
  .amdhsa_user_sgpr_kernarg_segment_ptr 1
  .amdhsa_system_sgpr_workgroup_id_x 1
  .amdhsa_float_denorm_mode_32 3
.end_amdhsa_kernel
""" % KN
    gen.names = names
    return head + p.text() + tail


if __name__ == "__main__":
    kw = eval("dict(%s)" % (sys.argv[2] if len(sys.argv) > 2 else ""))
    open(sys.argv[1], "w").write(gen(**kw))
```

```python
import struct
import sys
from asmlib import Prog

KN = "concat_heads__sliding_block_cached__sliding_block_cached__decode"
WS_BYTES = 301993984
TS_OFF = 200 << 20

EPOCH = 0x0
E0 = 0x1000
E1 = 0x8000
ML = 0x30000
E3 = 0x40000
E2O = 0x80000
QRED = 32768
QB = 34816
ORED = 37120
MLR = 54016
OUTRED = 54272
MODE = 58368
LDS_BYTES = 58400
TAGMASK = 0x3FF

DEFAULTS = dict(Wq=6, Wk=6, Wv=6, W=6, G1=4, B1=4, G2=12, B2=4, spr=(1, 1, 1, 1, 1, 1), early_chunks=2,
                e1bf=False, prew3=True, mimic=False, stamps=False, dump=False, probe=None, retry=1 << 20,
                force_global=False, e0s=False, e0ack=True)


def f32bits(x):
    return struct.unpack("<I", struct.pack("<f", x))[0]


def vr(a, n=4):
    return "v[%d:%d]" % (a, a + n - 1)


def gen(**kw):
    o = dict(DEFAULTS)
    for k in kw:
        assert k in o, k
    o.update(kw)
    p = Prog()
    e = p.e
    e1bf = o["e1bf"]
    stamp_n = [0]
    names = []
    cold = []

    def note(text):
        for line in text.strip().split("\n"):
            e("; " + line.strip())

    def stamp(name, level=0):
        want = o["stamps"]
        if want and (name in want if isinstance(want, (list, tuple)) else level == 0):
            k = 70 + 2 * stamp_n[0]
            assert k <= 98
            e("s_memrealtime s[%d:%d]" % (k, k + 1))
            stamp_n[0] += 1
            names.append(name)

    def dump(reg, n, slot):
        if o["dump"]:
            e("s_mov_b32 s61, %d" % (TS_OFF + (1 << 20) + slot * (4 << 20)))
            for i in range(n):
                p.vm("buffer_store_dword v%d, v60, s[36:39], s61 offen offset:%d" % (reg + i, 4 * i))
            e("s_waitcnt vmcnt(0)")

    def handoff_stores(texts):
        k = len(cold) + 1
        e("s_cmp_eq_u32 s69, 0")
        e("s_cbranch_scc0 L_glob%d" % k)
        for t in texts:
            e(t)
        e("L_st%d:" % k)
        cold.append((k, texts))

    def retry_code(lb, chk, g):
        n0 = p.nvm
        e("%s:" % lb)
        e("s_sub_u32 s59, s59, 1")
        e("s_cbranch_scc1 L_end")
        g()
        e("s_waitcnt vmcnt(0)")
        e("s_branch %s" % chk)
        p.nvm = n0

    SCALE = 128 ** -0.5
    LOG2E = 1.4426950408889634
    DATA = 64
    KOP = 128
    VRAW = 160
    VT = 192
    G1R = 224
    QOP = 240
    AB = (10, 14)
    QACC = 18
    MASK = 6
    W = o["W"]

    e("%s_kernel:" % KN)
    note("""s2 = 8*j + grp, grp = 4*branch + kvh.  Waves 0-3 stream and compute, wave 4 is the helper.
    q tile: head j&7, rows 64*t + 16*(j>>3) + 4*wave + g (g = lane>>4, t = load index).""")
    e("""
    s_and_b32 s7, s2, 4
    s_mul_i32 s7, s7, 10
    s_add_u32 s8, s0, s7
    s_addc_u32 s9, s1, 0
    s_load_dwordx2 s[24:25], s[8:9], 24
    s_load_dwordx2 s[12:13], s[8:9], 0
    s_load_dwordx2 s[36:37], s[0:1], 96
    v_lshrrev_b32 v50, 6, v0
    v_bfe_u32 v2, v0, 4, 2
    v_readfirstlane_b32 s40, v50
    v_and_b32 v3, 15, v0
    s_cmpk_ge_u32 s2, 256
    s_cbranch_scc1 L_end
    v_lshlrev_b32 v5, 4, v3
    v_lshlrev_b32 v4, 7, v3
    v_lshl_add_u32 v5, v2, 13, v5
    v_lshl_add_u32 v4, v2, 1, v4
    s_bfe_u32 s5, s2, 0x10002
    s_cmp_eq_u32 s40, 4
    s_cbranch_scc1 L_helper
    s_mov_b32 s27, 0x20000
    s_mov_b32 s26, 0x800000
    s_movk_i32 s14, 2048
    s_mov_b32 s15, s27
    s_lshr_b32 s44, s2, 6
    s_lshl2_add_u32 s44, s44, s40
    s_and_b32 s45, s2, 3
    s_lshl4_add_u32 s45, s44, s45
    s_lshl_b32 s45, s45, 6
    s_and_b32 s60, s2, 56
    s_add_u32 s45, s45, s60
    s_lshl_b32 s45, s45, 5
    s_lshl_b32 s44, s44, 3
    s_waitcnt lgkmcnt(0)
    """)
    stamp("entry")
    xop = p.vm("buffer_load_ushort v4, v4, s[12:15], s44 offen")

    stream = []
    for t in range(16):
        def f(t=t):
            s = p.vm("buffer_load_dwordx4 %s, v5, s[24:27], s45 offen nt" % vr(DATA + 4 * t))
            if t < 15:
                e("s_add_u32 s45, s45, %d" % (64 * 8192))
            return s
        stream.append(f)
    for jj in range(8):
        def f(jj=jj):
            e("s_mov_b32 m0, s58")
            if jj < 7:
                e("s_add_u32 s58, s58, 4096")
            s = p.vm("buffer_load_dwordx4 v%d, s[16:19], s46 offen nt lds" % (22 + (jj & 3)))
            if jj < 7:
                e("s_add_u32 s46, s46, 131072")
            return s
        stream.append(f)
    for jj in range(8):
        def f(jj=jj):
            s = p.vm("buffer_load_dwordx4 %s, v26, s[20:23], s47 offen nt" % vr(VRAW + 4 * jj))
            if jj < 7:
                e("s_add_u32 s47, s47, 131072")
            return s
        stream.append(f)
    for t in range(8):
        for c2 in range(2):
            def f(t=t, c2=c2):
                s = p.vm("buffer_load_dwordx4 %s, v27, s[28:31], s48 offen offset:%d nt" % (
                    vr(DATA + 8 * t + 4 * c2), 256 * c2))
                if c2 == 1 and t < 7:
                    e("s_add_u32 s48, s48, %d" % (8192 if t % 2 == 0 else 57344))
                return s
            stream.append(f)
    seq = []
    done = [0]
    actions = {}

    def issue(k=1):
        for _ in range(k):
            if len(seq) < len(stream):
                seq.append(stream[len(seq)]())

    def arrive(idx):
        if idx < done[0]:
            return
        assert idx < len(seq)
        p.wait_vm(seq[idx])
        while done[0] <= idx:
            a = actions.get(done[0])
            if a:
                a()
            done[0] += 1

    def win(idx):
        return o["Wq"] if idx < 16 else o["Wk"] if idx < 24 else o["Wv"] if idx < 32 else W

    def pace(upto):
        upto = min(upto, len(stream))
        while len(seq) < upto:
            if len(seq) - win(len(seq)) >= done[0]:
                arrive(len(seq) - win(len(seq)))
            issue(1)

    def top_up():
        while len(seq) < len(stream) and len(seq) - win(len(seq)) < done[0]:
            issue(1)

    issue(win(0))
    e("""
    s_lshl_b32 s7, s5, 8
    s_load_dword s43, s[36:37], s7
    s_load_dwordx2 s[16:17], s[8:9], 8
    s_load_dwordx2 s[20:21], s[8:9], 16
    s_load_dwordx2 s[28:29], s[8:9], 32
    s_load_dwordx2 s[32:33], s[0:1], 80
    """)
    stamp("issued")

    chunks = []
    c = """
    v_and_b32 v50, 1, v3
    v_lshlrev_b32 v50, 4, v50
    v_mov_b32 v51, 0xffff
    v_lshlrev_b32 v50, v50, v51
    v_lshrrev_b32 v51, 1, v3
    """
    for d in range(4):
        c += "v_cmp_eq_u32 s[%d:%d], %d, v51\n" % (50 + 2 * d, 51 + 2 * d, d)
    c += """
    v_and_b32 v1, 63, v0
    s_and_b32 s3, s2, 7
    """
    for d in range(4):
        c += "v_cndmask_b32 v%d, 0, v50, s[%d:%d]\n" % (MASK + d, 50 + 2 * d, 51 + 2 * d)
    c += """
    s_lshr_b32 s4, s2, 3
    s_and_b32 s6, s2, 3
    s_mov_b32 s38, %d
    s_mov_b32 s39, 0x20000
    s_movk_i32 s42, %d
    s_mov_b32 s59, %d
    """ % (WS_BYTES, TAGMASK, o["retry"])
    chunks.append(c)
    chunks.append("""
    ; keys of a wave: 61440 + 512*jj + 128*wave + 4*j + g; K rows go to LDS with their 16-byte chunks xor-swizzled
    s_mov_b32 s18, 0x4000000
    s_mov_b32 s19, 0x20000
    s_mov_b32 s22, 0x4000000
    s_mov_b32 s23, 0x20000
    s_lshl_b32 s46, s6, 24
    s_lshl_b32 s61, s4, 10
    s_add_u32 s46, s46, s61
    s_lshl_b32 s61, s40, 15
    s_add_u32 s46, s46, s61
    s_add_u32 s46, s46, %d
    s_mov_b32 s47, s46
    s_lshl_b32 s58, s40, 10
    v_lshlrev_b32 v26, 4, v1
    v_lshlrev_b32 v50, 2, v2
    v_xor_b32 v50, v50, v3
    v_lshlrev_b32 v50, 4, v50
    v_lshl_add_u32 v22, v2, 8, v50
    v_xor_b32 v23, 16, v22
    v_xor_b32 v24, 32, v22
    v_xor_b32 v25, 48, v22
    v_and_b32 v50, 3, v3
    v_lshlrev_b32 v50, 4, v50
    v_lshrrev_b32 v51, 2, v3
    v_add_u32 v50, v50, v51
    v_lshlrev_b32 v50, 8, v50
    v_add_u32 v50, s58, v50
    v_xor_b32 v51, v2, v3
    v_lshl_add_u32 v28, v51, 4, v50
    v_xor_b32 v29, 64, v28
    v_xor_b32 v30, 0x80, v28
    v_xor_b32 v31, 0xc0, v28
    """ % (61440 * 256))
    c = """
    ; LDS addresses of the two cross-wave sums, hand-off slots of the q partials
    v_lshl_add_u32 v62, v3, 1, v2
    v_lshlrev_b32 v62, 4, v62
    s_lshl_b32 s60, s40, 10
    s_add_u32 s60, s60, %d
    v_add_u32 v44, s60, v62
    s_lshl_b32 s60, s40, 9
    s_add_u32 s60, s60, %d
    v_add_u32 v62, s60, v62
    s_lshl_b32 s60, s40, 7
    s_add_u32 s60, s60, %d
    v_add_u32 v63, s60, v26
    s_lshl_b32 s60, s40, 8
    s_add_u32 s60, s60, %d
    v_add_u32 v61, s60, v26
    """ % (OUTRED, QRED, QRED, OUTRED)
    sh = 0 if not e1bf else 1
    c += """
    s_lshl_b32 s50, s3, %d
    s_add_u32 s50, s50, %d
    s_and_b32 s60, s4, 7
    s_lshl_b32 s60, s60, %d
    s_add_u32 s49, s50, s60
    s_lshr_b32 s60, s4, 3
    s_lshl2_add_u32 s60, s60, s40
    s_lshl_b32 s60, s60, %d
    s_add_u32 s49, s49, s60
    s_lshl_b32 s60, s40, %d
    s_add_u32 s50, s50, s60
    """ % (14 - sh, E1, 11 - sh, 7 - sh, 12 - sh)
    if e1bf:
        c += "v_lshlrev_b32 v33, 3, v1\n"
    chunks.append(c)
    c = """
    v_lshrrev_b32 v52, 5, v1
    v_and_b32 v53, 31, v1
    v_lshlrev_b32 v54, 4, v53
    s_lshl_b32 s60, s40, 1
    v_add_u32 v55, s60, v52
    v_and_b32 v56, 7, v3
    """
    if e1bf:
        c += """
        v_lshrrev_b32 v57, 4, v53
        v_add_u32 v58, s60, v57
        v_mul_u32_u24 v34, 288, v58
        v_lshl_add_u32 v34, v3, 4, v34
        v_lshl_add_u32 v34, v52, 3, v34
        v_add_u32 v34, %d, v34
        v_lshlrev_b32 v45, 4, v3
        v_lshl_add_u32 v45, v57, 10, v45
        v_lshl_add_u32 v45, v52, 9, v45
        """ % QB
    else:
        c += """
        v_lshl_add_u32 v45, v52, 11, v54
        v_mul_u32_u24 v34, 288, v55
        v_lshl_add_u32 v34, v53, 3, v34
        v_add_u32 v34, %d, v34
        """ % QB
    c += """
    v_mul_u32_u24 v35, 288, v56
    v_lshl_add_u32 v35, v2, 4, v35
    v_add_u32 v35, %d, v35
    v_mul_u32_u24 v37, 528, v55
    v_add_u32 v37, v37, v54
    v_add_u32 v37, %d, v37
    v_lshlrev_b32 v39, 5, v55
    v_add_u32 v39, %d, v39
    v_lshlrev_b32 v40, 3, v53
    v_lshl_add_u32 v40, v52, 13, v40
    v_lshlrev_b32 v41, 8, v52
    """ % (QB, ORED, MLR)
    chunks.append(c)
    chunks.append("""
    v_mul_u32_u24 v36, 528, v56
    v_lshl_add_u32 v36, v2, 5, v36
    v_lshrrev_b32 v57, 3, v3
    v_lshl_add_u32 v36, v57, 4, v36
    s_mul_i32 s60, s40, 4224
    s_add_u32 s60, s60, %d
    v_add_u32 v36, s60, v36
    s_lshl_b32 s60, s40, 3
    s_add_u32 s60, s60, %d
    v_lshlrev_b32 v38, 5, v56
    v_add_u32 v38, s60, v38
    v_lshrrev_b32 v59, 2, v1
    v_and_b32 v50, 3, v1
    v_lshlrev_b32 v42, 4, v50
    v_lshl_add_u32 v42, v59, 8, v42
    v_lshlrev_b32 v43, 4, v59
    v_and_b32 v58, 1, v1
    v_lshrrev_b32 v48, 1, v1
    v_lshlrev_b32 v48, 10, v48
    v_lshl_add_u32 v48, v58, 4, v48
    v_lshl_add_u32 v46, v3, 2, v2
    v_lshlrev_b32 v46, 1, v46
    """ % (ORED, MLR))
    chunks.append("""
    s_mov_b32 s30, 0x800000
    s_mov_b32 s31, 0x20000
    s_movk_i32 s34, 4096
    s_mov_b32 s35, 0x20000
    s_lshl_b32 s48, s6, 21
    s_lshr_b32 s61, s4, 2
    s_lshl_b32 s61, s61, 18
    s_add_u32 s48, s48, s61
    s_and_b32 s61, s4, 3
    s_lshl_b32 s61, s61, 9
    s_add_u32 s48, s48, s61
    s_lshl_b32 s61, s40, 11
    s_add_u32 s48, s48, s61
    v_lshlrev_b32 v27, 4, v3
    v_lshl_add_u32 v27, v2, 14, v27
    """)
    chunks.append("""
    ; hand-off slots of the o partials and of their (max, sum) pairs
    s_lshl_b32 s51, s3, 16
    s_lshl_b32 s60, s40, 14
    s_add_u32 s51, s51, s60
    s_lshl_b32 s60, s4, 8
    s_add_u32 s51, s51, s60
    s_add_u32 s51, s51, %d
    s_lshl_b32 s52, s3, 11
    s_lshl_b32 s60, s40, 9
    s_add_u32 s52, s52, s60
    s_and_b32 s60, s4, 15
    s_lshl4_add_u32 s52, s60, s52
    s_lshr_b32 s60, s4, 4
    s_lshl3_add_u32 s52, s60, s52
    s_add_u32 s52, s52, %d
    s_lshr_b32 s61, s4, 2
    s_lshl3_add_u32 s61, s3, s61
    s_lshl_b32 s53, s61, 13
    s_lshl_b32 s60, s40, 6
    s_add_u32 s53, s53, s60
    s_add_u32 s53, s53, %d
    s_add_u32 s66, s53, 4096
    s_lshl_b32 s54, s61, 8
    s_add_u32 s54, s54, %d
    """ % (E2O, ML, E2O, ML))
    c = """
    ; hand-off slots of the output partials, output offset
    s_and_b32 s60, s4, 3
    s_lshl2_add_u32 s55, s5, s60
    s_lshl_b32 s55, s55, 5
    s_lshl3_add_u32 s55, s6, s55
    s_lshr_b32 s60, s4, 2
    s_add_u32 s55, s55, s60
    s_lshl2_add_u32 s55, s55, s40
    s_lshl_b32 s55, s55, 8
    s_add_u32 s55, s55, %d
    s_lshl_b32 s56, s3, 15
    s_lshl_b32 s60, s4, 5
    s_add_u32 s56, s56, s60
    s_add_u32 s56, s56, %d
    s_lshl_b32 s57, s3, 9
    s_lshl4_add_u32 s57, s4, s57
    s_mov_b32 s62, 0x05040100
    s_mov_b32 s63, 0x07060302
    s_mov_b32 s64, 0x00ff00ff
    s_mov_b32 s65, 0x00ff00ff
    """ % (E3, E3)
    if o["dump"]:
        c += "v_lshlrev_b32 v60, 6, v0\ns_lshl_b32 s60, s2, 14\nv_add_u32 v60, s60, v60\n"
    chunks.append(c)
    chunks.append("""
    s_waitcnt lgkmcnt(0)
    s_add_u32 s43, s43, 1
    s_and_b32 s41, s43, s42
    v_mov_b32 v32, s41
    v_mov_b32 v47, 0x3f803f80
    """)

    def chunk():
        if chunks:
            e(chunks.pop(0))

    for _ in range(o["early_chunks"]):
        chunk()
    p.wait_vm(xop)
    e("v_lshl_or_b32 v4, v4, 16, v4")

    def build_a(dst, src, t):
        for d in range(4):
            e("v_and_b32_dpp v%d, v%d, v%d row_newbcast:%d row_mask:0xf bank_mask:0xf" % (dst + d, src, MASK + d, t))

    note("""q projection: a tile holds 4 rows x 128 columns; with a one-hot A operand carrying x[row] the MFMA
    gives D[e][n] += sum_g x[row g] * W[row g][8n + e]""")
    for t in range(16):
        build_a(AB[t & 1], 4, t)
        arrive(t)
        if t in (0, 4, 8, 12):
            stamp("wq%d" % t, 1)
        e("v_mfma_f32_16x16x32_bf16 %s, %s, %s, %s" % (
            vr(QACC), vr(AB[t & 1]), vr(DATA + 4 * t), "0" if t == 0 else vr(QACC)))
        top_up()
        chunk()
    assert not chunks
    stamp("qdone")
    e("v_mov_b32 v53, %d" % MODE)
    e("s_mov_b32 exec_hi, 0")
    e("ds_write_b128 v62, %s" % vr(QACC))
    e("s_mov_b64 exec, 0xff")
    e("s_waitcnt lgkmcnt(0)")
    stamp("preB1", 1)
    e("s_barrier")
    stamp("B1", 1)
    e("ds_read_b32 v52, v53")
    for w2 in range(4):
        e("ds_read_b128 %s, v63 offset:%d" % (vr(G1R + 4 * w2), 512 * w2))
    e("s_waitcnt lgkmcnt(0)")
    e("v_readfirstlane_b32 s69, v52")

    def sum4(R):
        for r in (0, 2):
            e("v_pk_add_f32 %s, %s, %s" % (vr(R + r, 2), vr(R + r, 2), vr(R + 4 + r, 2)))
            e("v_pk_add_f32 %s, %s, %s" % (vr(R + 8 + r, 2), vr(R + 8 + r, 2), vr(R + 12 + r, 2)))
        for r in (0, 2):
            e("v_pk_add_f32 %s, %s, %s" % (vr(R + r, 2), vr(R + r, 2), vr(R + 8 + r, 2)))

    def tag4(R):
        for r in range(4):
            e("v_bfi_b32 v%d, s42, v32, v%d" % (R + r, R + r))

    def pack4(R):
        e("v_cvt_pk_bf16_f32 v%d, v%d, v%d" % (R, R, R + 1))
        e("v_cvt_pk_bf16_f32 v%d, v%d, v%d" % (R + 1, R + 2, R + 3))
        e("v_min_u32 v%d, -2, v%d" % (R, R))
        e("v_min_u32 v%d, -2, v%d" % (R + 1, R + 1))

    sum4(G1R)
    if e1bf:
        pack4(G1R)
        handoff_stores(["buffer_store_dwordx2 %s, v33, s[36:39], s49 offen" % vr(G1R, 2)])
    else:
        tag4(G1R)
        handoff_stores(["buffer_store_dwordx4 %s, v26, s[36:39], s49 offen" % vr(G1R)])
    e("s_mov_b64 exec, -1")
    stamp("E1pub")
    PLO, PHI, ONES = AB[0], AB[1], QACC
    for r in range(4):
        e("v_mov_b32 v%d, v47" % (ONES + r))
    for r in range(8):
        e("v_mov_b32 v%d, 0" % (PLO + r))

    def k_read():
        note("K operands of the two 16-key tiles")
        for T in range(2):
            for s in range(4):
                e("ds_read_b128 %s, v%d offset:%d" % (vr(KOP + 16 * T + 4 * s), 28 + s, 16384 * T))
    actions[23] = k_read

    def v_perm(d):
        def f():
            note("V^T operands: pair element e of two consecutive key rows")
            for ee in range(8):
                e("v_perm_b32 v%d, v%d, v%d, s%d" % (
                    VT + 4 * ee + d, VRAW + 4 * (2 * d + 1) + (ee >> 1), VRAW + 4 * (2 * d) + (ee >> 1), 62 + (ee & 1)))
        return f
    for d in range(4):
        actions[24 + 2 * d + 1] = v_perm(d)

    def ortree(regs, tmp):
        regs = list(regs)
        e("v_or3_b32 v%d, v%d, v%d, v%d" % (tmp, regs[0], regs[1], regs[2]))
        regs = regs[3:]
        while len(regs) >= 2:
            e("v_or3_b32 v%d, v%d, v%d, v%d" % (tmp, tmp, regs[0], regs[1]))
            regs = regs[2:]
        if regs:
            e("v_or_b32 v%d, v%d, v%d" % (tmp, tmp, regs[0]))
        e("v_and_b32 v%d, s42, v%d" % (tmp, tmp))
        e("v_cmp_ne_u32 vcc, 0, v%d" % tmp)

    def gather1():
        s = None
        for u in range(2 if e1bf else 4):
            s = p.vm("buffer_load_dwordx4 %s, v45, s[36:39], s50 offen offset:%d sc1" % (
                vr(G1R + 4 * u), (256 if e1bf else 512) * u))
        return s

    pace(24 + o["G1"])
    g1 = gather1()
    stamp("g1iss")
    pace(len(seq) + o["B1"])
    arrive(23)
    p.wait_vm(g1)
    e("L_chk1:")
    stamp("g1arr")
    if e1bf:
        T8 = G1R + 8
        for i in range(4):
            e("v_perm_b32 v%d, v%d, v%d, s62" % (T8 + 2 * i, G1R + 4 + i, G1R + i))
            e("v_perm_b32 v%d, v%d, v%d, s63" % (T8 + 2 * i + 1, G1R + 4 + i, G1R + i))
        for i in range(8):
            e("v_dot2_f32_bf16 v%d, v%d, v47, 0" % (T8 + i, T8 + i))
        e("v_max3_u32 v54, v%d, v%d, v%d" % (G1R, G1R + 1, G1R + 2))
        e("v_max3_u32 v55, v%d, v%d, v%d" % (G1R + 3, G1R + 4, G1R + 5))
        for i in range(4):
            e("v_permlane32_swap_b32 v%d, v%d" % (T8 + i, T8 + 4 + i))
        e("v_max3_u32 v54, v54, v%d, v%d" % (G1R + 6, G1R + 7))
        e("v_pk_add_f32 %s, %s, %s" % (vr(50, 2), vr(T8, 2), vr(T8 + 4, 2)))
        e("v_pk_add_f32 %s, %s, %s" % (vr(52, 2), vr(T8 + 2, 2), vr(T8 + 6, 2)))
        e("v_max_u32 v54, v54, v55")
        e("v_cvt_pk_bf16_f32 v50, v50, v51")
        e("v_cvt_pk_bf16_f32 v51, v52, v53")
        e("v_cmp_eq_u32 vcc, -1, v54")
        e("ds_write_b64 v34, v[50:51]")
    else:
        for r in range(16):
            e("v_xor_b32 v%d, s41, v%d" % (G1R + r, G1R + r))
        for r in (0, 2):
            e("v_pk_add_f32 %s, %s, %s" % (vr(50 + r, 2), vr(G1R + r, 2), vr(G1R + 4 + r, 2)))
            e("v_pk_add_f32 %s, %s, %s" % (vr(54 + r, 2), vr(G1R + 8 + r, 2), vr(G1R + 12 + r, 2)))
        for r in (0, 2):
            e("v_pk_add_f32 %s, %s, %s" % (vr(50 + r, 2), vr(50 + r, 2), vr(54 + r, 2)))
        e("v_cvt_pk_bf16_f32 v50, v50, v51")
        e("v_cvt_pk_bf16_f32 v51, v52, v53")
        e("ds_write_b64 v34, v[50:51]")
        ortree(range(G1R, G1R + 16), 54)
    e("s_cbranch_vccz L_ok1")
    retry_code("L_retry1", "L_chk1", gather1)
    e("L_ok1:")
    e("s_waitcnt lgkmcnt(0)")
    stamp("preB2", 1)
    e("s_barrier")
    stamp("B2", 1)
    for s4 in range(4):
        e("ds_read_b128 %s, v35 offset:%d" % (vr(QOP + 4 * s4), 64 * s4))
    spr = list(o["spr"])
    issue(spr[0])
    S = G1R
    for s4 in range(4):
        e("s_waitcnt lgkmcnt(%d)" % (0 if o["stamps"] or o["dump"] else 3 - s4))
        if s4 == 0:
            stamp("qop", 1)
            dump(QOP, 16, 0)
        for T in range(2):
            e("v_mfma_f32_16x16x32_bf16 %s, %s, %s, %s" % (
                vr(S + 4 * T), vr(KOP + 16 * T + 4 * s4), vr(QOP + 4 * s4), "0" if s4 == 0 else vr(S + 4 * T)))
    issue(spr[1])
    C = SCALE * LOG2E
    if o["mimic"]:
        e("s_mov_b32 s60, 0x%x" % f32bits(SCALE))
        for rnd in range(2):
            for d in range(4):
                e("v_cvt_pk_bf16_f32 v%d, v%d, v%d" % (50 + d, S + 2 * d, S + 2 * d + 1))
            for d in range(4):
                e("v_lshlrev_b32 v%d, 16, v%d" % (S + 2 * d, 50 + d))
                e("v_and_b32 v%d, 0xffff0000, v%d" % (S + 2 * d + 1, 50 + d))
            if rnd == 0:
                for r in range(8):
                    e("v_mul_f32 v%d, s60, v%d" % (S + r, S + r))
        C = LOG2E
    dump(S, 8, 1)
    e("s_mov_b32 s60, 0x%x" % f32bits(C))
    e("v_max3_f32 v50, v%d, v%d, v%d" % (S, S + 1, S + 2))
    e("v_max3_f32 v51, v%d, v%d, v%d" % (S + 4, S + 5, S + 6))
    e("v_max3_f32 v50, v50, v%d, v%d" % (S + 3, S + 7))
    e("v_max_f32 v50, v50, v51")
    e("v_mov_b32 v51, v50")
    e("v_permlane16_swap_b32 v50, v51")
    e("v_max_f32 v50, v50, v51")
    e("v_mov_b32 v51, v50")
    e("v_permlane32_swap_b32 v50, v51")
    e("v_max_f32 v50, v50, v51")
    e("v_mul_f32 v50, s60, v50")
    for r in range(8):
        e("v_fma_f32 v%d, v%d, s60, -v50" % (S + r, S + r))
    for r in range(8):
        e("v_exp_f32 v%d, v%d" % (S + r, S + r))
    e("s_mov_b64 exec, s[64:65]")
    for d in range(4):
        e("v_cvt_pk_bf16_f32 v%d, v%d, v%d" % (PLO + d, S + 2 * d, S + 2 * d + 1))
    e("s_not_b64 exec, s[64:65]")
    for d in range(4):
        e("v_cvt_pk_bf16_f32 v%d, v%d, v%d" % (PHI + d, S + 2 * d, S + 2 * d + 1))
    e("s_mov_b64 exec, -1")
    OA = VRAW
    LA = KOP
    e("v_mfma_f32_16x16x32_bf16 %s, %s, %s, 0" % (vr(LA), vr(ONES), vr(PLO)))
    e("v_mfma_f32_16x16x32_bf16 %s, %s, %s, %s" % (vr(LA), vr(ONES), vr(PHI), vr(LA)))
    stamp("smax")
    issue(spr[2])
    e("s_mov_b64 exec, 0xff")
    e("ds_write2_b32 v38, v50, v%d offset0:0 offset1:1" % LA)
    e("s_mov_b64 exec, -1")
    pace(32)
    arrive(31)
    stamp("varr", 1)
    for ep in range(4):
        e("v_mfma_f32_16x16x32_bf16 %s, %s, %s, 0" % (vr(OA + 4 * ep), vr(VT + 4 * ep), vr(PLO)))
    for ep in range(4):
        e("v_mfma_f32_16x16x32_bf16 %s, %s, %s, %s" % (vr(OA + 4 * ep), vr(VT + 4 * (ep + 4)), vr(PHI), vr(OA + 4 * ep)))
        if ep == 0:
            issue(spr[3])
    for ep in range(4):
        e("ds_write_b128 v36, %s offset:%d" % (vr(OA + 4 * ep), 128 * ep))
    dump(OA, 16, 2)
    e("s_waitcnt lgkmcnt(0)")
    stamp("preB3", 1)
    e("s_barrier")
    stamp("B3", 1)
    R = VT
    e("ds_read_b128 %s, v39" % vr(R + 16))
    e("ds_read_b128 %s, v39 offset:16" % vr(R + 20))
    for w2 in range(4):
        e("ds_read_b128 %s, v37 offset:%d" % (vr(R + 4 * w2), 4224 * w2))
    issue(spr[4])
    e("s_waitcnt lgkmcnt(4)" if not o["stamps"] else "s_waitcnt lgkmcnt(0)")
    e("v_max3_f32 v56, v%d, v%d, v%d" % (R + 16, R + 18, R + 20))
    e("v_max_f32 v56, v56, v%d" % (R + 22))
    e("v_bfi_b32 v56, s42, 0, v56")
    for w2 in range(4):
        e("v_sub_f32 v%d, v%d, v56" % (52 + w2, R + 16 + 2 * w2))
    for w2 in range(4):
        e("v_exp_f32 v%d, v%d" % (52 + w2, 52 + w2))
    e("v_or_b32 v56, s41, v56")
    e("v_mul_f32 v57, v52, v%d" % (R + 17))
    for w2 in range(1, 4):
        e("v_fmac_f32 v57, v%d, v%d" % (52 + w2, R + 17 + 2 * w2))
    e("s_waitcnt lgkmcnt(0)")
    for r in range(4):
        e("v_mul_f32 v%d, v52, v%d" % (R + r, R + r))
    for w2 in range(1, 4):
        for r in range(4):
            e("v_fmac_f32 v%d, v%d, v%d" % (R + r, 52 + w2, R + 4 * w2 + r))
    e("v_bfi_b32 v57, s42, v32, v57")
    pack4(R)
    handoff_stores(["buffer_store_dwordx2 %s, v40, s[36:39], s51 offen" % vr(R, 2),
                    "s_mov_b32 exec_lo, 1", "s_mov_b32 exec_hi, 1",
                    "buffer_store_dwordx2 v[56:57], v41, s[36:39], s52 offen"])
    e("s_mov_b64 exec, -1")
    stamp("E2pub")
    issue(spr[5])

    G2R = KOP
    OA_, OB_, M0 = G2R, G2R + 4, G2R + 8

    def gather2():
        p.vm("buffer_load_dwordx4 %s, v43, s[36:39], s54 offen sc1" % vr(M0))
        p.vm("buffer_load_dwordx4 %s, v42, s[36:39], s53 offen sc1" % vr(OA_))
        return p.vm("buffer_load_dwordx4 %s, v42, s[36:39], s66 offen sc1" % vr(OB_))

    pace(32 + o["G2"])
    g2 = gather2()
    stamp("g2iss")
    pace(len(seq) + o["B2"])
    p.wait_vm(g2)
    e("L_chk2:")
    stamp("g2arr")
    for r in range(4):
        e("v_xor_b32 v%d, s41, v%d" % (M0 + r, M0 + r))
    e("v_max_f32 v50, v%d, v%d" % (M0, M0 + 2))
    e("v_max3_u32 v53, v%d, v%d, v%d" % (OA_, OA_ + 1, OA_ + 2))
    e("v_max3_u32 v53, v53, v%d, v%d" % (OA_ + 3, OB_))
    e("v_max_f32_dpp v50, v50, v50 row_ror:4 row_mask:0xf bank_mask:0xf")
    e("v_max3_u32 v53, v53, v%d, v%d" % (OB_ + 1, OB_ + 2))
    e("v_max_u32 v53, v53, v%d" % (OB_ + 3))
    e("v_max_f32_dpp v50, v50, v50 row_ror:8 row_mask:0xf bank_mask:0xf")
    e("v_or3_b32 v52, v%d, v%d, v%d" % (M0, M0 + 1, M0 + 2))
    e("v_mov_b32 v51, v50")
    e("v_or_b32 v52, v52, v%d" % (M0 + 3))
    e("v_and_b32 v52, s42, v52")
    e("v_permlane16_swap_b32 v50, v51")
    e("v_max_f32 v50, v50, v51")
    e("v_mov_b32 v51, v50")
    e("v_cmp_eq_u32 vcc, -1, v53")
    e("v_cmp_ne_u32 s[10:11], 0, v52")
    e("v_permlane32_swap_b32 v50, v51")
    e("v_max_f32 v50, v50, v51")
    A8 = G2R + 12
    e("v_sub_f32 v52, v%d, v50" % M0)
    e("v_sub_f32 v53, v%d, v50" % (M0 + 2))
    e("v_exp_f32 v52, v52")
    e("v_exp_f32 v53, v53")
    e("s_or_b64 vcc, vcc, s[10:11]")
    e("s_cbranch_vccz L_ok2")
    retry_code("L_retry2", "L_chk2", gather2)
    e("L_ok2:")
    e("v_cvt_pk_bf16_f32 v54, v52, v53")
    for i in range(4):
        e("v_perm_b32 v%d, v%d, v%d, s62" % (A8 + 2 * i, OB_ + i, OA_ + i))
        e("v_perm_b32 v%d, v%d, v%d, s63" % (A8 + 2 * i + 1, OB_ + i, OA_ + i))
    e("v_lshlrev_b32 v52, 16, v54")
    e("v_and_b32 v53, 0xffff0000, v54")
    e("v_mul_f32 v51, v52, v%d" % (M0 + 1))
    e("v_fmac_f32 v51, v53, v%d" % (M0 + 3))
    for i in range(8):
        e("v_dot2_f32_bf16 v%d, v%d, v54, 0" % (A8 + i, A8 + i))
    e("v_add_f32_dpp v51, v51, v51 row_ror:4 row_mask:0xf bank_mask:0xf")
    for b in (0, 4):
        e("v_permlane32_swap_b32 v%d, v%d" % (A8 + b, A8 + b + 2))
        e("v_permlane32_swap_b32 v%d, v%d" % (A8 + b + 1, A8 + b + 3))
    e("v_add_f32_dpp v51, v51, v51 row_ror:8 row_mask:0xf bank_mask:0xf")
    for b in (0, 4):
        e("v_add_f32 v%d, v%d, v%d" % (A8 + b, A8 + b, A8 + b + 2))
        e("v_add_f32 v%d, v%d, v%d" % (A8 + b + 1, A8 + b + 1, A8 + b + 3))
    e("v_mov_b32 v50, v51")
    e("v_permlane16_swap_b32 v%d, v%d" % (A8, A8 + 1))
    e("v_permlane16_swap_b32 v%d, v%d" % (A8 + 4, A8 + 5))
    e("v_permlane16_swap_b32 v50, v51")
    e("v_add_f32 v%d, v%d, v%d" % (A8, A8, A8 + 1))
    e("v_add_f32 v%d, v%d, v%d" % (A8 + 4, A8 + 4, A8 + 5))
    e("v_add_f32 v51, v50, v51")
    e("v_add_f32_dpp v%d, v%d, v%d row_ror:4 row_mask:0xf bank_mask:0xf" % (A8, A8, A8))
    e("v_mov_b32 v50, v51")
    e("v_add_f32_dpp v%d, v%d, v%d row_ror:4 row_mask:0xf bank_mask:0xf" % (A8 + 4, A8 + 4, A8 + 4))
    e("v_add_f32_dpp v%d, v%d, v%d row_ror:8 row_mask:0xf bank_mask:0xf" % (A8, A8, A8))
    e("v_permlane32_swap_b32 v50, v51")
    e("v_add_f32 v51, v50, v51")
    e("v_add_f32_dpp v%d, v%d, v%d row_ror:8 row_mask:0xf bank_mask:0xf" % (A8 + 4, A8 + 4, A8 + 4))
    e("v_rcp_f32 v51, v51")
    X = (4, 5)
    e("v_mul_f32 v%d, v%d, v51" % (A8, A8))
    e("v_mul_f32 v%d, v%d, v51" % (A8 + 4, A8 + 4))
    e("v_cvt_pk_bf16_f32 v%d, v%d, v%d" % (X[0], A8, A8))
    e("v_cvt_pk_bf16_f32 v%d, v%d, v%d" % (X[1], A8 + 4, A8 + 4))
    dump(X[0], 1, 3)
    dump(X[1], 1, 4)
    stamp("ordy")
    OUT0, OUT1 = G1R, G1R + 4
    A4 = 56
    issue(16)
    build_a(AB[0], X[0], 0)
    for t in range(8):
        for c2, acc in ((0, OUT0), (1, OUT1)):
            if t == 7 and c2 == 1:
                e("s_mov_b32 exec_hi, 0")
                e("ds_write_b128 v44, %s" % vr(OUT0))
                e("s_mov_b64 exec, -1")
            arrive(32 + 2 * t + c2)
            e("v_mfma_f32_16x16x32_bf16 %s, %s, %s, %s" % (
                vr(acc), vr(AB[t & 1]), vr(DATA + 8 * t + 4 * c2), "0" if t == 0 else vr(acc)))
            if c2 == 0 and t < 7:
                build_a(AB[(t + 1) & 1], X[(t + 1) & 1], (t + 1) >> 1)
    stamp("opdone")
    e("s_mov_b32 exec_hi, 0")
    e("ds_write_b128 v44, %s offset:512" % vr(OUT1))
    e("s_mov_b64 exec, 0xffff")
    e("s_waitcnt lgkmcnt(0)")
    stamp("preB4", 1)
    e("s_barrier")
    stamp("B4", 1)
    for w2 in range(4):
        e("ds_read_b128 %s, v61 offset:%d" % (vr(R + 4 * w2), 1024 * w2))
    e("s_waitcnt lgkmcnt(0)")
    sum4(R)
    tag4(R)
    p.vm("buffer_store_dwordx4 %s, v26, s[36:39], s55 offen sc1" % vr(R))
    e("s_mov_b64 exec, -1")
    stamp("E3pub")
    e("s_cmp_lg_u32 s40, 0")
    e("s_cbranch_scc1 L_fin")
    e("s_waitcnt vmcnt(0)")
    stamp("ack3", 1)
    QR = VRAW
    e("L_retry3:")
    p.vm("buffer_load_dwordx4 %s, v48, s[36:39], s56 offen sc1" % vr(QR))
    e("s_waitcnt vmcnt(0)")
    for r in range(4):
        e("v_xor_b32 v%d, s41, v%d" % (A4 + r, QR + r))
    ortree(range(A4, A4 + 4), 52)
    e("s_cbranch_vccz L_got3")
    e("s_mov_b64 exec, vcc")
    e("s_sub_u32 s59, s59, 1")
    e("s_cbranch_scc0 L_retry3")
    e("s_branch L_end")
    e("L_got3:")
    e("s_mov_b64 exec, -1")
    stamp("got3", 1)
    e("v_permlane32_swap_b32 v%d, v%d" % (A4, A4 + 2))
    e("v_permlane32_swap_b32 v%d, v%d" % (A4 + 1, A4 + 3))
    e("v_add_f32 v%d, v%d, v%d" % (A4, A4, A4 + 2))
    e("v_add_f32 v%d, v%d, v%d" % (A4 + 1, A4 + 1, A4 + 3))
    e("v_permlane16_swap_b32 v%d, v%d" % (A4, A4 + 1))
    e("v_add_f32 v%d, v%d, v%d" % (A4, A4, A4 + 1))
    for k in (2, 4, 8):
        e("v_add_f32_dpp v%d, v%d, v%d row_ror:%d row_mask:0xf bank_mask:0xf" % (A4, A4, A4, k))
    e("v_cvt_pk_bf16_f32 v%d, v%d, v%d" % (A4, A4, A4))
    e("s_mov_b32 exec_lo, 0x00030003\ns_mov_b32 exec_hi, 0x00030003")
    p.vm("buffer_store_short v%d, v46, s[32:35], s57 offen" % A4)
    e("s_and_b32 s60, s2, 0xfb")
    e("s_cbranch_scc1 L_fin")
    e("s_mov_b64 exec, 1")
    e("v_mov_b32 v50, s43")
    e("v_mov_b32 v51, 0")
    p.vm("buffer_store_dword v50, v51, s[36:39], s7 offen sc1")
    e("L_fin:")
    if o["probe"]:
        a, b, k, wg = o["probe"]
        stamp("fin")
        e("s_cmp_lg_u32 s2, %d\ns_cbranch_scc1 L_end\ns_cmp_lg_u32 s40, 0\ns_cbranch_scc1 L_end" % wg)
        e("s_waitcnt lgkmcnt(0)")
        e("s_sub_u32 s60, s%d, s%d" % (70 + 2 * names.index(b), 70 + 2 * names.index(a)))
        e("s_mul_i32 s60, s60, %d" % k)
        e("L_probe:")
        e("s_memrealtime s[62:63]\ns_waitcnt lgkmcnt(0)")
        e("s_sub_u32 s61, s62, s%d" % (70 + 2 * (stamp_n[0] - 1)))
        e("s_cmp_lt_u32 s61, s60\ns_cbranch_scc1 L_probe")
        e("s_branch L_end")
    elif o["stamps"]:
        stamp("fin")
        e("s_mov_b64 exec, 1")
        e("s_getreg_b32 s68, hwreg(HW_REG_XCC_ID)")
        e("s_mov_b32 s69, s59")
        e("s_waitcnt lgkmcnt(0)")
        for i in range(32):
            e("v_mov_b32 v%d, s%d" % (64 + i, 68 + i))
        e("s_lshl_b32 s60, s2, 2\ns_add_u32 s60, s60, s40\ns_lshl_b32 s60, s60, 7\ns_add_u32 s60, s60, %d" % TS_OFF)
        e("v_mov_b32 v51, 0")
        for i in range(8):
            p.vm("buffer_store_dwordx4 %s, v51, s[36:39], s60 offen offset:%d" % (vr(64 + 4 * i), 16 * i))
    e("L_end:")
    e("s_endpgm")

    note("""helper wave: clears the slots that carry bare bf16 data to the sentinel 0xffffffff, exchanges die ids
    with the group and leaves the store mode (0 = one L2 for the whole group) in LDS before it ends""")
    clears = ["buffer_store_dwordx4 v[52:55], v40, s[36:39], s51 offen",
              "buffer_store_dwordx4 v[52:55], v40, s[36:39], s52 offen"]
    e("""
    L_helper:
    v_and_b32 v1, 63, v0
    s_and_b32 s3, s2, 7
    s_lshr_b32 s4, s2, 3
    s_and_b32 s6, s2, 3
    s_mov_b32 s38, %d
    s_mov_b32 s39, 0x20000
    s_lshl_b32 s7, s5, 8
    v_lshlrev_b32 v40, 4, v3
    v_lshl_add_u32 v40, v2, 13, v40
    s_lshl_b32 s51, s3, 16
    s_lshl_b32 s61, s4, 8
    s_add_u32 s51, s51, s61
    s_add_u32 s51, s51, %d
    s_add_u32 s52, s51, 32768
    v_mov_b32 v52, -1
    v_mov_b32 v53, -1
    v_mov_b32 v54, -1
    v_mov_b32 v55, -1
    v_lshlrev_b32 v26, 4, v1
    s_waitcnt lgkmcnt(0)
    s_load_dword s43, s[36:37], s7
    """ % (WS_BYTES, E2O))
    for t in clears:
        e(t)
    if e1bf:
        e("""
        s_and_b32 s60, s4, 7
        s_lshl3_add_u32 s60, s3, s60
        s_lshr_b32 s61, s4, 3
        s_lshl2_add_u32 s49, s60, s61
        s_lshl_b32 s49, s49, 8
        s_add_u32 s49, s49, %d
        s_mov_b64 exec, 0xffff
        buffer_store_dwordx4 v[52:55], v26, s[36:39], s49 offen
        s_mov_b64 exec, -1
        """ % E1)
    e("""
    s_movk_i32 s42, %d
    s_mov_b32 s59, %d
    s_getreg_b32 s60, hwreg(HW_REG_XCC_ID, 0, 4)
    s_lshl_b32 s69, s60, 10
    s_lshl_b32 s68, s3, 7
    s_add_u32 s68, s68, %d
    s_lshl2_add_u32 s67, s4, s68
    v_mov_b32 v57, 0
    v_and_b32 v47, 31, v1
    v_lshlrev_b32 v47, 2, v47
    """ % (TAGMASK, o["retry"], E0))
    if o["prew3"]:
        e("""
        s_and_b32 s60, s4, 3
        s_lshl2_add_u32 s55, s5, s60
        s_lshl_b32 s55, s55, 5
        s_lshl3_add_u32 s55, s6, s55
        s_lshr_b32 s60, s4, 2
        s_add_u32 s55, s55, s60
        s_lshl_b32 s55, s55, 10
        s_add_u32 s55, s55, %d
        v_mov_b32 v60, 0
        v_mov_b32 v61, 1
        v_mov_b32 v62, 2
        v_mov_b32 v63, 3
        """ % E3)
    e("s_waitcnt vmcnt(0) lgkmcnt(0)" if e1bf else "s_waitcnt lgkmcnt(0)")
    e("""
    s_add_u32 s43, s43, 1
    s_and_b32 s41, s43, s42
    s_or_b32 s69, s69, s41
    s_mov_b32 s46, s69
    v_mov_b32 v56, s69
    s_mov_b64 exec, 1
    buffer_store_dword v56, v57, s[36:39], s67 offen sc1
    s_mov_b64 exec, -1
    """)
    if o["prew3"]:
        note("an invalid granule written ahead makes the later write-through of the output partials faster")
        e("buffer_store_dwordx4 v[60:63], v26, s[36:39], s55 offen sc1")
    if o["e0ack"]:
        e("s_waitcnt vmcnt(0)")
    if o["e0s"]:
        e("""
        s_add_u32 s10, s36, s68
        s_addc_u32 s11, s37, 0
        L_hpoll:
        s_sub_u32 s59, s59, 1
        s_cbranch_scc1 L_end
        s_load_dwordx16 s[68:83], s[10:11], 0 glc
        s_load_dwordx16 s[84:99], s[10:11], 64 glc
        s_waitcnt lgkmcnt(0)
        """.replace("s[68:83]", "s[64:79]").replace("s[84:99]", "s[80:95]"))
        e("s_xor_b32 s60, s64, s46")
        for i in range(1, 32):
            e("s_xor_b32 s61, s%d, s46" % (64 + i))
            e("s_or_b32 s60, s60, s61")
        e("""
        s_and_b32 s61, s60, s42
        s_cbranch_scc1 L_hpoll
        s_mov_b32 s69, s60
        s_waitcnt vmcnt(0)
        """)
    else:
        e("""
        L_hpoll:
        s_sub_u32 s59, s59, 1
        s_cbranch_scc1 L_end
        buffer_load_dword v58, v47, s[36:39], s68 offen sc1
        s_waitcnt vmcnt(0)
        v_xor_b32 v58, s69, v58
        v_and_b32 v59, s42, v58
        v_cmp_ne_u32 vcc, 0, v59
        s_cbranch_vccnz L_hpoll
        v_cmp_ne_u32 vcc, 0, v58
        s_or_b32 s69, vcc_lo, vcc_hi
        """)
    if o["force_global"]:
        e("s_mov_b32 s69, 1")
    e("""
    s_cmp_lg_u32 s69, 0
    s_cbranch_scc1 L_hglob
    L_hdone:
    v_mov_b32 v56, s69
    v_mov_b32 v57, %d
    ds_write_b32 v57, v56
    s_waitcnt lgkmcnt(0)
    s_endpgm
    """ % MODE)
    e("L_hglob:")
    for t in clears:
        e(t + " sc1")
    if e1bf:
        e("""
        s_mov_b64 exec, 0xffff
        buffer_store_dwordx4 v[52:55], v26, s[36:39], s49 offen sc1
        s_mov_b64 exec, 1
        s_waitcnt vmcnt(0)
        buffer_store_dword v56, v57, s[36:39], s67 offen offset:1024 sc1
        s_mov_b64 exec, -1
        L_hpoll2:
        s_sub_u32 s59, s59, 1
        s_cbranch_scc1 L_end
        buffer_load_dword v58, v47, s[36:39], s68 offen offset:1024 sc1
        s_waitcnt vmcnt(0)
        v_xor_b32 v58, s41, v58
        v_and_b32 v58, s42, v58
        v_cmp_ne_u32 vcc, 0, v58
        s_cbranch_vccnz L_hpoll2
        """)
    else:
        e("s_waitcnt vmcnt(0)")
    e("s_branch L_hdone")
    for k, texts in cold:
        e("L_glob%d:" % k)
        for t in texts:
            e(t + (" sc1" if t.startswith("buffer") else ""))
        e("s_branch L_st%d" % k)

    head = """; Fused decode attention for both branches: q = x Wq, GQA attention over the last 4096 keys, out = o Wo.
; One launch of 256 workgroups, 32 per (branch, kv head); all of them are resident at once.
; Every byte of Wq, K, V and Wo is loaded exactly once, as one paced stream per wave.  Three hand-offs go
; through d_ws: q partials and o partials inside a group, output partials across the four groups of a branch.
; A handed-off word is valid when it carries this launch's tag (f32 data, tag in the low 10 mantissa bits)
; or differs from the sentinel its slot was cleared to earlier in this launch (packed bf16 data).
; @launch grid=(256,1,1) block=(320,1,1) lds=%d
.amdgcn_target "amdgcn-amd-amdhsa--gfx950"
.text
.globl %s_kernel
.p2align 8
.type %s_kernel,@function
""" % (LDS_BYTES, KN, KN)
    tail = """.section .rodata,"a"
.p2align 6
.amdhsa_kernel %s_kernel
  .amdhsa_next_free_vgpr 256
  .amdhsa_next_free_sgpr 102
  .amdhsa_accum_offset 256
  .amdhsa_group_segment_fixed_size 0
  .amdhsa_kernarg_size 104
  .amdhsa_user_sgpr_count 2
  .amdhsa_user_sgpr_kernarg_segment_ptr 1
  .amdhsa_system_sgpr_workgroup_id_x 1
  .amdhsa_float_denorm_mode_32 3
.end_amdhsa_kernel
""" % KN
    gen.names = names
    return head + p.text() + tail


if __name__ == "__main__":
    kw = eval("dict(%s)" % (sys.argv[2] if len(sys.argv) > 2 else ""))
    open(sys.argv[1], "w").write(gen(**kw))
```

```python
import struct
import sys
from asmlib import Prog

KN = "concat_heads__sliding_block_cached__sliding_block_cached__decode"
WS_BYTES = 301993984
TS_OFF = 200 << 20

EPOCH = 0x0
E0 = 0x1000
FL = 0x2000
E1 = 0x8000
ML = 0x30000
E3 = 0x40000
E2O = 0x80000
QRED = 32768
QB = 34816
ORED = 37120
MLR = 54016
OUTRED = 54272
MODE = 58368
OB = 58384
LDS_BYTES = 58464
TAGMASK = 0x3FF

DEFAULTS = dict(Wq=6, Wk=6, Wv=6, W=5, G1=4, B1=4, G2=12, B2=4, spr=(1, 1, 1, 1, 1, 1), early_chunks=2,
                e1bf=False, prew3=False, mimic=False, stamps=False, dump=False, probe=None, retry=1 << 20,
                force_global=False, e0s=False, e0ack=True, inbox=False, maxfirst=False, hyb=False, vstep=True, thr=0, thrspr=False, lflag=1, hcons=False, flw=3, hdelay=0)


def f32bits(x):
    return struct.unpack("<I", struct.pack("<f", x))[0]


def vr(a, n=4):
    return "v[%d:%d]" % (a, a + n - 1)


def gen(**kw):
    o = dict(DEFAULTS)
    for k in kw:
        assert k in o, k
    o.update(kw)
    p = Prog()
    e = p.e
    e1bf = o["e1bf"]
    maxfirst, hyb = o["maxfirst"], o["hyb"]
    stamp_n = [0]
    names = []
    cold = []

    def note(text):
        for line in text.strip().split("\n"):
            e("; " + line.strip())

    def stamp(name, level=0):
        want = o["stamps"]
        if want and (name in want if isinstance(want, (list, tuple)) else level == 0):
            k = 70 + 2 * stamp_n[0]
            assert k <= 98
            e("s_memrealtime s[%d:%d]" % (k, k + 1))
            stamp_n[0] += 1
            names.append(name)

    def dump(reg, n, slot):
        if o["dump"]:
            e("s_mov_b32 s61, %d" % (TS_OFF + (1 << 20) + slot * (4 << 20)))
            for i in range(n):
                p.vm("buffer_store_dword v%d, v60, s[36:39], s61 offen offset:%d" % (reg + i, 4 * i))
            e("s_waitcnt vmcnt(0)")

    def handoff_stores(texts):
        k = len(cold) + 1
        e("s_cmp_eq_u32 s69, 0")
        e("s_cbranch_scc0 L_glob%d" % k)
        for t in texts:
            e(t)
        e("L_st%d:" % k)
        cold.append((k, texts))

    def retry_code(lb, chk, g):
        n0 = p.nvm
        e("%s:" % lb)
        if o["thr"] and lb == "L_retry1":
            e("s_mov_b32 s67, 1")
        e("s_sub_u32 s59, s59, 1")
        e("s_cbranch_scc1 L_end")
        g()
        e("s_waitcnt vmcnt(0)")
        e("s_branch %s" % chk)
        p.nvm = n0

    SCALE = 128 ** -0.5
    LOG2E = 1.4426950408889634
    DATA = 64
    KOP = 128
    VRAW = 160
    VT = 192
    G1R = 224
    QOP = 240
    AB = (10, 14)
    QACC = 18
    MASK = 6
    W = o["W"]

    e("%s_kernel:" % KN)
    note("""s2 = 8*j + grp, grp = 4*branch + kvh.  Waves 0-3 stream and compute, wave 4 is the helper.
    q tile: head j&7, rows 64*t + 16*(j>>3) + 4*wave + g (g = lane>>4, t = load index).""")
    e("""
    s_and_b32 s7, s2, 4
    s_mul_i32 s7, s7, 10
    s_add_u32 s8, s0, s7
    s_addc_u32 s9, s1, 0
    s_load_dwordx2 s[24:25], s[8:9], 24
    s_load_dwordx2 s[12:13], s[8:9], 0
    s_load_dwordx2 s[36:37], s[0:1], 96
    v_lshrrev_b32 v50, 6, v0
    v_bfe_u32 v2, v0, 4, 2
    v_readfirstlane_b32 s40, v50
    v_and_b32 v3, 15, v0
    s_cmpk_ge_u32 s2, 256
    s_cbranch_scc1 L_end
    v_lshlrev_b32 v5, 4, v3
    v_lshlrev_b32 v4, 7, v3
    v_lshl_add_u32 v5, v2, 13, v5
    v_lshl_add_u32 v4, v2, 1, v4
    s_bfe_u32 s5, s2, 0x10002
    s_cmp_eq_u32 s40, 4
    s_cbranch_scc1 L_helper
    s_mov_b32 s27, 0x20000
    s_mov_b32 s26, 0x800000
    s_movk_i32 s14, 2048
    s_mov_b32 s15, s27
    s_lshr_b32 s44, s2, 6
    s_lshl2_add_u32 s44, s44, s40
    s_and_b32 s45, s2, 3
    s_lshl4_add_u32 s45, s44, s45
    s_lshl_b32 s45, s45, 6
    s_and_b32 s60, s2, 56
    s_add_u32 s45, s45, s60
    s_lshl_b32 s45, s45, 5
    s_lshl_b32 s44, s44, 3
    s_waitcnt lgkmcnt(0)
    """)
    stamp("entry")
    xop = p.vm("buffer_load_ushort v4, v4, s[12:15], s44 offen")

    stream = []
    for t in range(16):
        def f(t=t):
            s = p.vm("buffer_load_dwordx4 %s, v5, s[24:27], s45 offen nt" % vr(DATA + 4 * t))
            if t < 15:
                e("s_add_u32 s45, s45, %d" % (64 * 8192))
            return s
        stream.append(f)
    for jj in range(8):
        def f(jj=jj):
            e("s_mov_b32 m0, s58")
            if jj < 7:
                e("s_add_u32 s58, s58, 4096")
            s = p.vm("buffer_load_dwordx4 v%d, s[16:19], s46 offen nt lds" % (22 + (jj & 3)))
            if jj < 7:
                e("s_add_u32 s46, s46, 131072")
            return s
        stream.append(f)
    for jj in range(8):
        def f(jj=jj):
            s = p.vm("buffer_load_dwordx4 %s, v26, s[20:23], s47 offen nt" % vr(VRAW + 4 * jj))
            if jj < 7:
                e("s_add_u32 s47, s47, 131072")
            return s
        stream.append(f)
    for t in range(6 if hyb else 8):
        for c2 in range(2):
            def f(t=t, c2=c2):
                s = p.vm("buffer_load_dwordx4 %s, v27, s[28:31], s48 offen offset:%d nt" % (
                    vr(DATA + 8 * t + 4 * c2), 256 * c2))
                if c2 == 1 and t < 7:
                    e("s_add_u32 s48, s48, %d" % (8192 if t % 2 == 0 else 57344))
                return s
            stream.append(f)
    if hyb:
        for u in range(4):
            def f(u=u):
                s = p.vm("buffer_load_dwordx4 %s, v24, s[28:31], s67 offen nt" % vr(DATA + 48 + 4 * u))
                if u < 3:
                    e("s_add_u32 s67, s67, 16384")
                return s
            stream.append(f)
    seq = []
    done = [0]
    actions = {}

    def issue(k=1):
        for _ in range(k):
            if len(seq) < len(stream):
                seq.append(stream[len(seq)]())

    def arrive(idx):
        if idx < done[0]:
            return
        assert idx < len(seq)
        p.wait_vm(seq[idx])
        while done[0] <= idx:
            a = actions.get(done[0])
            if a:
                a()
            done[0] += 1

    def win(idx):
        return o["Wq"] if idx < 16 else o["Wk"] if idx < 24 else o["Wv"] if idx < 32 else W

    throttle = [False]
    thr_n = [0]

    def extra_wait():
        k = len(seq) - win(len(seq)) + o["thr"]
        if throttle[0] and o["thr"] and done[0] <= k < len(seq):
            thr_n[0] += 1
            e("s_cmp_eq_u32 s67, 0\ns_cbranch_scc1 L_thr%d" % thr_n[0])
            p.wait_vm(seq[k])
            e("L_thr%d:" % thr_n[0])

    def pace(upto):
        upto = min(upto, len(stream))
        while len(seq) < upto:
            if len(seq) - win(len(seq)) >= done[0]:
                arrive(len(seq) - win(len(seq)))
            extra_wait()
            issue(1)

    def sprinkle(k):
        for _ in range(k):
            if o["thrspr"] and len(seq) < len(stream):
                extra_wait()
            issue(1)

    def top_up():
        while len(seq) < len(stream) and len(seq) - win(len(seq)) < done[0]:
            issue(1)

    issue(win(0))
    e("""
    s_lshl_b32 s7, s5, 8
    s_load_dword s43, s[36:37], s7
    s_load_dwordx2 s[16:17], s[8:9], 8
    s_load_dwordx2 s[20:21], s[8:9], 16
    s_load_dwordx2 s[28:29], s[8:9], 32
    s_load_dwordx2 s[32:33], s[0:1], 80
    """)
    stamp("issued")

    chunks = []
    c = """
    v_and_b32 v50, 1, v3
    v_lshlrev_b32 v50, 4, v50
    v_mov_b32 v51, 0xffff
    v_lshlrev_b32 v50, v50, v51
    v_lshrrev_b32 v51, 1, v3
    """
    for d in range(4):
        c += "v_cmp_eq_u32 s[%d:%d], %d, v51\n" % (50 + 2 * d, 51 + 2 * d, d)
    c += """
    v_and_b32 v1, 63, v0
    s_and_b32 s3, s2, 7
    """
    for d in range(4):
        c += "v_cndmask_b32 v%d, 0, v50, s[%d:%d]\n" % (MASK + d, 50 + 2 * d, 51 + 2 * d)
    c += """
    s_lshr_b32 s4, s2, 3
    s_and_b32 s6, s2, 3
    s_mov_b32 s38, %d
    s_mov_b32 s39, 0x20000
    s_movk_i32 s42, %d
    s_mov_b32 s59, %d
    """ % (WS_BYTES, TAGMASK, o["retry"])
    if o["thr"]:
        assert not hyb
        c += "s_mov_b32 s67, 0\n"
    chunks.append(c)
    chunks.append("""
    ; keys of a wave: 61440 + 512*jj + 128*wave + 4*j + g; K rows go to LDS with their 16-byte chunks xor-swizzled
    s_mov_b32 s18, 0x4000000
    s_mov_b32 s19, 0x20000
    s_mov_b32 s22, 0x4000000
    s_mov_b32 s23, 0x20000
    s_lshl_b32 s46, s6, 24
    s_lshl_b32 s61, s4, 10
    s_add_u32 s46, s46, s61
    s_lshl_b32 s61, s40, 15
    s_add_u32 s46, s46, s61
    s_add_u32 s46, s46, %d
    s_mov_b32 s47, s46
    s_lshl_b32 s58, s40, 10
    v_lshlrev_b32 v26, 4, v1
    v_lshlrev_b32 v50, 2, v2
    v_xor_b32 v50, v50, v3
    v_lshlrev_b32 v50, 4, v50
    v_lshl_add_u32 v22, v2, 8, v50
    v_xor_b32 v23, 16, v22
    v_xor_b32 v24, 32, v22
    v_xor_b32 v25, 48, v22
    v_and_b32 v50, 3, v3
    v_lshlrev_b32 v50, 4, v50
    v_lshrrev_b32 v51, 2, v3
    v_add_u32 v50, v50, v51
    v_lshlrev_b32 v50, 8, v50
    v_add_u32 v50, s58, v50
    v_xor_b32 v51, v2, v3
    v_lshl_add_u32 v28, v51, 4, v50
    v_xor_b32 v29, 64, v28
    v_xor_b32 v30, 0x80, v28
    v_xor_b32 v31, 0xc0, v28
    """ % (61440 * 256))
    c = """
    ; LDS addresses of the two cross-wave sums, hand-off slots of the q partials
    v_lshl_add_u32 v62, v3, 1, v2
    v_lshlrev_b32 v62, 4, v62
    s_lshl_b32 s60, s40, 10
    s_add_u32 s60, s60, %d
    v_add_u32 v44, s60, v62
    s_lshl_b32 s60, s40, 9
    s_add_u32 s60, s60, %d
    v_add_u32 v62, s60, v62
    s_lshl_b32 s60, s40, 7
    s_add_u32 s60, s60, %d
    v_add_u32 v63, s60, v26
    s_lshl_b32 s60, s40, 8
    s_add_u32 s60, s60, %d
    v_add_u32 v61, s60, v26
    """ % (OUTRED, QRED, QRED, OUTRED)
    sh = 0 if not e1bf else 1
    c += """
    s_lshl_b32 s50, s3, %d
    s_add_u32 s50, s50, %d
    s_and_b32 s60, s4, 7
    s_lshl_b32 s60, s60, %d
    s_add_u32 s49, s50, s60
    s_lshr_b32 s60, s4, 3
    s_lshl2_add_u32 s60, s60, s40
    s_lshl_b32 s60, s60, %d
    s_add_u32 s49, s49, s60
    s_lshl_b32 s60, s40, %d
    s_add_u32 s50, s50, s60
    """ % (14 - sh, E1, 11 - sh, 7 - sh, 12 - sh)
    if e1bf:
        c += "v_lshlrev_b32 v33, 3, v1\n"
    chunks.append(c)
    c = """
    v_lshrrev_b32 v52, 5, v1
    v_and_b32 v53, 31, v1
    v_lshlrev_b32 v54, 4, v53
    s_lshl_b32 s60, s40, 1
    v_add_u32 v55, s60, v52
    v_and_b32 v56, 7, v3
    """
    if e1bf:
        c += """
        v_lshrrev_b32 v57, 4, v53
        v_add_u32 v58, s60, v57
        v_mul_u32_u24 v34, 288, v58
        v_lshl_add_u32 v34, v3, 4, v34
        v_lshl_add_u32 v34, v52, 3, v34
        v_add_u32 v34, %d, v34
        v_lshlrev_b32 v45, 4, v3
        v_lshl_add_u32 v45, v57, 10, v45
        v_lshl_add_u32 v45, v52, 9, v45
        """ % QB
    else:
        c += """
        v_lshl_add_u32 v45, v52, 11, v54
        v_mul_u32_u24 v34, 288, v55
        v_lshl_add_u32 v34, v53, 3, v34
        v_add_u32 v34, %d, v34
        """ % QB
    c += """
    v_mul_u32_u24 v35, 288, v56
    v_lshl_add_u32 v35, v2, 4, v35
    v_add_u32 v35, %d, v35
    v_mul_u32_u24 v37, 528, v55
    v_add_u32 v37, v37, v54
    v_add_u32 v37, %d, v37
    v_lshlrev_b32 v39, %d, v55
    v_add_u32 v39, %d, v39
    v_lshlrev_b32 v40, 3, v53
    v_lshl_add_u32 v40, v52, 13, v40
    v_lshlrev_b32 v41, 8, v52
    """ % (QB, ORED, 4 if maxfirst else 5, MLR)
    chunks.append(c)
    chunks.append("""
    v_mul_u32_u24 v36, 528, v56
    v_lshl_add_u32 v36, v2, 5, v36
    v_lshrrev_b32 v57, 3, v3
    v_lshl_add_u32 v36, v57, 4, v36
    s_mul_i32 s60, s40, 4224
    s_add_u32 s60, s60, %d
    v_add_u32 v36, s60, v36
    s_lshl_b32 s60, s40, %d
    s_add_u32 s60, s60, %d
    v_lshlrev_b32 v38, %d, v56
    v_add_u32 v38, s60, v38
    v_lshrrev_b32 v59, 2, v1
    v_and_b32 v50, 3, v1
    v_lshlrev_b32 v42, 4, v50
    v_lshl_add_u32 v42, v59, 8, v42
    v_lshlrev_b32 v43, 4, v59
    v_and_b32 v58, 1, v1
    v_lshrrev_b32 v48, 1, v1
    v_lshlrev_b32 v48, 10, v48
    v_lshl_add_u32 v48, v58, 4, v48
    v_lshl_add_u32 v46, v3, 2, v2
    v_lshlrev_b32 v46, 1, v46
    """ % (ORED, 2 if maxfirst else 3, MLR, 4 if maxfirst else 5) + ("""
    v_lshlrev_b32 v49, 4, v56
    v_add_u32 v49, %d, v49
    """ % MLR if maxfirst else ""))
    chunks.append("""
    ; wo tile: rows 1024*kvh + 128*(j>>2) + wave + 4*(t&1) + 8*g + 32*(t>>1), columns 256*(j&3) .. +255
    s_mov_b32 s30, 0x800000
    s_mov_b32 s31, 0x20000
    s_movk_i32 s34, 4096
    s_mov_b32 s35, 0x20000
    s_lshl_b32 s48, s6, 21
    s_lshr_b32 s61, s4, 2
    s_lshl_b32 s61, s61, 18
    s_add_u32 s48, s48, s61
    s_and_b32 s61, s4, 3
    s_lshl_b32 s61, s61, 9
    s_add_u32 s48, s48, s61
    s_lshl_b32 s61, s40, 11
    s_add_u32 s48, s48, s61
    v_lshlrev_b32 v27, 4, v3
    v_lshl_add_u32 v27, v2, 14, v27
    """ + ("""
    s_sub_u32 s67, s48, s61
    s_lshl_b32 s61, s40, 7
    s_add_u32 s67, s67, s61
    s_add_u32 s67, s67, %d
    """ % (96 * 2048) if hyb else ""))
    chunks.append("""
    ; hand-off slots of the o partials and of their (max, sum) pairs
    s_lshl_b32 s51, s3, 16
    s_lshl_b32 s60, s40, 14
    s_add_u32 s51, s51, s60
    s_lshl_b32 s60, s4, 8
    s_add_u32 s51, s51, s60
    s_add_u32 s51, s51, %d
    s_lshl_b32 s52, s3, 11
    s_lshl_b32 s60, s40, 9
    s_add_u32 s52, s52, s60
    s_and_b32 s60, s4, 15
    s_lshl4_add_u32 s52, s60, s52
    s_lshr_b32 s60, s4, 4
    s_lshl3_add_u32 s52, s60, s52
    s_add_u32 s52, s52, %d
    s_lshr_b32 s61, s4, 2
    s_lshl3_add_u32 s61, s3, s61
    s_lshl_b32 s53, s61, 13
    s_lshl_b32 s60, s40, 6
    s_add_u32 s53, s53, s60
    s_add_u32 s53, s53, %d
    s_add_u32 s66, s53, 4096
    s_lshl_b32 s54, s61, 8
    s_add_u32 s54, s54, %d
    """ % (E2O, ML, E2O, ML))
    c = """
    """
    if o["inbox"]:
        c += """
        s_and_b32 s60, s4, 3
        s_lshl2_add_u32 s55, s5, s60
        s_lshl_b32 s55, s55, 15
        s_lshr_b32 s60, s4, 2
        s_lshl3_add_u32 s60, s6, s60
        s_lshl_b32 s60, s60, 5
        s_add_u32 s55, s55, s60
        s_lshl_b32 s60, s40, 13
        s_add_u32 s55, s55, s60
        s_add_u32 s55, s55, %d
        s_lshl_b32 s56, s3, 15
        s_lshl_b32 s60, s4, 10
        s_add_u32 s56, s56, s60
        s_add_u32 s56, s56, %d
        v_mov_b32 v49, v48
        v_mov_b32 v48, v26
        """ % (E3, E3)
    else:
        c += """
        s_and_b32 s60, s4, 3
        s_lshl2_add_u32 s55, s5, s60
        s_lshl_b32 s55, s55, 5
        s_lshl3_add_u32 s55, s6, s55
        s_lshr_b32 s60, s4, 2
        s_add_u32 s55, s55, s60
        s_lshl2_add_u32 s55, s55, s40
        s_lshl_b32 s55, s55, 8
        s_add_u32 s55, s55, %d
        s_lshl_b32 s56, s3, 15
        s_lshl_b32 s60, s4, 5
        s_add_u32 s56, s56, s60
        s_add_u32 s56, s56, %d
        """ % (E3, E3)
    c += """
    s_lshl_b32 s57, s3, 9
    s_lshl4_add_u32 s57, s4, s57
    s_mov_b32 s62, 0x05040100
    s_mov_b32 s63, 0x07060302
    s_mov_b32 s64, 0x00ff00ff
    s_mov_b32 s65, 0x00ff00ff
    """
    if o["dump"]:
        c += "v_lshlrev_b32 v60, 6, v0\ns_lshl_b32 s60, s2, 14\nv_add_u32 v60, s60, v60\n"
    chunks.append(c)
    chunks.append("""
    s_waitcnt lgkmcnt(0)
    s_add_u32 s43, s43, 1
    s_and_b32 s41, s43, s42
    v_mov_b32 v32, s41
    v_mov_b32 v47, 0x3f803f80
    """)

    def chunk():
        if chunks:
            e(chunks.pop(0))

    for _ in range(o["early_chunks"]):
        chunk()
    p.wait_vm(xop)
    e("v_lshl_or_b32 v4, v4, 16, v4")

    def build_a(dst, src, t):
        for d in range(4):
            e("v_and_b32_dpp v%d, v%d, v%d row_newbcast:%d row_mask:0xf bank_mask:0xf" % (dst + d, src, MASK + d, t))

    note("""q projection: a tile holds 4 rows x 128 columns; with a one-hot A operand carrying x[row] the MFMA
    gives D[e][n] += sum_g x[row g] * W[row g][8n + e]""")
    for t in range(16):
        build_a(AB[t & 1], 4, t)
        arrive(t)
        if t in (0, 4, 8, 12):
            stamp("wq%d" % t, 1)
        e("v_mfma_f32_16x16x32_bf16 %s, %s, %s, %s" % (
            vr(QACC), vr(AB[t & 1]), vr(DATA + 4 * t), "0" if t == 0 else vr(QACC)))
        top_up()
        chunk()
    assert not chunks
    stamp("qdone")
    e("v_mov_b32 v53, %d" % MODE)
    e("s_mov_b32 exec_hi, 0")
    e("ds_write_b128 v62, %s" % vr(QACC))
    e("s_mov_b64 exec, 0xff")
    e("s_waitcnt lgkmcnt(0)")
    stamp("preB1", 1)
    e("s_barrier")
    stamp("B1", 1)
    e("ds_read_b32 v52, v53")
    for w2 in range(4):
        e("ds_read_b128 %s, v63 offset:%d" % (vr(G1R + 4 * w2), 512 * w2))
    e("s_waitcnt lgkmcnt(0)")
    e("v_readfirstlane_b32 s69, v52")

    def sum4(R):
        for r in (0, 2):
            e("v_pk_add_f32 %s, %s, %s" % (vr(R + r, 2), vr(R + r, 2), vr(R + 4 + r, 2)))
            e("v_pk_add_f32 %s, %s, %s" % (vr(R + 8 + r, 2), vr(R + 8 + r, 2), vr(R + 12 + r, 2)))
        for r in (0, 2):
            e("v_pk_add_f32 %s, %s, %s" % (vr(R + r, 2), vr(R + r, 2), vr(R + 8 + r, 2)))

    def tag4(R):
        for r in range(4):
            e("v_bfi_b32 v%d, s42, v32, v%d" % (R + r, R + r))

    def pack4(R):
        e("v_cvt_pk_bf16_f32 v%d, v%d, v%d" % (R, R, R + 1))
        e("v_cvt_pk_bf16_f32 v%d, v%d, v%d" % (R + 1, R + 2, R + 3))
        e("v_min_u32 v%d, -2, v%d" % (R, R))
        e("v_min_u32 v%d, -2, v%d" % (R + 1, R + 1))

    sum4(G1R)
    if e1bf:
        pack4(G1R)
        handoff_stores(["buffer_store_dwordx2 %s, v33, s[36:39], s49 offen" % vr(G1R, 2)])
    else:
        tag4(G1R)
        handoff_stores(["buffer_store_dwordx4 %s, v26, s[36:39], s49 offen" % vr(G1R)])
    e("s_mov_b64 exec, -1")
    stamp("E1pub")
    PLO, PHI, ONES = AB[0], AB[1], QACC
    for r in range(4):
        e("v_mov_b32 v%d, v47" % (ONES + r))
    for r in range(8):
        e("v_mov_b32 v%d, 0" % (PLO + r))

    def k_read():
        note("K operands of the two 16-key tiles")
        for T in range(2):
            for s in range(4):
                e("ds_read_b128 %s, v%d offset:%d" % (vr(KOP + 16 * T + 4 * s), 28 + s, 16384 * T))
    actions[23] = k_read

    def v_perm(d):
        def f():
            note("V^T operands: pair element e of two consecutive key rows")
            for ee in range(8):
                e("v_perm_b32 v%d, v%d, v%d, s%d" % (
                    VT + 4 * ee + d, VRAW + 4 * (2 * d + 1) + (ee >> 1), VRAW + 4 * (2 * d) + (ee >> 1), 62 + (ee & 1)))
        return f
    for d in range(4):
        actions[24 + 2 * d + 1] = v_perm(d)

    def ortree(regs, tmp):
        regs = list(regs)
        e("v_or3_b32 v%d, v%d, v%d, v%d" % (tmp, regs[0], regs[1], regs[2]))
        regs = regs[3:]
        while len(regs) >= 2:
            e("v_or3_b32 v%d, v%d, v%d, v%d" % (tmp, tmp, regs[0], regs[1]))
            regs = regs[2:]
        if regs:
            e("v_or_b32 v%d, v%d, v%d" % (tmp, tmp, regs[0]))
        e("v_and_b32 v%d, s42, v%d" % (tmp, tmp))
        e("v_cmp_ne_u32 vcc, 0, v%d" % tmp)

    def gather1():
        s = None
        for u in range(2 if e1bf else 4):
            s = p.vm("buffer_load_dwordx4 %s, v45, s[36:39], s50 offen offset:%d sc1" % (
                vr(G1R + 4 * u), (256 if e1bf else 512) * u))
        return s

    pace(24 + o["G1"])
    g1 = gather1()
    stamp("g1iss")
    pace(len(seq) + o["B1"])
    arrive(23)
    SEL = [28, 29, 30, 31, 62, 63, 0, 33]
    if hyb:
        assert not e1bf and not o["dump"]
        e("""
        v_lshrrev_b32 v52, 3, v1
        v_and_b32 v53, 7, v1
        v_lshlrev_b32 v24, 4, v53
        v_lshl_add_u32 v24, v52, 11, v24
        v_lshlrev_b32 v22, 3, v52
        v_add_u32 v22, %d, v22
        v_lshl_add_u32 v25, v3, 1, v2
        v_lshlrev_b32 v25, 4, v25
        s_lshl_b32 s61, s40, 8
        s_add_u32 s61, s61, %d
        v_add_u32 v61, s61, v25
        s_lshl_b32 s61, s40, 3
        s_add_u32 s61, s61, %d
        v_lshlrev_b32 v23, 1, v2
        v_add_u32 v23, s61, v23
        v_and_b32 v52, 7, v3
        v_lshrrev_b32 v53, 1, v52
        v_and_b32 v52, 1, v3
        v_cmp_eq_u32 vcc, 1, v52
        v_mov_b32 v54, 0x0c0c0100
        v_mov_b32 v55, 0x01000c0c
        v_cndmask_b32 v54, v54, v55, vcc
        v_mov_b32 v52, 0x0c0c0302
        v_mov_b32 v55, 0x03020c0c
        v_cndmask_b32 v55, v52, v55, vcc
        v_mov_b32 v52, 0x0c0c0c0c
        """ % (OB, OUTRED, OB))
        for d in range(4):
            e("v_cmp_eq_u32 vcc, %d, v53" % d)
            e("v_cndmask_b32 v%d, v52, v54, vcc" % SEL[2 * d])
            e("v_cndmask_b32 v%d, v52, v55, vcc" % SEL[2 * d + 1])
    p.wait_vm(g1)
    e("L_chk1:")
    stamp("g1arr")
    if e1bf:
        T8 = G1R + 8
        for i in range(4):
            e("v_perm_b32 v%d, v%d, v%d, s62" % (T8 + 2 * i, G1R + 4 + i, G1R + i))
            e("v_perm_b32 v%d, v%d, v%d, s63" % (T8 + 2 * i + 1, G1R + 4 + i, G1R + i))
        for i in range(8):
            e("v_dot2_f32_bf16 v%d, v%d, v47, 0" % (T8 + i, T8 + i))
        e("v_max3_u32 v54, v%d, v%d, v%d" % (G1R, G1R + 1, G1R + 2))
        e("v_max3_u32 v55, v%d, v%d, v%d" % (G1R + 3, G1R + 4, G1R + 5))
        for i in range(4):
            e("v_permlane32_swap_b32 v%d, v%d" % (T8 + i, T8 + 4 + i))
        e("v_max3_u32 v54, v54, v%d, v%d" % (G1R + 6, G1R + 7))
        e("v_pk_add_f32 %s, %s, %s" % (vr(50, 2), vr(T8, 2), vr(T8 + 4, 2)))
        e("v_pk_add_f32 %s, %s, %s" % (vr(52, 2), vr(T8 + 2, 2), vr(T8 + 6, 2)))
        e("v_max_u32 v54, v54, v55")
        e("v_cvt_pk_bf16_f32 v50, v50, v51")
        e("v_cvt_pk_bf16_f32 v51, v52, v53")
        e("v_cmp_eq_u32 vcc, -1, v54")
        e("ds_write_b64 v34, v[50:51]")
    else:
        for r in range(16):
            e("v_xor_b32 v%d, s41, v%d" % (G1R + r, G1R + r))
        for r in (0, 2):
            e("v_pk_add_f32 %s, %s, %s" % (vr(50 + r, 2), vr(G1R + r, 2), vr(G1R + 4 + r, 2)))
            e("v_pk_add_f32 %s, %s, %s" % (vr(54 + r, 2), vr(G1R + 8 + r, 2), vr(G1R + 12 + r, 2)))
        for r in (0, 2):
            e("v_pk_add_f32 %s, %s, %s" % (vr(50 + r, 2), vr(50 + r, 2), vr(54 + r, 2)))
        e("v_cvt_pk_bf16_f32 v50, v50, v51")
        e("v_cvt_pk_bf16_f32 v51, v52, v53")
        e("ds_write_b64 v34, v[50:51]")
        ortree(range(G1R, G1R + 16), 54)
    e("s_cbranch_vccz L_ok1")
    retry_code("L_retry1", "L_chk1", gather1)
    e("L_ok1:")
    throttle[0] = True
    if o["vstep"] and o["G1"]:
        arrive(24 + o["G1"] - 1)
    e("s_waitcnt lgkmcnt(0)")
    stamp("preB2", 1)
    e("s_barrier")
    stamp("B2", 1)
    for s4 in range(4):
        e("ds_read_b128 %s, v35 offset:%d" % (vr(QOP + 4 * s4), 64 * s4))
    spr = list(o["spr"])
    sprinkle(spr[0])
    S = G1R
    for s4 in range(4):
        e("s_waitcnt lgkmcnt(%d)" % (0 if o["stamps"] or o["dump"] else 3 - s4))
        if s4 == 0:
            stamp("qop", 1)
            dump(QOP, 16, 0)
        for T in range(2):
            e("v_mfma_f32_16x16x32_bf16 %s, %s, %s, %s" % (
                vr(S + 4 * T), vr(KOP + 16 * T + 4 * s4), vr(QOP + 4 * s4), "0" if s4 == 0 else vr(S + 4 * T)))
    sprinkle(spr[1])
    C = SCALE * LOG2E
    if o["mimic"]:
        e("s_mov_b32 s60, 0x%x" % f32bits(SCALE))
        for rnd in range(2):
            for d in range(4):
                e("v_cvt_pk_bf16_f32 v%d, v%d, v%d" % (50 + d, S + 2 * d, S + 2 * d + 1))
            for d in range(4):
                e("v_lshlrev_b32 v%d, 16, v%d" % (S + 2 * d, 50 + d))
                e("v_and_b32 v%d, 0xffff0000, v%d" % (S + 2 * d + 1, 50 + d))
            if rnd == 0:
                for r in range(8):
                    e("v_mul_f32 v%d, s60, v%d" % (S + r, S + r))
        C = LOG2E
    dump(S, 8, 1)
    e("s_mov_b32 s60, 0x%x" % f32bits(C))
    e("v_max3_f32 v50, v%d, v%d, v%d" % (S, S + 1, S + 2))
    e("v_max3_f32 v51, v%d, v%d, v%d" % (S + 4, S + 5, S + 6))
    e("v_max3_f32 v50, v50, v%d, v%d" % (S + 3, S + 7))
    e("v_max_f32 v50, v50, v51")
    e("v_mov_b32 v51, v50")
    e("v_permlane16_swap_b32 v50, v51")
    e("v_max_f32 v50, v50, v51")
    e("v_mov_b32 v51, v50")
    e("v_permlane32_swap_b32 v50, v51")
    e("v_max_f32 v50, v50, v51")
    if maxfirst:
        note("exchange the row maxima between the waves")
        e("s_mov_b64 exec, 0xff")
        e("ds_write_b32 v38, v50")
        e("s_mov_b64 exec, -1")
        e("s_waitcnt lgkmcnt(0)")
        e("s_barrier")
        e("ds_read_b128 v[52:55], v49")
        e("ds_read_b128 v[56:59], v39")
        e("s_waitcnt lgkmcnt(%d)" % (0 if o["stamps"] else 1))
        e("v_max3_f32 v50, v52, v53, v54")
        e("v_max_f32 v50, v50, v55")
        e("v_mul_f32 v50, s60, v50")
        e("v_bfi_b32 v50, s42, 0, v50")
    else:
        e("v_mul_f32 v50, s60, v50")
    for r in range(8):
        e("v_fma_f32 v%d, v%d, s60, -v50" % (S + r, S + r))
    for r in range(8):
        e("v_exp_f32 v%d, v%d" % (S + r, S + r))
    e("s_mov_b64 exec, s[64:65]")
    for d in range(4):
        e("v_cvt_pk_bf16_f32 v%d, v%d, v%d" % (PLO + d, S + 2 * d, S + 2 * d + 1))
    e("s_not_b64 exec, s[64:65]")
    for d in range(4):
        e("v_cvt_pk_bf16_f32 v%d, v%d, v%d" % (PHI + d, S + 2 * d, S + 2 * d + 1))
    e("s_mov_b64 exec, -1")
    OA = VRAW
    LA = KOP
    e("v_mfma_f32_16x16x32_bf16 %s, %s, %s, 0" % (vr(LA), vr(ONES), vr(PLO)))
    e("v_mfma_f32_16x16x32_bf16 %s, %s, %s, %s" % (vr(LA), vr(ONES), vr(PHI), vr(LA)))
    stamp("smax")
    sprinkle(spr[2])
    if maxfirst:
        e("s_waitcnt lgkmcnt(0)")
        e("v_max3_f32 v56, v56, v57, v58")
        e("v_max_f32 v56, v56, v59")
        e("v_mul_f32 v56, s60, v56")
        e("v_bfi_b32 v56, s42, v32, v56")
        e("s_mov_b64 exec, 0xff")
        e("ds_write_b32 v38, v%d offset:128" % LA)
    else:
        e("s_mov_b64 exec, 0xff")
        e("ds_write2_b32 v38, v50, v%d offset0:0 offset1:1" % LA)
    e("s_mov_b64 exec, -1")
    pace(32)
    if o["vstep"]:
        arrive(27)
        arrive(29)
    arrive(31)
    stamp("varr", 1)
    for ep in range(4):
        e("v_mfma_f32_16x16x32_bf16 %s, %s, %s, 0" % (vr(OA + 4 * ep), vr(VT + 4 * ep), vr(PLO)))
    for ep in range(4):
        e("v_mfma_f32_16x16x32_bf16 %s, %s, %s, %s" % (vr(OA + 4 * ep), vr(VT + 4 * (ep + 4)), vr(PHI), vr(OA + 4 * ep)))
        if ep == 0:
            sprinkle(spr[3])
    for ep in range(4):
        e("ds_write_b128 v36, %s offset:%d" % (vr(OA + 4 * ep), 128 * ep))
    dump(OA, 16, 2)
    e("s_waitcnt lgkmcnt(0)")
    stamp("preB3", 1)
    e("s_barrier")
    stamp("B3", 1)
    R = VT
    if maxfirst:
        for w2 in range(4):
            e("ds_read_b128 %s, v37 offset:%d" % (vr(R + 4 * w2), 4224 * w2))
        e("ds_read_b128 %s, v39 offset:128" % vr(R + 16))
        sprinkle(spr[4])
        e("s_waitcnt lgkmcnt(1)" if not o["stamps"] else "s_waitcnt lgkmcnt(0)")
        sum4(R)
        e("s_waitcnt lgkmcnt(0)")
        e("v_pk_add_f32 %s, %s, %s" % (vr(R + 16, 2), vr(R + 16, 2), vr(R + 18, 2)))
        e("v_add_f32 v57, v%d, v%d" % (R + 16, R + 17))
    else:
        e("ds_read_b128 %s, v39" % vr(R + 16))
        e("ds_read_b128 %s, v39 offset:16" % vr(R + 20))
        for w2 in range(4):
            e("ds_read_b128 %s, v37 offset:%d" % (vr(R + 4 * w2), 4224 * w2))
        sprinkle(spr[4])
        e("s_waitcnt lgkmcnt(4)" if not o["stamps"] else "s_waitcnt lgkmcnt(0)")
        e("v_max3_f32 v56, v%d, v%d, v%d" % (R + 16, R + 18, R + 20))
        e("v_max_f32 v56, v56, v%d" % (R + 22))
        e("v_bfi_b32 v56, s42, 0, v56")
        for w2 in range(4):
            e("v_sub_f32 v%d, v%d, v56" % (52 + w2, R + 16 + 2 * w2))
        for w2 in range(4):
            e("v_exp_f32 v%d, v%d" % (52 + w2, 52 + w2))
        e("v_or_b32 v56, s41, v56")
        e("v_mul_f32 v57, v52, v%d" % (R + 17))
        for w2 in range(1, 4):
            e("v_fmac_f32 v57, v%d, v%d" % (52 + w2, R + 17 + 2 * w2))
        e("s_waitcnt lgkmcnt(0)")
        for r in range(4):
            e("v_mul_f32 v%d, v52, v%d" % (R + r, R + r))
        for w2 in range(1, 4):
            for r in range(4):
                e("v_fmac_f32 v%d, v%d, v%d" % (R + r, 52 + w2, R + 4 * w2 + r))
    e("v_bfi_b32 v57, s42, v32, v57")
    pack4(R)
    handoff_stores(["buffer_store_dwordx2 %s, v40, s[36:39], s51 offen" % vr(R, 2),
                    "s_mov_b32 exec_lo, 1", "s_mov_b32 exec_hi, 1",
                    "buffer_store_dwordx2 v[56:57], v41, s[36:39], s52 offen"])
    e("s_mov_b64 exec, -1")
    stamp("E2pub")
    sprinkle(spr[5])

    G2R = KOP
    OA_, OB_, M0 = G2R, G2R + 4, G2R + 8

    def gather2():
        p.vm("buffer_load_dwordx4 %s, v43, s[36:39], s54 offen sc1" % vr(M0))
        p.vm("buffer_load_dwordx4 %s, v42, s[36:39], s53 offen sc1" % vr(OA_))
        return p.vm("buffer_load_dwordx4 %s, v42, s[36:39], s66 offen sc1" % vr(OB_))

    pace(32 + o["G2"])
    g2 = gather2()
    stamp("g2iss")
    pace(len(seq) + o["B2"])
    p.wait_vm(g2)
    e("L_chk2:")
    stamp("g2arr")
    for r in range(4):
        e("v_xor_b32 v%d, s41, v%d" % (M0 + r, M0 + r))
    e("v_max_f32 v50, v%d, v%d" % (M0, M0 + 2))
    e("v_max3_u32 v53, v%d, v%d, v%d" % (OA_, OA_ + 1, OA_ + 2))
    e("v_max3_u32 v53, v53, v%d, v%d" % (OA_ + 3, OB_))
    e("v_max_f32_dpp v50, v50, v50 row_ror:4 row_mask:0xf bank_mask:0xf")
    e("v_max3_u32 v53, v53, v%d, v%d" % (OB_ + 1, OB_ + 2))
    e("v_max_u32 v53, v53, v%d" % (OB_ + 3))
    e("v_max_f32_dpp v50, v50, v50 row_ror:8 row_mask:0xf bank_mask:0xf")
    e("v_or3_b32 v52, v%d, v%d, v%d" % (M0, M0 + 1, M0 + 2))
    e("v_mov_b32 v51, v50")
    e("v_or_b32 v52, v52, v%d" % (M0 + 3))
    e("v_and_b32 v52, s42, v52")
    e("v_permlane16_swap_b32 v50, v51")
    e("v_max_f32 v50, v50, v51")
    e("v_mov_b32 v51, v50")
    e("v_cmp_eq_u32 vcc, -1, v53")
    e("v_cmp_ne_u32 s[10:11], 0, v52")
    e("v_permlane32_swap_b32 v50, v51")
    e("v_max_f32 v50, v50, v51")
    A8 = G2R + 12
    e("v_sub_f32 v52, v%d, v50" % M0)
    e("v_sub_f32 v53, v%d, v50" % (M0 + 2))
    e("v_exp_f32 v52, v52")
    e("v_exp_f32 v53, v53")
    e("s_or_b64 vcc, vcc, s[10:11]")
    e("s_cbranch_vccz L_ok2")
    retry_code("L_retry2", "L_chk2", gather2)
    e("L_ok2:")
    e("v_cvt_pk_bf16_f32 v54, v52, v53")
    for i in range(4):
        e("v_perm_b32 v%d, v%d, v%d, s62" % (A8 + 2 * i, OB_ + i, OA_ + i))
        e("v_perm_b32 v%d, v%d, v%d, s63" % (A8 + 2 * i + 1, OB_ + i, OA_ + i))
    e("v_lshlrev_b32 v52, 16, v54")
    e("v_and_b32 v53, 0xffff0000, v54")
    e("v_mul_f32 v51, v52, v%d" % (M0 + 1))
    e("v_fmac_f32 v51, v53, v%d" % (M0 + 3))
    for i in range(8):
        e("v_dot2_f32_bf16 v%d, v%d, v54, 0" % (A8 + i, A8 + i))
    e("v_add_f32_dpp v51, v51, v51 row_ror:4 row_mask:0xf bank_mask:0xf")
    for b in (0, 4):
        e("v_permlane32_swap_b32 v%d, v%d" % (A8 + b, A8 + b + 2))
        e("v_permlane32_swap_b32 v%d, v%d" % (A8 + b + 1, A8 + b + 3))
    e("v_add_f32_dpp v51, v51, v51 row_ror:8 row_mask:0xf bank_mask:0xf")
    for b in (0, 4):
        e("v_add_f32 v%d, v%d, v%d" % (A8 + b, A8 + b, A8 + b + 2))
        e("v_add_f32 v%d, v%d, v%d" % (A8 + b + 1, A8 + b + 1, A8 + b + 3))
    e("v_mov_b32 v50, v51")
    e("v_permlane16_swap_b32 v%d, v%d" % (A8, A8 + 1))
    e("v_permlane16_swap_b32 v%d, v%d" % (A8 + 4, A8 + 5))
    e("v_permlane16_swap_b32 v50, v51")
    e("v_add_f32 v%d, v%d, v%d" % (A8, A8, A8 + 1))
    e("v_add_f32 v%d, v%d, v%d" % (A8 + 4, A8 + 4, A8 + 5))
    e("v_add_f32 v51, v50, v51")
    e("v_add_f32_dpp v%d, v%d, v%d row_ror:4 row_mask:0xf bank_mask:0xf" % (A8, A8, A8))
    e("v_mov_b32 v50, v51")
    e("v_add_f32_dpp v%d, v%d, v%d row_ror:4 row_mask:0xf bank_mask:0xf" % (A8 + 4, A8 + 4, A8 + 4))
    e("v_add_f32_dpp v%d, v%d, v%d row_ror:8 row_mask:0xf bank_mask:0xf" % (A8, A8, A8))
    e("v_permlane32_swap_b32 v50, v51")
    e("v_add_f32 v51, v50, v51")
    e("v_add_f32_dpp v%d, v%d, v%d row_ror:8 row_mask:0xf bank_mask:0xf" % (A8 + 4, A8 + 4, A8 + 4))
    e("v_rcp_f32 v51, v51")
    X = (4, 5)
    e("v_mul_f32 v%d, v%d, v51" % (A8, A8))
    e("v_mul_f32 v%d, v%d, v51" % (A8 + 4, A8 + 4))
    e("v_cvt_pk_bf16_f32 v%d, v%d, v%d" % (X[0], A8, A8))
    e("v_cvt_pk_bf16_f32 v%d, v%d, v%d" % (X[1], A8 + 4, A8 + 4))
    dump(X[0], 1, 3)
    dump(X[1], 1, 4)
    stamp("ordy")
    OUT0, OUT1 = G1R, G1R + 4
    A4 = 56
    if hyb:
        e("s_mov_b32 exec_lo, 0x00080008\ns_mov_b32 exec_hi, 0x00080008")
        e("ds_write_b16 v23, v%d" % X[0])
        e("ds_write_b16 v23, v%d offset:32" % X[1])
        e("s_mov_b64 exec, -1")
        issue(16)
        build_a(AB[0], X[0], 0)
        for t in range(6):
            for c2, acc in ((0, OUT0), (1, OUT1)):
                arrive(32 + 2 * t + c2)
                e("v_mfma_f32_16x16x32_bf16 %s, %s, %s, %s" % (
                    vr(acc), vr(AB[t & 1]), vr(DATA + 8 * t + 4 * c2), "0" if t == 0 else vr(acc)))
                if c2 == 0 and t < 5:
                    build_a(AB[(t + 1) & 1], X[(t + 1) & 1], (t + 1) >> 1)
        for r in range(4):
            e("v_mov_b32 v%d, 0" % (R + r))
        e("s_mov_b32 exec_hi, 0")
        e("ds_write_b128 v44, %s" % vr(OUT0))
        e("ds_write_b128 v44, %s offset:512" % vr(OUT1))
        e("s_mov_b64 exec, -1")
        e("s_waitcnt lgkmcnt(0)")
        stamp("preB4", 1)
        e("s_barrier")
        stamp("B4", 1)
        XD = QOP + 8
        AU = KOP
        e("ds_read_b64 %s, v22" % vr(XD, 2))
        e("s_mov_b32 exec_lo, 0x00ff00ff\ns_mov_b32 exec_hi, 0")
        for w2 in range(4):
            e("ds_read_b128 %s, v61 offset:%d" % (vr(R + 4 * w2), 1024 * w2))
        e("s_mov_b64 exec, -1")
        e("s_waitcnt lgkmcnt(%d)" % (0 if o["stamps"] else 4))
        for u in range(4):
            for d in range(4):
                e("v_perm_b32 v%d, v%d, v%d, v%d" % (AU + 4 * u + d, XD + (u >> 1), XD + (u >> 1), SEL[2 * d + (u & 1)]))
        e("s_mov_b32 exec_lo, 0x00ff00ff\ns_mov_b32 exec_hi, 0")
        e("s_waitcnt lgkmcnt(0)")
        sum4(R)
        e("s_mov_b64 exec, -1")
        for u in range(4):
            arrive(44 + u)
            e("v_mfma_f32_16x16x32_bf16 %s, %s, %s, %s" % (vr(R), vr(AU + 4 * u), vr(DATA + 48 + 4 * u), vr(R)))
        stamp("opdone")
        for r in range(4):
            e("v_permlane32_swap_b32 v%d, v%d" % (R + r, R + 4 + r))
        for r in range(4):
            e("v_add_f32_dpp v%d, v%d, v%d row_ror:8 row_mask:0xf bank_mask:0xf" % (R + r, R + 4 + r, R + r))
        tag4(R)
        e("s_mov_b32 exec_lo, 0x00ff00ff\ns_mov_b32 exec_hi, 0")
        p.vm("buffer_store_dwordx4 %s, v25, s[36:39], s55 offen sc1" % vr(R))
    else:
        issue(16)
        build_a(AB[0], X[0], 0)
        for t in range(8):
            for c2, acc in ((0, OUT0), (1, OUT1)):
                if t == 7 and c2 == 1:
                    e("s_mov_b32 exec_hi, 0")
                    e("ds_write_b128 v44, %s" % vr(OUT0))
                    e("s_mov_b64 exec, -1")
                arrive(32 + 2 * t + c2)
                e("v_mfma_f32_16x16x32_bf16 %s, %s, %s, %s" % (
                    vr(acc), vr(AB[t & 1]), vr(DATA + 8 * t + 4 * c2), "0" if t == 0 else vr(acc)))
                if c2 == 0 and t < 7:
                    build_a(AB[(t + 1) & 1], X[(t + 1) & 1], (t + 1) >> 1)
        stamp("opdone")
        e("s_mov_b32 exec_hi, 0")
        e("ds_write_b128 v44, %s offset:512" % vr(OUT1))
        e("s_mov_b64 exec, 0xffff")
        e("s_waitcnt lgkmcnt(0)")
        stamp("preB4", 1)
        e("s_barrier")
        stamp("B4", 1)
        for w2 in range(4):
            e("ds_read_b128 %s, v61 offset:%d" % (vr(R + 4 * w2), 1024 * w2))
        e("s_waitcnt lgkmcnt(0)")
        sum4(R)
        tag4(R)
        p.vm("buffer_store_dwordx4 %s, v%d, s[36:39], s55 offen sc1" % (vr(R), 49 if o["inbox"] else 26))
    e("s_mov_b64 exec, -1")
    stamp("E3pub")
    def final_reduce():
        QR = VRAW
        e("L_retry3:")
        p.vm("buffer_load_dwordx4 %s, v48, s[36:39], s56 offen sc1" % vr(QR))
        e("s_waitcnt vmcnt(0)")
        for r in range(4):
            e("v_xor_b32 v%d, s41, v%d" % (A4 + r, QR + r))
        ortree(range(A4, A4 + 4), 52)
        e("s_cbranch_vccz L_got3")
        e("s_mov_b64 exec, vcc")
        e("s_sub_u32 s59, s59, 1")
        e("s_cbranch_scc0 L_retry3")
        e("s_branch L_end")
        e("L_got3:")
        e("s_mov_b64 exec, -1")
        stamp("got3", 1)
        e("v_permlane32_swap_b32 v%d, v%d" % (A4, A4 + 2))
        e("v_permlane32_swap_b32 v%d, v%d" % (A4 + 1, A4 + 3))
        e("v_add_f32 v%d, v%d, v%d" % (A4, A4, A4 + 2))
        e("v_add_f32 v%d, v%d, v%d" % (A4 + 1, A4 + 1, A4 + 3))
        e("v_permlane16_swap_b32 v%d, v%d" % (A4, A4 + 1))
        e("v_add_f32 v%d, v%d, v%d" % (A4, A4, A4 + 1))
        for k in (2, 4, 8):
            e("v_add_f32_dpp v%d, v%d, v%d row_ror:%d row_mask:0xf bank_mask:0xf" % (A4, A4, A4, k))
        e("v_cvt_pk_bf16_f32 v%d, v%d, v%d" % (A4, A4, A4))
        e("s_mov_b32 exec_lo, 0x00030003\ns_mov_b32 exec_hi, 0x00030003")
        p.vm("buffer_store_short v%d, v46, s[32:35], s57 offen" % A4)
        e("s_and_b32 s60, s2, 0xfb")
        e("s_cbranch_scc1 L_hfin" if o["hcons"] else "s_cbranch_scc1 L_fin")
        e("s_mov_b64 exec, 1")
        e("v_mov_b32 v50, s43")
        e("v_mov_b32 v51, 0")
        p.vm("buffer_store_dword v50, v51, s[36:39], s7 offen sc1")

    if o["hcons"]:
        note("the last wave leaves a completion hint for the group's helpers")
        e("""
        s_cmp_lg_u32 s40, %d
        s_cbranch_scc1 L_fin
        s_lshl_b32 s60, s3, 7
        s_add_u32 s60, s60, %d
        s_lshl2_add_u32 s61, s4, s60
        v_mov_b32 v50, s43
        v_mov_b32 v51, 0
        s_mov_b64 exec, 1
        buffer_store_dword v50, v51, s[36:39], s61 offen
        """ % (o["flw"], FL))
    else:
        e("s_cmp_lg_u32 s40, 0")
        e("s_cbranch_scc1 L_fin")
        if o["lflag"]:
            note("""leave a completion hint; with one L2 for the group wait for the group's hints, so that the slots of
            producers that are still running are not polled across dies (the hints only time the gather)""")
            e("""
            s_lshl_b32 s60, s3, 7
            s_add_u32 s60, s60, %d
            s_lshl2_add_u32 s61, s4, s60
            v_mov_b32 v50, s43
            v_mov_b32 v51, 0
            s_mov_b64 exec, 1
            buffer_store_dword v50, v51, s[36:39], s61 offen
            s_mov_b64 exec, -1
            v_and_b32 v53, 31, v1
            v_lshlrev_b32 v53, 2, v53
            s_cmp_lg_u32 s69, 0
            s_cbranch_scc1 L_nofl
            L_flp:
            s_sub_u32 s59, s59, 1
            s_cbranch_scc1 L_end
            buffer_load_dword v52, v53, s[36:39], s60 offen sc1
            s_waitcnt vmcnt(0)
            v_cmp_ne_u32 vcc, s43, v52
            s_cbranch_vccnz L_flp
            L_nofl:
            """ % FL)
        e("s_waitcnt vmcnt(0)")
        stamp("ack3", 1)
        final_reduce()
    e("L_fin:")
    if o["probe"]:
        a, b, k, wg = o["probe"]
        stamp("fin")
        e("s_cmp_lg_u32 s2, %d\ns_cbranch_scc1 L_end\ns_cmp_lg_u32 s40, 0\ns_cbranch_scc1 L_end" % wg)
        e("s_waitcnt lgkmcnt(0)")
        e("s_sub_u32 s60, s%d, s%d" % (70 + 2 * names.index(b), 70 + 2 * names.index(a)))
        e("s_mul_i32 s60, s60, %d" % k)
        e("L_probe:")
        e("s_memrealtime s[62:63]\ns_waitcnt lgkmcnt(0)")
        e("s_sub_u32 s61, s62, s%d" % (70 + 2 * (stamp_n[0] - 1)))
        e("s_cmp_lt_u32 s61, s60\ns_cbranch_scc1 L_probe")
        e("s_branch L_end")
    elif o["stamps"]:
        stamp("fin")
        e("s_mov_b64 exec, 1")
        e("s_getreg_b32 s68, hwreg(HW_REG_XCC_ID)")
        e("s_mov_b32 s69, s59")
        e("s_waitcnt lgkmcnt(0)")
        for i in range(32):
            e("v_mov_b32 v%d, s%d" % (64 + i, 68 + i))
        e("s_lshl_b32 s60, s2, 2\ns_add_u32 s60, s60, s40\ns_lshl_b32 s60, s60, 7\ns_add_u32 s60, s60, %d" % TS_OFF)
        e("v_mov_b32 v51, 0")
        for i in range(8):
            p.vm("buffer_store_dwordx4 %s, v51, s[36:39], s60 offen offset:%d" % (vr(64 + 4 * i), 16 * i))
    e("L_end:")
    e("s_endpgm")

    note("""helper wave: clears the slots that carry bare bf16 data to the sentinel 0xffffffff, exchanges die ids
    with the group (word = epoch + 1 with the die id in bits 13:10) and leaves the store mode
    (0 = one L2 for the whole group) in LDS before it ends""")
    clears = ["buffer_store_dwordx4 v[52:55], v40, s[36:39], s51 offen",
              "buffer_store_dwordx4 v[52:55], v40, s[36:39], s52 offen"]
    e("""
    L_helper:
    v_and_b32 v1, 63, v0
    s_and_b32 s3, s2, 7
    s_lshr_b32 s4, s2, 3
    s_and_b32 s6, s2, 3
    s_mov_b32 s38, %d
    s_mov_b32 s39, 0x20000
    s_lshl_b32 s7, s5, 8
    v_lshlrev_b32 v40, 4, v3
    v_lshl_add_u32 v40, v2, 13, v40
    s_lshl_b32 s51, s3, 16
    s_lshl_b32 s61, s4, 8
    s_add_u32 s51, s51, s61
    s_add_u32 s51, s51, %d
    s_add_u32 s52, s51, 32768
    v_mov_b32 v52, -1
    v_mov_b32 v53, -1
    v_mov_b32 v54, -1
    v_mov_b32 v55, -1
    v_lshlrev_b32 v26, 4, v1
    s_waitcnt lgkmcnt(0)
    s_load_dword s43, s[36:37], s7
    """ % (WS_BYTES, E2O))
    for t in clears:
        e(t)
    if e1bf:
        e("""
        s_and_b32 s60, s4, 7
        s_lshl3_add_u32 s60, s3, s60
        s_lshr_b32 s61, s4, 3
        s_lshl2_add_u32 s49, s60, s61
        s_lshl_b32 s49, s49, 8
        s_add_u32 s49, s49, %d
        s_mov_b64 exec, 0xffff
        buffer_store_dwordx4 v[52:55], v26, s[36:39], s49 offen
        s_mov_b64 exec, -1
        """ % E1)
    e("""
    s_movk_i32 s42, %d
    s_mov_b32 s59, %d
    s_getreg_b32 s60, hwreg(HW_REG_XCC_ID, 0, 4)
    s_lshl_b32 s69, s60, 10
    s_lshl_b32 s68, s3, 7
    s_add_u32 s68, s68, %d
    s_lshl2_add_u32 s67, s4, s68
    v_mov_b32 v57, 0
    v_and_b32 v47, 31, v1
    v_lshlrev_b32 v47, 2, v47
    """ % (TAGMASK, o["retry"], E0))
    if o["prew3"] and o["inbox"]:
        e("""
        s_and_b32 s60, s4, 3
        s_lshl2_add_u32 s55, s5, s60
        s_lshl_b32 s55, s55, 15
        s_lshr_b32 s60, s4, 2
        s_lshl3_add_u32 s60, s6, s60
        s_lshl_b32 s60, s60, 5
        s_add_u32 s55, s55, s60
        s_add_u32 s55, s55, %d
        v_lshrrev_b32 v26, 1, v1
        v_lshlrev_b32 v26, 10, v26
        v_and_b32 v60, 1, v1
        v_lshl_add_u32 v26, v60, 4, v26
        """ % E3)
    elif o["prew3"]:
        e("""
        s_and_b32 s60, s4, 3
        s_lshl2_add_u32 s55, s5, s60
        s_lshl_b32 s55, s55, 5
        s_lshl3_add_u32 s55, s6, s55
        s_lshr_b32 s60, s4, 2
        s_add_u32 s55, s55, s60
        s_lshl_b32 s55, s55, 10
        s_add_u32 s55, s55, %d
        """ % E3)
    if o["prew3"]:
        e("""
        v_mov_b32 v60, 0
        v_mov_b32 v61, 1
        v_mov_b32 v62, 2
        v_mov_b32 v63, 3
        """)
    e("s_waitcnt vmcnt(0) lgkmcnt(0)" if e1bf else "s_waitcnt lgkmcnt(0)")
    e("""
    s_add_u32 s43, s43, 1
    s_and_b32 s41, s43, s42
    s_mov_b32 s42, 0xffffc3ff
    s_and_b32 s46, s43, s42
    s_or_b32 s69, s69, s46
    s_mov_b32 s46, s69
    v_mov_b32 v56, s69
    s_mov_b64 exec, 1
    buffer_store_dword v56, v57, s[36:39], s67 offen sc1
    """)
    if o["lflag"] & 2:
        e("s_add_u32 s60, s67, %d" % (FL - E0))
        e("buffer_store_dword v57, v57, s[36:39], s60 offen")
    e("s_mov_b64 exec, -1")
    if o["prew3"]:
        note("an invalid granule written ahead makes the later write-through of the output partials faster")
        e("buffer_store_dwordx4 v[60:63], v26, s[36:39], s55 offen sc1")
    if o["e0ack"]:
        e("s_waitcnt vmcnt(0)")
    if o["e0s"]:
        e("""
        s_add_u32 s10, s36, s68
        s_addc_u32 s11, s37, 0
        L_hpoll:
        s_sub_u32 s59, s59, 1
        s_cbranch_scc1 L_end
        s_load_dwordx16 s[68:83], s[10:11], 0 glc
        s_load_dwordx16 s[84:99], s[10:11], 64 glc
        s_waitcnt lgkmcnt(0)
        """.replace("s[68:83]", "s[64:79]").replace("s[84:99]", "s[80:95]"))
        e("s_xor_b32 s60, s64, s46")
        for i in range(1, 32):
            e("s_xor_b32 s61, s%d, s46" % (64 + i))
            e("s_or_b32 s60, s60, s61")
        e("""
        s_and_b32 s61, s60, s42
        s_cbranch_scc1 L_hpoll
        s_mov_b32 s69, s60
        s_waitcnt vmcnt(0)
        """)
    else:
        e("""
        L_hpoll:
        s_sub_u32 s59, s59, 1
        s_cbranch_scc1 L_end
        buffer_load_dword v58, v47, s[36:39], s68 offen sc1
        s_waitcnt vmcnt(0)
        v_xor_b32 v58, s69, v58
        v_and_b32 v59, s42, v58
        v_cmp_ne_u32 vcc, 0, v59
        s_cbranch_vccnz L_hpoll
        v_cmp_ne_u32 vcc, 0, v58
        s_or_b32 s69, vcc_lo, vcc_hi
        """)
    if o["force_global"]:
        e("s_mov_b32 s69, 1")
    e("""
    s_cmp_lg_u32 s69, 0
    s_cbranch_scc1 L_hglob
    L_hdone:
    v_mov_b32 v56, s69
    v_mov_b32 v57, %d
    ds_write_b32 v57, v56
    s_waitcnt lgkmcnt(0)
    """ % MODE)
    if o["hcons"]:
        e("""
        s_barrier
        s_load_dwordx2 s[32:33], s[0:1], 80
        s_movk_i32 s34, 4096
        s_mov_b32 s35, 0x20000
        s_movk_i32 s42, %d
        v_and_b32 v58, 1, v1
        v_lshrrev_b32 v48, 1, v1
        v_lshlrev_b32 v48, 10, v48
        v_lshl_add_u32 v48, v58, 4, v48
        v_lshl_add_u32 v46, v3, 2, v2
        v_lshlrev_b32 v46, 1, v46
        s_lshl_b32 s56, s3, 15
        s_lshl_b32 s60, s4, 5
        s_add_u32 s56, s56, s60
        s_add_u32 s56, s56, %d
        s_lshl_b32 s57, s3, 9
        s_lshl4_add_u32 s57, s4, s57
        s_lshl_b32 s60, s3, 7
        s_add_u32 s60, s60, %d
        s_waitcnt lgkmcnt(0)
        s_barrier
        s_barrier
        s_barrier
        s_cmp_lg_u32 s69, 0
        s_cbranch_scc1 L_nofl
        L_flp:
        s_sub_u32 s59, s59, 1
        s_cbranch_scc1 L_end
        buffer_load_dword v52, v47, s[36:39], s60 offen sc1
        s_waitcnt vmcnt(0)
        v_cmp_ne_u32 vcc, s43, v52
        s_cbranch_vccnz L_flp
        L_nofl:
        """ % (TAGMASK, E3, FL))
        if o["hdelay"]:
            for _ in range(o["hdelay"]):
                e("buffer_load_dword v52, v47, s[36:39], s60 offen sc1\ns_waitcnt vmcnt(0)")
        final_reduce()
        e("L_hfin:")
    e("s_endpgm")
    note("group spread over several dies: repeat the clears write-through" +
         (", then wait until the whole group has done so" if e1bf else ""))
    e("L_hglob:")
    for t in clears:
        e(t + " sc1")
    if e1bf:
        e("""
        s_mov_b64 exec, 0xffff
        buffer_store_dwordx4 v[52:55], v26, s[36:39], s49 offen sc1
        s_mov_b64 exec, 1
        s_waitcnt vmcnt(0)
        buffer_store_dword v56, v57, s[36:39], s67 offen offset:1024 sc1
        s_mov_b64 exec, -1
        L_hpoll2:
        s_sub_u32 s59, s59, 1
        s_cbranch_scc1 L_end
        buffer_load_dword v58, v47, s[36:39], s68 offen offset:1024 sc1
        s_waitcnt vmcnt(0)
        v_xor_b32 v58, s46, v58
        v_and_b32 v58, s42, v58
        v_cmp_ne_u32 vcc, 0, v58
        s_cbranch_vccnz L_hpoll2
        """)
    else:
        e("s_waitcnt vmcnt(0)")
    e("s_branch L_hdone")
    for k, texts in cold:
        e("L_glob%d:" % k)
        for t in texts:
            e(t + (" sc1" if t.startswith("buffer") else ""))
        e("s_branch L_st%d" % k)

    head = """; Fused decode attention for both branches: q = x Wq, GQA attention over the last 4096 keys, out = o Wo.
; One launch of 256 workgroups, 32 per (branch, kv head); all of them are resident at once.
; Every byte of Wq, K, V and Wo is loaded exactly once, as one paced stream per wave.  Three hand-offs go
; through d_ws: q partials and o partials inside a group, output partials across the four groups of a branch.
; A handed-off word is valid when it carries this launch's tag (f32 data, tag in the low 10 mantissa bits)
; or differs from the sentinel its slot was cleared to earlier in this launch (packed bf16 data).
; @launch grid=(256,1,1) block=(320,1,1) lds=%d
.amdgcn_target "amdgcn-amd-amdhsa--gfx950"
.text
.globl %s_kernel
.p2align 8
.type %s_kernel,@function
""" % (LDS_BYTES, KN, KN)
    tail = """.section .rodata,"a"
.p2align 6
.amdhsa_kernel %s_kernel
  .amdhsa_next_free_vgpr 256
  .amdhsa_next_free_sgpr 102
  .amdhsa_accum_offset 256
  .amdhsa_group_segment_fixed_size 0
  .amdhsa_kernarg_size 104
  .amdhsa_user_sgpr_count 2
  .amdhsa_user_sgpr_kernarg_segment_ptr 1
  .amdhsa_system_sgpr_workgroup_id_x 1
  .amdhsa_float_denorm_mode_32 3
.end_amdhsa_kernel
""" % KN
    gen.names = names
    return head + p.text() + tail


if __name__ == "__main__":
    kw = eval("dict(%s)" % (sys.argv[2] if len(sys.argv) > 2 else ""))
    open(sys.argv[1], "w").write(gen(**kw))
```

```python
import struct
import sys
from asmlib import Prog

KN = "concat_heads__sliding_block_cached__sliding_block_cached__decode"
WS_BYTES = 301993984
TS_OFF = 200 << 20

EPOCH = 0x0
E0 = 0x1000
FL = 0x2000
E1 = 0x8000
ML = 0x30000
E3 = 0x40000
E2O = 0x80000
QRED = 32768
QB = 34816
ORED = 37120
MLR = 54016
OUTRED = 54272
MODE = 58368
OB = 58384
LDS_BYTES = 58464
TAGMASK = 0x3FF

DEFAULTS = dict(Wq=6, Wk=6, Wv=6, W=5, G1=4, B1=4, G2=12, B2=4, spr=(1, 1, 1, 1, 1, 1), early_chunks=2,
                e1bf=False, prew3=False, mimic=False, stamps=False, dump=False, probe=None, retry=1 << 20,
                force_global=False, e0s=False, e0ack=True, inbox=False, maxfirst=False, hyb=False, vstep=True, thr=0, thrspr=False, lflag=1, hcons=False, flw=3, hdelay=0, prew1=False, prewml=False, flate=False, swap3=False)


def f32bits(x):
    return struct.unpack("<I", struct.pack("<f", x))[0]


def vr(a, n=4):
    return "v[%d:%d]" % (a, a + n - 1)


def gen(**kw):
    o = dict(DEFAULTS)
    for k in kw:
        assert k in o, k
    o.update(kw)
    p = Prog()
    e = p.e
    e1bf = o["e1bf"]
    maxfirst, hyb = o["maxfirst"], o["hyb"]
    stamp_n = [0]
    names = []
    cold = []

    def note(text):
        for line in text.strip().split("\n"):
            e("; " + line.strip())

    def stamp(name, level=0):
        want = o["stamps"]
        if want and (name in want if isinstance(want, (list, tuple)) else level == 0):
            k = 70 + 2 * stamp_n[0]
            assert k <= 98
            e("s_memrealtime s[%d:%d]" % (k, k + 1))
            stamp_n[0] += 1
            names.append(name)

    def dump(reg, n, slot):
        if o["dump"]:
            e("s_mov_b32 s61, %d" % (TS_OFF + (1 << 20) + slot * (4 << 20)))
            for i in range(n):
                p.vm("buffer_store_dword v%d, v60, s[36:39], s61 offen offset:%d" % (reg + i, 4 * i))
            e("s_waitcnt vmcnt(0)")

    def handoff_stores(texts):
        k = len(cold) + 1
        e("s_cmp_eq_u32 s69, 0")
        e("s_cbranch_scc0 L_glob%d" % k)
        for t in texts:
            e(t)
        e("L_st%d:" % k)
        cold.append((k, texts))

    def retry_code(lb, chk, g):
        n0 = p.nvm
        e("%s:" % lb)
        if o["thr"] and lb == "L_retry1":
            e("s_mov_b32 s67, 1")
        e("s_sub_u32 s59, s59, 1")
        e("s_cbranch_scc1 L_end")
        g()
        e("s_waitcnt vmcnt(0)")
        e("s_branch %s" % chk)
        p.nvm = n0

    SCALE = 128 ** -0.5
    LOG2E = 1.4426950408889634
    DATA = 64
    KOP = 128
    VRAW = 160
    VT = 192
    G1R = 224
    QOP = 240
    AB = (10, 14)
    QACC = 18
    MASK = 6
    W = o["W"]

    e("%s_kernel:" % KN)
    note("""s2 = 8*j + grp, grp = 4*branch + kvh.  Waves 0-3 stream and compute, wave 4 is the helper.
    q tile: head j&7, rows 64*t + 16*(j>>3) + 4*wave + g (g = lane>>4, t = load index).""")
    e("""
    s_and_b32 s7, s2, 4
    s_mul_i32 s7, s7, 10
    s_add_u32 s8, s0, s7
    s_addc_u32 s9, s1, 0
    s_load_dwordx2 s[24:25], s[8:9], 24
    s_load_dwordx2 s[12:13], s[8:9], 0
    s_load_dwordx2 s[36:37], s[0:1], 96
    v_lshrrev_b32 v50, 6, v0
    v_bfe_u32 v2, v0, 4, 2
    v_readfirstlane_b32 s40, v50
    v_and_b32 v3, 15, v0
    s_cmpk_ge_u32 s2, 256
    s_cbranch_scc1 L_end
    v_lshlrev_b32 v5, 4, v3
    v_lshlrev_b32 v4, 7, v3
    v_lshl_add_u32 v5, v2, 13, v5
    v_lshl_add_u32 v4, v2, 1, v4
    s_bfe_u32 s5, s2, 0x10002
    s_cmp_eq_u32 s40, 4
    s_cbranch_scc1 L_helper
    s_mov_b32 s27, 0x20000
    s_mov_b32 s26, 0x800000
    s_movk_i32 s14, 2048
    s_mov_b32 s15, s27
    s_lshr_b32 s44, s2, 6
    s_lshl2_add_u32 s44, s44, s40
    s_and_b32 s45, s2, 3
    s_lshl4_add_u32 s45, s44, s45
    s_lshl_b32 s45, s45, 6
    s_and_b32 s60, s2, 56
    s_add_u32 s45, s45, s60
    s_lshl_b32 s45, s45, 5
    s_lshl_b32 s44, s44, 3
    s_waitcnt lgkmcnt(0)
    """)
    stamp("entry")
    xop = p.vm("buffer_load_ushort v4, v4, s[12:15], s44 offen")

    stream = []
    for t in range(16):
        def f(t=t):
            s = p.vm("buffer_load_dwordx4 %s, v5, s[24:27], s45 offen nt" % vr(DATA + 4 * t))
            if t < 15:
                e("s_add_u32 s45, s45, %d" % (64 * 8192))
            return s
        stream.append(f)
    for jj in range(8):
        def f(jj=jj):
            e("s_mov_b32 m0, s58")
            if jj < 7:
                e("s_add_u32 s58, s58, 4096")
            s = p.vm("buffer_load_dwordx4 v%d, s[16:19], s46 offen nt lds" % (22 + (jj & 3)))
            if jj < 7:
                e("s_add_u32 s46, s46, 131072")
            return s
        stream.append(f)
    for jj in range(8):
        def f(jj=jj):
            s = p.vm("buffer_load_dwordx4 %s, v26, s[20:23], s47 offen nt" % vr(VRAW + 4 * jj))
            if jj < 7:
                e("s_add_u32 s47, s47, 131072")
            return s
        stream.append(f)
    for t in range(6 if hyb else 8):
        for c2 in range(2):
            def f(t=t, c2=c2):
                s = p.vm("buffer_load_dwordx4 %s, v27, s[28:31], s48 offen offset:%d nt" % (
                    vr(DATA + 8 * t + 4 * c2), 256 * c2))
                if c2 == 1 and t < 7:
                    e("s_add_u32 s48, s48, %d" % (8192 if t % 2 == 0 else 57344))
                return s
            stream.append(f)
    if hyb:
        for u in range(4):
            def f(u=u):
                s = p.vm("buffer_load_dwordx4 %s, v24, s[28:31], s67 offen nt" % vr(DATA + 48 + 4 * u))
                if u < 3:
                    e("s_add_u32 s67, s67, 16384")
                return s
            stream.append(f)
    seq = []
    done = [0]
    actions = {}

    def issue(k=1):
        for _ in range(k):
            if len(seq) < len(stream):
                seq.append(stream[len(seq)]())

    def arrive(idx):
        if idx < done[0]:
            return
        assert idx < len(seq)
        p.wait_vm(seq[idx])
        while done[0] <= idx:
            a = actions.get(done[0])
            if a:
                a()
            done[0] += 1

    def win(idx):
        return o["Wq"] if idx < 16 else o["Wk"] if idx < 24 else o["Wv"] if idx < 32 else W

    throttle = [False]
    thr_n = [0]

    def extra_wait():
        k = len(seq) - win(len(seq)) + o["thr"]
        if throttle[0] and o["thr"] and done[0] <= k < len(seq):
            thr_n[0] += 1
            e("s_cmp_eq_u32 s67, 0\ns_cbranch_scc1 L_thr%d" % thr_n[0])
            p.wait_vm(seq[k])
            e("L_thr%d:" % thr_n[0])

    def pace(upto):
        upto = min(upto, len(stream))
        while len(seq) < upto:
            if len(seq) - win(len(seq)) >= done[0]:
                arrive(len(seq) - win(len(seq)))
            extra_wait()
            issue(1)

    def sprinkle(k):
        for _ in range(k):
            if o["thrspr"] and len(seq) < len(stream):
                extra_wait()
            issue(1)

    def top_up():
        while len(seq) < len(stream) and len(seq) - win(len(seq)) < done[0]:
            issue(1)

    issue(win(0))
    e("""
    s_lshl_b32 s7, s5, 8
    s_load_dword s43, s[36:37], s7
    s_load_dwordx2 s[16:17], s[8:9], 8
    s_load_dwordx2 s[20:21], s[8:9], 16
    s_load_dwordx2 s[28:29], s[8:9], 32
    s_load_dwordx2 s[32:33], s[0:1], 80
    """)
    stamp("issued")

    chunks = []
    c = """
    v_and_b32 v50, 1, v3
    v_lshlrev_b32 v50, 4, v50
    v_mov_b32 v51, 0xffff
    v_lshlrev_b32 v50, v50, v51
    v_lshrrev_b32 v51, 1, v3
    """
    for d in range(4):
        c += "v_cmp_eq_u32 s[%d:%d], %d, v51\n" % (50 + 2 * d, 51 + 2 * d, d)
    c += """
    v_and_b32 v1, 63, v0
    s_and_b32 s3, s2, 7
    """
    for d in range(4):
        c += "v_cndmask_b32 v%d, 0, v50, s[%d:%d]\n" % (MASK + d, 50 + 2 * d, 51 + 2 * d)
    c += """
    s_lshr_b32 s4, s2, 3
    s_and_b32 s6, s2, 3
    s_mov_b32 s38, %d
    s_mov_b32 s39, 0x20000
    s_movk_i32 s42, %d
    s_mov_b32 s59, %d
    """ % (WS_BYTES, TAGMASK, o["retry"])
    if o["thr"]:
        assert not hyb
        c += "s_mov_b32 s67, 0\n"
    chunks.append(c)
    chunks.append("""
    ; keys of a wave: 61440 + 512*jj + 128*wave + 4*j + g; K rows go to LDS with their 16-byte chunks xor-swizzled
    s_mov_b32 s18, 0x4000000
    s_mov_b32 s19, 0x20000
    s_mov_b32 s22, 0x4000000
    s_mov_b32 s23, 0x20000
    s_lshl_b32 s46, s6, 24
    s_lshl_b32 s61, s4, 10
    s_add_u32 s46, s46, s61
    s_lshl_b32 s61, s40, 15
    s_add_u32 s46, s46, s61
    s_add_u32 s46, s46, %d
    s_mov_b32 s47, s46
    s_lshl_b32 s58, s40, 10
    v_lshlrev_b32 v26, 4, v1
    v_lshlrev_b32 v50, 2, v2
    v_xor_b32 v50, v50, v3
    v_lshlrev_b32 v50, 4, v50
    v_lshl_add_u32 v22, v2, 8, v50
    v_xor_b32 v23, 16, v22
    v_xor_b32 v24, 32, v22
    v_xor_b32 v25, 48, v22
    v_and_b32 v50, 3, v3
    v_lshlrev_b32 v50, 4, v50
    v_lshrrev_b32 v51, 2, v3
    v_add_u32 v50, v50, v51
    v_lshlrev_b32 v50, 8, v50
    v_add_u32 v50, s58, v50
    v_xor_b32 v51, v2, v3
    v_lshl_add_u32 v28, v51, 4, v50
    v_xor_b32 v29, 64, v28
    v_xor_b32 v30, 0x80, v28
    v_xor_b32 v31, 0xc0, v28
    """ % (61440 * 256))
    c = """
    ; LDS addresses of the two cross-wave sums, hand-off slots of the q partials
    v_lshl_add_u32 v62, v3, 1, v2
    v_lshlrev_b32 v62, 4, v62
    s_lshl_b32 s60, s40, 10
    s_add_u32 s60, s60, %d
    v_add_u32 v44, s60, v62
    s_lshl_b32 s60, s40, 9
    s_add_u32 s60, s60, %d
    v_add_u32 v62, s60, v62
    s_lshl_b32 s60, s40, 7
    s_add_u32 s60, s60, %d
    v_add_u32 v63, s60, v26
    s_lshl_b32 s60, s40, 8
    s_add_u32 s60, s60, %d
    v_add_u32 v61, s60, v26
    """ % (OUTRED, QRED, QRED, OUTRED)
    sh = 0 if not e1bf else 1
    c += """
    s_lshl_b32 s50, s3, %d
    s_add_u32 s50, s50, %d
    s_and_b32 s60, s4, 7
    s_lshl_b32 s60, s60, %d
    s_add_u32 s49, s50, s60
    s_lshr_b32 s60, s4, 3
    s_lshl2_add_u32 s60, s60, s40
    s_lshl_b32 s60, s60, %d
    s_add_u32 s49, s49, s60
    s_lshl_b32 s60, s40, %d
    s_add_u32 s50, s50, s60
    """ % (14 - sh, E1, 11 - sh, 7 - sh, 12 - sh)
    if e1bf:
        c += "v_lshlrev_b32 v33, 3, v1\n"
    chunks.append(c)
    c = """
    v_lshrrev_b32 v52, 5, v1
    v_and_b32 v53, 31, v1
    v_lshlrev_b32 v54, 4, v53
    s_lshl_b32 s60, s40, 1
    v_add_u32 v55, s60, v52
    v_and_b32 v56, 7, v3
    """
    if e1bf:
        c += """
        v_lshrrev_b32 v57, 4, v53
        v_add_u32 v58, s60, v57
        v_mul_u32_u24 v34, 288, v58
        v_lshl_add_u32 v34, v3, 4, v34
        v_lshl_add_u32 v34, v52, 3, v34
        v_add_u32 v34, %d, v34
        v_lshlrev_b32 v45, 4, v3
        v_lshl_add_u32 v45, v57, 10, v45
        v_lshl_add_u32 v45, v52, 9, v45
        """ % QB
    else:
        c += """
        v_lshl_add_u32 v45, v52, 11, v54
        v_mul_u32_u24 v34, 288, v55
        v_lshl_add_u32 v34, v53, 3, v34
        v_add_u32 v34, %d, v34
        """ % QB
    c += """
    v_mul_u32_u24 v35, 288, v56
    v_lshl_add_u32 v35, v2, 4, v35
    v_add_u32 v35, %d, v35
    v_mul_u32_u24 v37, 528, v55
    v_add_u32 v37, v37, v54
    v_add_u32 v37, %d, v37
    v_lshlrev_b32 v39, %d, v55
    v_add_u32 v39, %d, v39
    v_lshlrev_b32 v40, 3, v53
    v_lshl_add_u32 v40, v52, 13, v40
    v_lshlrev_b32 v41, 8, v52
    """ % (QB, ORED, 4 if maxfirst else 5, MLR)
    chunks.append(c)
    chunks.append("""
    v_mul_u32_u24 v36, 528, v56
    v_lshl_add_u32 v36, v2, 5, v36
    v_lshrrev_b32 v57, 3, v3
    v_lshl_add_u32 v36, v57, 4, v36
    s_mul_i32 s60, s40, 4224
    s_add_u32 s60, s60, %d
    v_add_u32 v36, s60, v36
    s_lshl_b32 s60, s40, %d
    s_add_u32 s60, s60, %d
    v_lshlrev_b32 v38, %d, v56
    v_add_u32 v38, s60, v38
    v_lshrrev_b32 v59, 2, v1
    v_and_b32 v50, 3, v1
    v_lshlrev_b32 v42, 4, v50
    v_lshl_add_u32 v42, v59, 8, v42
    v_lshlrev_b32 v43, 4, v59
    v_and_b32 v58, 1, v1
    v_lshrrev_b32 v48, 1, v1
    v_lshlrev_b32 v48, 10, v48
    v_lshl_add_u32 v48, v58, 4, v48
    v_lshl_add_u32 v46, v3, 2, v2
    v_lshlrev_b32 v46, 1, v46
    """ % (ORED, 2 if maxfirst else 3, MLR, 4 if maxfirst else 5) + ("""
    v_lshlrev_b32 v49, 4, v56
    v_add_u32 v49, %d, v49
    """ % MLR if maxfirst else ""))
    chunks.append("""
    ; wo tile: rows 1024*kvh + 128*(j>>2) + wave + 4*(t&1) + 8*g + 32*(t>>1), columns 256*(j&3) .. +255
    s_mov_b32 s30, 0x800000
    s_mov_b32 s31, 0x20000
    s_movk_i32 s34, 4096
    s_mov_b32 s35, 0x20000
    s_lshl_b32 s48, s6, 21
    s_lshr_b32 s61, s4, 2
    s_lshl_b32 s61, s61, 18
    s_add_u32 s48, s48, s61
    s_and_b32 s61, s4, 3
    s_lshl_b32 s61, s61, 9
    s_add_u32 s48, s48, s61
    s_lshl_b32 s61, s40, 11
    s_add_u32 s48, s48, s61
    v_lshlrev_b32 v27, 4, v3
    v_lshl_add_u32 v27, v2, 14, v27
    """ + ("""
    s_sub_u32 s67, s48, s61
    s_lshl_b32 s61, s40, 7
    s_add_u32 s67, s67, s61
    s_add_u32 s67, s67, %d
    """ % (96 * 2048) if hyb else ""))
    chunks.append("""
    ; hand-off slots of the o partials and of their (max, sum) pairs
    s_lshl_b32 s51, s3, 16
    s_lshl_b32 s60, s40, 14
    s_add_u32 s51, s51, s60
    s_lshl_b32 s60, s4, 8
    s_add_u32 s51, s51, s60
    s_add_u32 s51, s51, %d
    s_lshl_b32 s52, s3, 11
    s_lshl_b32 s60, s40, 9
    s_add_u32 s52, s52, s60
    s_and_b32 s60, s4, 15
    s_lshl4_add_u32 s52, s60, s52
    s_lshr_b32 s60, s4, 4
    s_lshl3_add_u32 s52, s60, s52
    s_add_u32 s52, s52, %d
    s_lshr_b32 s61, s4, 2
    s_lshl3_add_u32 s61, s3, s61
    s_lshl_b32 s53, s61, 13
    s_lshl_b32 s60, s40, 6
    s_add_u32 s53, s53, s60
    s_add_u32 s53, s53, %d
    s_add_u32 s66, s53, 4096
    s_lshl_b32 s54, s61, 8
    s_add_u32 s54, s54, %d
    """ % (E2O, ML, E2O, ML))
    c = """
    """
    if o["inbox"]:
        c += """
        s_and_b32 s60, s4, 3
        s_lshl2_add_u32 s55, s5, s60
        s_lshl_b32 s55, s55, 15
        s_lshr_b32 s60, s4, 2
        s_lshl3_add_u32 s60, s6, s60
        s_lshl_b32 s60, s60, 5
        s_add_u32 s55, s55, s60
        s_lshl_b32 s60, s40, 13
        s_add_u32 s55, s55, s60
        s_add_u32 s55, s55, %d
        s_lshl_b32 s56, s3, 15
        s_lshl_b32 s60, s4, 10
        s_add_u32 s56, s56, s60
        s_add_u32 s56, s56, %d
        v_mov_b32 v49, v48
        v_mov_b32 v48, v26
        """ % (E3, E3)
    else:
        c += """
        s_and_b32 s60, s4, 3
        s_lshl2_add_u32 s55, s5, s60
        s_lshl_b32 s55, s55, 5
        s_lshl3_add_u32 s55, s6, s55
        s_lshr_b32 s60, s4, 2
        s_add_u32 s55, s55, s60
        s_lshl2_add_u32 s55, s55, s40
        s_lshl_b32 s55, s55, 8
        s_add_u32 s55, s55, %d
        s_lshl_b32 s56, s3, 15
        s_lshl_b32 s60, s4, 5
        s_add_u32 s56, s56, s60
        s_add_u32 s56, s56, %d
        """ % (E3, E3)
    c += """
    s_lshl_b32 s57, s3, 9
    s_lshl4_add_u32 s57, s4, s57
    s_mov_b32 s62, 0x05040100
    s_mov_b32 s63, 0x07060302
    s_mov_b32 s64, 0x00ff00ff
    s_mov_b32 s65, 0x00ff00ff
    """
    if o["dump"]:
        c += "v_lshlrev_b32 v60, 6, v0\ns_lshl_b32 s60, s2, 14\nv_add_u32 v60, s60, v60\n"
    chunks.append(c)
    chunks.append("""
    s_waitcnt lgkmcnt(0)
    s_add_u32 s43, s43, 1
    s_and_b32 s41, s43, s42
    v_mov_b32 v32, s41
    v_mov_b32 v47, 0x3f803f80
    """)

    def chunk():
        if chunks:
            e(chunks.pop(0))

    for _ in range(o["early_chunks"]):
        chunk()
    p.wait_vm(xop)
    e("v_lshl_or_b32 v4, v4, 16, v4")

    def build_a(dst, src, t):
        for d in range(4):
            e("v_and_b32_dpp v%d, v%d, v%d row_newbcast:%d row_mask:0xf bank_mask:0xf" % (dst + d, src, MASK + d, t))

    note("""q projection: a tile holds 4 rows x 128 columns; with a one-hot A operand carrying x[row] the MFMA
    gives D[e][n] += sum_g x[row g] * W[row g][8n + e]""")
    for t in range(16):
        build_a(AB[t & 1], 4, t)
        arrive(t)
        if t in (0, 4, 8, 12):
            stamp("wq%d" % t, 1)
        e("v_mfma_f32_16x16x32_bf16 %s, %s, %s, %s" % (
            vr(QACC), vr(AB[t & 1]), vr(DATA + 4 * t), "0" if t == 0 else vr(QACC)))
        top_up()
        chunk()
    assert not chunks
    stamp("qdone")
    e("v_mov_b32 v53, %d" % MODE)
    e("s_mov_b32 exec_hi, 0")
    e("ds_write_b128 v62, %s" % vr(QACC))
    e("s_mov_b64 exec, 0xff")
    e("s_waitcnt lgkmcnt(0)")
    stamp("preB1", 1)
    e("s_barrier")
    stamp("B1", 1)
    e("ds_read_b32 v52, v53")
    for w2 in range(4):
        e("ds_read_b128 %s, v63 offset:%d" % (vr(G1R + 4 * w2), 512 * w2))
    e("s_waitcnt lgkmcnt(0)")
    e("v_readfirstlane_b32 s69, v52")

    def sum4(R):
        for r in (0, 2):
            e("v_pk_add_f32 %s, %s, %s" % (vr(R + r, 2), vr(R + r, 2), vr(R + 4 + r, 2)))
            e("v_pk_add_f32 %s, %s, %s" % (vr(R + 8 + r, 2), vr(R + 8 + r, 2), vr(R + 12 + r, 2)))
        for r in (0, 2):
            e("v_pk_add_f32 %s, %s, %s" % (vr(R + r, 2), vr(R + r, 2), vr(R + 8 + r, 2)))

    def tag4(R):
        for r in range(4):
            e("v_bfi_b32 v%d, s42, v32, v%d" % (R + r, R + r))

    def pack4(R):
        e("v_cvt_pk_bf16_f32 v%d, v%d, v%d" % (R, R, R + 1))
        e("v_cvt_pk_bf16_f32 v%d, v%d, v%d" % (R + 1, R + 2, R + 3))
        e("v_min_u32 v%d, -2, v%d" % (R, R))
        e("v_min_u32 v%d, -2, v%d" % (R + 1, R + 1))

    sum4(G1R)
    if e1bf:
        pack4(G1R)
        handoff_stores(["buffer_store_dwordx2 %s, v33, s[36:39], s49 offen" % vr(G1R, 2)])
    else:
        tag4(G1R)
        handoff_stores(["buffer_store_dwordx4 %s, v26, s[36:39], s49 offen" % vr(G1R)])
    e("s_mov_b64 exec, -1")
    stamp("E1pub")
    PLO, PHI, ONES = AB[0], AB[1], QACC
    for r in range(4):
        e("v_mov_b32 v%d, v47" % (ONES + r))
    for r in range(8):
        e("v_mov_b32 v%d, 0" % (PLO + r))

    def k_read():
        note("K operands of the two 16-key tiles")
        for T in range(2):
            for s in range(4):
                e("ds_read_b128 %s, v%d offset:%d" % (vr(KOP + 16 * T + 4 * s), 28 + s, 16384 * T))
    actions[23] = k_read

    def v_perm(d):
        def f():
            note("V^T operands: pair element e of two consecutive key rows")
            for ee in range(8):
                e("v_perm_b32 v%d, v%d, v%d, s%d" % (
                    VT + 4 * ee + d, VRAW + 4 * (2 * d + 1) + (ee >> 1), VRAW + 4 * (2 * d) + (ee >> 1), 62 + (ee & 1)))
        return f
    for d in range(4):
        actions[24 + 2 * d + 1] = v_perm(d)

    def ortree(regs, tmp):
        regs = list(regs)
        e("v_or3_b32 v%d, v%d, v%d, v%d" % (tmp, regs[0], regs[1], regs[2]))
        regs = regs[3:]
        while len(regs) >= 2:
            e("v_or3_b32 v%d, v%d, v%d, v%d" % (tmp, tmp, regs[0], regs[1]))
            regs = regs[2:]
        if regs:
            e("v_or_b32 v%d, v%d, v%d" % (tmp, tmp, regs[0]))
        e("v_and_b32 v%d, s42, v%d" % (tmp, tmp))
        e("v_cmp_ne_u32 vcc, 0, v%d" % tmp)

    def gather1():
        s = None
        for u in range(2 if e1bf else 4):
            s = p.vm("buffer_load_dwordx4 %s, v45, s[36:39], s50 offen offset:%d sc1" % (
                vr(G1R + 4 * u), (256 if e1bf else 512) * u))
        return s

    pace(24 + o["G1"])
    g1 = gather1()
    stamp("g1iss")
    pace(len(seq) + o["B1"])
    arrive(23)
    SEL = [28, 29, 30, 31, 62, 63, 0, 33]
    if hyb:
        assert not e1bf and not o["dump"]
        e("""
        v_lshrrev_b32 v52, 3, v1
        v_and_b32 v53, 7, v1
        v_lshlrev_b32 v24, 4, v53
        v_lshl_add_u32 v24, v52, 11, v24
        v_lshlrev_b32 v22, 3, v52
        v_add_u32 v22, %d, v22
        v_lshl_add_u32 v25, v3, 1, v2
        v_lshlrev_b32 v25, 4, v25
        s_lshl_b32 s61, s40, 8
        s_add_u32 s61, s61, %d
        v_add_u32 v61, s61, v25
        s_lshl_b32 s61, s40, 3
        s_add_u32 s61, s61, %d
        v_lshlrev_b32 v23, 1, v2
        v_add_u32 v23, s61, v23
        v_and_b32 v52, 7, v3
        v_lshrrev_b32 v53, 1, v52
        v_and_b32 v52, 1, v3
        v_cmp_eq_u32 vcc, 1, v52
        v_mov_b32 v54, 0x0c0c0100
        v_mov_b32 v55, 0x01000c0c
        v_cndmask_b32 v54, v54, v55, vcc
        v_mov_b32 v52, 0x0c0c0302
        v_mov_b32 v55, 0x03020c0c
        v_cndmask_b32 v55, v52, v55, vcc
        v_mov_b32 v52, 0x0c0c0c0c
        """ % (OB, OUTRED, OB))
        for d in range(4):
            e("v_cmp_eq_u32 vcc, %d, v53" % d)
            e("v_cndmask_b32 v%d, v52, v54, vcc" % SEL[2 * d])
            e("v_cndmask_b32 v%d, v52, v55, vcc" % SEL[2 * d + 1])
    p.wait_vm(g1)
    e("L_chk1:")
    stamp("g1arr")
    if e1bf:
        T8 = G1R + 8
        for i in range(4):
            e("v_perm_b32 v%d, v%d, v%d, s62" % (T8 + 2 * i, G1R + 4 + i, G1R + i))
            e("v_perm_b32 v%d, v%d, v%d, s63" % (T8 + 2 * i + 1, G1R + 4 + i, G1R + i))
        for i in range(8):
            e("v_dot2_f32_bf16 v%d, v%d, v47, 0" % (T8 + i, T8 + i))
        e("v_max3_u32 v54, v%d, v%d, v%d" % (G1R, G1R + 1, G1R + 2))
        e("v_max3_u32 v55, v%d, v%d, v%d" % (G1R + 3, G1R + 4, G1R + 5))
        for i in range(4):
            e("v_permlane32_swap_b32 v%d, v%d" % (T8 + i, T8 + 4 + i))
        e("v_max3_u32 v54, v54, v%d, v%d" % (G1R + 6, G1R + 7))
        e("v_pk_add_f32 %s, %s, %s" % (vr(50, 2), vr(T8, 2), vr(T8 + 4, 2)))
        e("v_pk_add_f32 %s, %s, %s" % (vr(52, 2), vr(T8 + 2, 2), vr(T8 + 6, 2)))
        e("v_max_u32 v54, v54, v55")
        e("v_cvt_pk_bf16_f32 v50, v50, v51")
        e("v_cvt_pk_bf16_f32 v51, v52, v53")
        e("v_cmp_eq_u32 vcc, -1, v54")
        e("ds_write_b64 v34, v[50:51]")
    else:
        for r in range(16):
            e("v_xor_b32 v%d, s41, v%d" % (G1R + r, G1R + r))
        for r in (0, 2):
            e("v_pk_add_f32 %s, %s, %s" % (vr(50 + r, 2), vr(G1R + r, 2), vr(G1R + 4 + r, 2)))
            e("v_pk_add_f32 %s, %s, %s" % (vr(54 + r, 2), vr(G1R + 8 + r, 2), vr(G1R + 12 + r, 2)))
        for r in (0, 2):
            e("v_pk_add_f32 %s, %s, %s" % (vr(50 + r, 2), vr(50 + r, 2), vr(54 + r, 2)))
        e("v_cvt_pk_bf16_f32 v50, v50, v51")
        e("v_cvt_pk_bf16_f32 v51, v52, v53")
        e("ds_write_b64 v34, v[50:51]")
        ortree(range(G1R, G1R + 16), 54)
    e("s_cbranch_vccz L_ok1")
    retry_code("L_retry1", "L_chk1", gather1)
    e("L_ok1:")
    throttle[0] = True
    if o["vstep"] and o["G1"]:
        arrive(24 + o["G1"] - 1)
    e("s_waitcnt lgkmcnt(0)")
    stamp("preB2", 1)
    e("s_barrier")
    stamp("B2", 1)
    for s4 in range(4):
        e("ds_read_b128 %s, v35 offset:%d" % (vr(QOP + 4 * s4), 64 * s4))
    spr = list(o["spr"])
    sprinkle(spr[0])
    S = G1R
    for s4 in range(4):
        e("s_waitcnt lgkmcnt(%d)" % (0 if o["stamps"] or o["dump"] else 3 - s4))
        if s4 == 0:
            stamp("qop", 1)
            dump(QOP, 16, 0)
        for T in range(2):
            e("v_mfma_f32_16x16x32_bf16 %s, %s, %s, %s" % (
                vr(S + 4 * T), vr(KOP + 16 * T + 4 * s4), vr(QOP + 4 * s4), "0" if s4 == 0 else vr(S + 4 * T)))
    sprinkle(spr[1])
    C = SCALE * LOG2E
    if o["mimic"]:
        e("s_mov_b32 s60, 0x%x" % f32bits(SCALE))
        for rnd in range(2):
            for d in range(4):
                e("v_cvt_pk_bf16_f32 v%d, v%d, v%d" % (50 + d, S + 2 * d, S + 2 * d + 1))
            for d in range(4):
                e("v_lshlrev_b32 v%d, 16, v%d" % (S + 2 * d, 50 + d))
                e("v_and_b32 v%d, 0xffff0000, v%d" % (S + 2 * d + 1, 50 + d))
            if rnd == 0:
                for r in range(8):
                    e("v_mul_f32 v%d, s60, v%d" % (S + r, S + r))
        C = LOG2E
    dump(S, 8, 1)
    e("s_mov_b32 s60, 0x%x" % f32bits(C))
    e("v_max3_f32 v50, v%d, v%d, v%d" % (S, S + 1, S + 2))
    e("v_max3_f32 v51, v%d, v%d, v%d" % (S + 4, S + 5, S + 6))
    e("v_max3_f32 v50, v50, v%d, v%d" % (S + 3, S + 7))
    e("v_max_f32 v50, v50, v51")
    e("v_mov_b32 v51, v50")
    e("v_permlane16_swap_b32 v50, v51")
    e("v_max_f32 v50, v50, v51")
    e("v_mov_b32 v51, v50")
    e("v_permlane32_swap_b32 v50, v51")
    e("v_max_f32 v50, v50, v51")
    if maxfirst:
        note("exchange the row maxima between the waves")
        e("s_mov_b64 exec, 0xff")
        e("ds_write_b32 v38, v50")
        e("s_mov_b64 exec, -1")
        e("s_waitcnt lgkmcnt(0)")
        e("s_barrier")
        e("ds_read_b128 v[52:55], v49")
        e("ds_read_b128 v[56:59], v39")
        e("s_waitcnt lgkmcnt(%d)" % (0 if o["stamps"] else 1))
        e("v_max3_f32 v50, v52, v53, v54")
        e("v_max_f32 v50, v50, v55")
        e("v_mul_f32 v50, s60, v50")
        e("v_bfi_b32 v50, s42, 0, v50")
    else:
        e("v_mul_f32 v50, s60, v50")
    for r in range(8):
        e("v_fma_f32 v%d, v%d, s60, -v50" % (S + r, S + r))
    for r in range(8):
        e("v_exp_f32 v%d, v%d" % (S + r, S + r))
    e("s_mov_b64 exec, s[64:65]")
    for d in range(4):
        e("v_cvt_pk_bf16_f32 v%d, v%d, v%d" % (PLO + d, S + 2 * d, S + 2 * d + 1))
    e("s_not_b64 exec, s[64:65]")
    for d in range(4):
        e("v_cvt_pk_bf16_f32 v%d, v%d, v%d" % (PHI + d, S + 2 * d, S + 2 * d + 1))
    e("s_mov_b64 exec, -1")
    OA = VRAW
    LA = KOP
    e("v_mfma_f32_16x16x32_bf16 %s, %s, %s, 0" % (vr(LA), vr(ONES), vr(PLO)))
    e("v_mfma_f32_16x16x32_bf16 %s, %s, %s, %s" % (vr(LA), vr(ONES), vr(PHI), vr(LA)))
    stamp("smax")
    sprinkle(spr[2])
    if maxfirst:
        e("s_waitcnt lgkmcnt(0)")
        e("v_max3_f32 v56, v56, v57, v58")
        e("v_max_f32 v56, v56, v59")
        e("v_mul_f32 v56, s60, v56")
        e("v_bfi_b32 v56, s42, v32, v56")
        e("s_mov_b64 exec, 0xff")
        e("ds_write_b32 v38, v%d offset:128" % LA)
    else:
        e("s_mov_b64 exec, 0xff")
        e("ds_write2_b32 v38, v50, v%d offset0:0 offset1:1" % LA)
    e("s_mov_b64 exec, -1")
    pace(32)
    if o["vstep"]:
        arrive(27)
        arrive(29)
    arrive(31)
    stamp("varr", 1)
    for ep in range(4):
        e("v_mfma_f32_16x16x32_bf16 %s, %s, %s, 0" % (vr(OA + 4 * ep), vr(VT + 4 * ep), vr(PLO)))
    for ep in range(4):
        e("v_mfma_f32_16x16x32_bf16 %s, %s, %s, %s" % (vr(OA + 4 * ep), vr(VT + 4 * (ep + 4)), vr(PHI), vr(OA + 4 * ep)))
        if ep == 0:
            sprinkle(spr[3])
    for ep in range(4):
        e("ds_write_b128 v36, %s offset:%d" % (vr(OA + 4 * ep), 128 * ep))
    dump(OA, 16, 2)
    e("s_waitcnt lgkmcnt(0)")
    stamp("preB3", 1)
    e("s_barrier")
    stamp("B3", 1)
    R = VT
    if maxfirst:
        for w2 in range(4):
            e("ds_read_b128 %s, v37 offset:%d" % (vr(R + 4 * w2), 4224 * w2))
        e("ds_read_b128 %s, v39 offset:128" % vr(R + 16))
        sprinkle(spr[4])
        e("s_waitcnt lgkmcnt(1)" if not o["stamps"] else "s_waitcnt lgkmcnt(0)")
        sum4(R)
        e("s_waitcnt lgkmcnt(0)")
        e("v_pk_add_f32 %s, %s, %s" % (vr(R + 16, 2), vr(R + 16, 2), vr(R + 18, 2)))
        e("v_add_f32 v57, v%d, v%d" % (R + 16, R + 17))
    else:
        e("ds_read_b128 %s, v39" % vr(R + 16))
        e("ds_read_b128 %s, v39 offset:16" % vr(R + 20))
        for w2 in range(4):
            e("ds_read_b128 %s, v37 offset:%d" % (vr(R + 4 * w2), 4224 * w2))
        sprinkle(spr[4])
        e("s_waitcnt lgkmcnt(4)" if not o["stamps"] else "s_waitcnt lgkmcnt(0)")
        e("v_max3_f32 v56, v%d, v%d, v%d" % (R + 16, R + 18, R + 20))
        e("v_max_f32 v56, v56, v%d" % (R + 22))
        e("v_bfi_b32 v56, s42, 0, v56")
        for w2 in range(4):
            e("v_sub_f32 v%d, v%d, v56" % (52 + w2, R + 16 + 2 * w2))
        for w2 in range(4):
            e("v_exp_f32 v%d, v%d" % (52 + w2, 52 + w2))
        e("v_or_b32 v56, s41, v56")
        e("v_mul_f32 v57, v52, v%d" % (R + 17))
        for w2 in range(1, 4):
            e("v_fmac_f32 v57, v%d, v%d" % (52 + w2, R + 17 + 2 * w2))
        e("s_waitcnt lgkmcnt(0)")
        for r in range(4):
            e("v_mul_f32 v%d, v52, v%d" % (R + r, R + r))
        for w2 in range(1, 4):
            for r in range(4):
                e("v_fmac_f32 v%d, v%d, v%d" % (R + r, 52 + w2, R + 4 * w2 + r))
    e("v_bfi_b32 v57, s42, v32, v57")
    pack4(R)
    handoff_stores(["buffer_store_dwordx2 %s, v40, s[36:39], s51 offen" % vr(R, 2),
                    "s_mov_b32 exec_lo, 1", "s_mov_b32 exec_hi, 1",
                    "buffer_store_dwordx2 v[56:57], v41, s[36:39], s52 offen"])
    e("s_mov_b64 exec, -1")
    stamp("E2pub")
    sprinkle(spr[5])

    G2R = KOP
    OA_, OB_, M0 = G2R, G2R + 4, G2R + 8

    def gather2():
        p.vm("buffer_load_dwordx4 %s, v43, s[36:39], s54 offen sc1" % vr(M0))
        p.vm("buffer_load_dwordx4 %s, v42, s[36:39], s53 offen sc1" % vr(OA_))
        return p.vm("buffer_load_dwordx4 %s, v42, s[36:39], s66 offen sc1" % vr(OB_))

    pace(32 + o["G2"])
    g2 = gather2()
    stamp("g2iss")
    pace(len(seq) + o["B2"])
    p.wait_vm(g2)
    e("L_chk2:")
    stamp("g2arr")
    for r in range(4):
        e("v_xor_b32 v%d, s41, v%d" % (M0 + r, M0 + r))
    e("v_max_f32 v50, v%d, v%d" % (M0, M0 + 2))
    e("v_max3_u32 v53, v%d, v%d, v%d" % (OA_, OA_ + 1, OA_ + 2))
    e("v_max3_u32 v53, v53, v%d, v%d" % (OA_ + 3, OB_))
    e("v_max_f32_dpp v50, v50, v50 row_ror:4 row_mask:0xf bank_mask:0xf")
    e("v_max3_u32 v53, v53, v%d, v%d" % (OB_ + 1, OB_ + 2))
    e("v_max_u32 v53, v53, v%d" % (OB_ + 3))
    e("v_max_f32_dpp v50, v50, v50 row_ror:8 row_mask:0xf bank_mask:0xf")
    e("v_or3_b32 v52, v%d, v%d, v%d" % (M0, M0 + 1, M0 + 2))
    e("v_mov_b32 v51, v50")
    e("v_or_b32 v52, v52, v%d" % (M0 + 3))
    e("v_and_b32 v52, s42, v52")
    e("v_permlane16_swap_b32 v50, v51")
    e("v_max_f32 v50, v50, v51")
    e("v_mov_b32 v51, v50")
    e("v_cmp_eq_u32 vcc, -1, v53")
    e("v_cmp_ne_u32 s[10:11], 0, v52")
    e("v_permlane32_swap_b32 v50, v51")
    e("v_max_f32 v50, v50, v51")
    A8 = G2R + 12
    e("v_sub_f32 v52, v%d, v50" % M0)
    e("v_sub_f32 v53, v%d, v50" % (M0 + 2))
    e("v_exp_f32 v52, v52")
    e("v_exp_f32 v53, v53")
    e("s_or_b64 vcc, vcc, s[10:11]")
    e("s_cbranch_vccz L_ok2")
    retry_code("L_retry2", "L_chk2", gather2)
    e("L_ok2:")
    e("v_cvt_pk_bf16_f32 v54, v52, v53")
    for i in range(4):
        e("v_perm_b32 v%d, v%d, v%d, s62" % (A8 + 2 * i, OB_ + i, OA_ + i))
        e("v_perm_b32 v%d, v%d, v%d, s63" % (A8 + 2 * i + 1, OB_ + i, OA_ + i))
    e("v_lshlrev_b32 v52, 16, v54")
    e("v_and_b32 v53, 0xffff0000, v54")
    e("v_mul_f32 v51, v52, v%d" % (M0 + 1))
    e("v_fmac_f32 v51, v53, v%d" % (M0 + 3))
    for i in range(8):
        e("v_dot2_f32_bf16 v%d, v%d, v54, 0" % (A8 + i, A8 + i))
    e("v_add_f32_dpp v51, v51, v51 row_ror:4 row_mask:0xf bank_mask:0xf")
    for b in (0, 4):
        e("v_permlane32_swap_b32 v%d, v%d" % (A8 + b, A8 + b + 2))
        e("v_permlane32_swap_b32 v%d, v%d" % (A8 + b + 1, A8 + b + 3))
    e("v_add_f32_dpp v51, v51, v51 row_ror:8 row_mask:0xf bank_mask:0xf")
    for b in (0, 4):
        e("v_add_f32 v%d, v%d, v%d" % (A8 + b, A8 + b, A8 + b + 2))
        e("v_add_f32 v%d, v%d, v%d" % (A8 + b + 1, A8 + b + 1, A8 + b + 3))
    e("v_mov_b32 v50, v51")
    e("v_permlane16_swap_b32 v%d, v%d" % (A8, A8 + 1))
    e("v_permlane16_swap_b32 v%d, v%d" % (A8 + 4, A8 + 5))
    e("v_permlane16_swap_b32 v50, v51")
    e("v_add_f32 v%d, v%d, v%d" % (A8, A8, A8 + 1))
    e("v_add_f32 v%d, v%d, v%d" % (A8 + 4, A8 + 4, A8 + 5))
    e("v_add_f32 v51, v50, v51")
    e("v_add_f32_dpp v%d, v%d, v%d row_ror:4 row_mask:0xf bank_mask:0xf" % (A8, A8, A8))
    e("v_mov_b32 v50, v51")
    e("v_add_f32_dpp v%d, v%d, v%d row_ror:4 row_mask:0xf bank_mask:0xf" % (A8 + 4, A8 + 4, A8 + 4))
    e("v_add_f32_dpp v%d, v%d, v%d row_ror:8 row_mask:0xf bank_mask:0xf" % (A8, A8, A8))
    e("v_permlane32_swap_b32 v50, v51")
    e("v_add_f32 v51, v50, v51")
    e("v_add_f32_dpp v%d, v%d, v%d row_ror:8 row_mask:0xf bank_mask:0xf" % (A8 + 4, A8 + 4, A8 + 4))
    e("v_rcp_f32 v51, v51")
    X = (4, 5)
    e("v_mul_f32 v%d, v%d, v51" % (A8, A8))
    e("v_mul_f32 v%d, v%d, v51" % (A8 + 4, A8 + 4))
    e("v_cvt_pk_bf16_f32 v%d, v%d, v%d" % (X[0], A8, A8))
    e("v_cvt_pk_bf16_f32 v%d, v%d, v%d" % (X[1], A8 + 4, A8 + 4))
    dump(X[0], 1, 3)
    dump(X[1], 1, 4)
    stamp("ordy")
    OUT0, OUT1 = G1R, G1R + 4
    A4 = 56
    if hyb:
        e("s_mov_b32 exec_lo, 0x00080008\ns_mov_b32 exec_hi, 0x00080008")
        e("ds_write_b16 v23, v%d" % X[0])
        e("ds_write_b16 v23, v%d offset:32" % X[1])
        e("s_mov_b64 exec, -1")
        issue(16)
        build_a(AB[0], X[0], 0)
        for t in range(6):
            for c2, acc in ((0, OUT0), (1, OUT1)):
                arrive(32 + 2 * t + c2)
                e("v_mfma_f32_16x16x32_bf16 %s, %s, %s, %s" % (
                    vr(acc), vr(AB[t & 1]), vr(DATA + 8 * t + 4 * c2), "0" if t == 0 else vr(acc)))
                if c2 == 0 and t < 5:
                    build_a(AB[(t + 1) & 1], X[(t + 1) & 1], (t + 1) >> 1)
        for r in range(4):
            e("v_mov_b32 v%d, 0" % (R + r))
        e("s_mov_b32 exec_hi, 0")
        e("ds_write_b128 v44, %s" % vr(OUT0))
        e("ds_write_b128 v44, %s offset:512" % vr(OUT1))
        e("s_mov_b64 exec, -1")
        e("s_waitcnt lgkmcnt(0)")
        stamp("preB4", 1)
        e("s_barrier")
        stamp("B4", 1)
        XD = QOP + 8
        AU = KOP
        e("ds_read_b64 %s, v22" % vr(XD, 2))
        e("s_mov_b32 exec_lo, 0x00ff00ff\ns_mov_b32 exec_hi, 0")
        for w2 in range(4):
            e("ds_read_b128 %s, v61 offset:%d" % (vr(R + 4 * w2), 1024 * w2))
        e("s_mov_b64 exec, -1")
        e("s_waitcnt lgkmcnt(%d)" % (0 if o["stamps"] else 4))
        for u in range(4):
            for d in range(4):
                e("v_perm_b32 v%d, v%d, v%d, v%d" % (AU + 4 * u + d, XD + (u >> 1), XD + (u >> 1), SEL[2 * d + (u & 1)]))
        e("s_mov_b32 exec_lo, 0x00ff00ff\ns_mov_b32 exec_hi, 0")
        e("s_waitcnt lgkmcnt(0)")
        sum4(R)
        e("s_mov_b64 exec, -1")
        for u in range(4):
            arrive(44 + u)
            e("v_mfma_f32_16x16x32_bf16 %s, %s, %s, %s" % (vr(R), vr(AU + 4 * u), vr(DATA + 48 + 4 * u), vr(R)))
        stamp("opdone")
        for r in range(4):
            e("v_permlane32_swap_b32 v%d, v%d" % (R + r, R + 4 + r))
        for r in range(4):
            e("v_add_f32_dpp v%d, v%d, v%d row_ror:8 row_mask:0xf bank_mask:0xf" % (R + r, R + 4 + r, R + r))
        tag4(R)
        e("s_mov_b32 exec_lo, 0x00ff00ff\ns_mov_b32 exec_hi, 0")
        p.vm("buffer_store_dwordx4 %s, v25, s[36:39], s55 offen sc1" % vr(R))
    else:
        issue(16)
        build_a(AB[0], X[0], 0)
        for t in range(8):
            for c2, acc in ((0, OUT0), (1, OUT1)):
                if t == 7 and c2 == 1:
                    e("s_mov_b32 exec_hi, 0")
                    e("ds_write_b128 v44, %s" % vr(OUT0))
                    e("s_mov_b64 exec, -1")
                arrive(32 + 2 * t + c2)
                e("v_mfma_f32_16x16x32_bf16 %s, %s, %s, %s" % (
                    vr(acc), vr(AB[t & 1]), vr(DATA + 8 * t + 4 * c2), "0" if t == 0 else vr(acc)))
                if c2 == 0 and t < 7:
                    build_a(AB[(t + 1) & 1], X[(t + 1) & 1], (t + 1) >> 1)
        stamp("opdone")
        e("s_mov_b32 exec_hi, 0")
        e("ds_write_b128 v44, %s offset:512" % vr(OUT1))
        e("s_mov_b64 exec, 0xffff")
        e("s_waitcnt lgkmcnt(0)")
        stamp("preB4", 1)
        e("s_barrier")
        stamp("B4", 1)
        if o["swap3"]:
            e("s_cmp_eq_u32 s40, 0\ns_cbranch_scc1 L_cons")
            e("s_cmp_lg_u32 s40, 1\ns_cbranch_scc1 L_pub3")
            e("s_mov_b32 exec_lo, -1\ns_sub_u32 s55, s55, 256\nv_subrev_u32 v61, 256, v61\nL_pub3:")
        for w2 in range(4):
            e("ds_read_b128 %s, v61 offset:%d" % (vr(R + 4 * w2), 1024 * w2))
        e("s_waitcnt lgkmcnt(0)")
        sum4(R)
        tag4(R)
        p.vm("buffer_store_dwordx4 %s, v%d, s[36:39], s55 offen sc1" % (vr(R), 49 if o["inbox"] else 26))
    e("s_mov_b64 exec, -1")
    stamp("E3pub")
    def final_reduce():
        QR = VRAW
        e("L_retry3:")
        p.vm("buffer_load_dwordx4 %s, v48, s[36:39], s56 offen sc1" % vr(QR))
        e("s_waitcnt vmcnt(0)")
        for r in range(4):
            e("v_xor_b32 v%d, s41, v%d" % (A4 + r, QR + r))
        ortree(range(A4, A4 + 4), 52)
        e("s_cbranch_vccz L_got3")
        e("s_mov_b64 exec, vcc")
        e("s_sub_u32 s59, s59, 1")
        e("s_cbranch_scc0 L_retry3")
        e("s_branch L_end")
        e("L_got3:")
        e("s_mov_b64 exec, -1")
        stamp("got3", 1)
        e("v_permlane32_swap_b32 v%d, v%d" % (A4, A4 + 2))
        e("v_permlane32_swap_b32 v%d, v%d" % (A4 + 1, A4 + 3))
        e("v_add_f32 v%d, v%d, v%d" % (A4, A4, A4 + 2))
        e("v_add_f32 v%d, v%d, v%d" % (A4 + 1, A4 + 1, A4 + 3))
        e("v_permlane16_swap_b32 v%d, v%d" % (A4, A4 + 1))
        e("v_add_f32 v%d, v%d, v%d" % (A4, A4, A4 + 1))
        for k in (2, 4, 8):
            e("v_add_f32_dpp v%d, v%d, v%d row_ror:%d row_mask:0xf bank_mask:0xf" % (A4, A4, A4, k))
        e("v_cvt_pk_bf16_f32 v%d, v%d, v%d" % (A4, A4, A4))
        e("s_mov_b32 exec_lo, 0x00030003\ns_mov_b32 exec_hi, 0x00030003")
        p.vm("buffer_store_short v%d, v46, s[32:35], s57 offen" % A4)
        e("s_and_b32 s60, s2, 0xfb")
        e("s_cbranch_scc1 L_hfin" if o["hcons"] else "s_cbranch_scc1 L_fin")
        e("s_mov_b64 exec, 1")
        e("v_mov_b32 v50, s43")
        e("v_mov_b32 v51, 0")
        p.vm("buffer_store_dword v50, v51, s[36:39], s7 offen sc1")

    if o["hcons"]:
        note("the last wave leaves a completion hint for the group's helpers")
        e("""
        s_cmp_lg_u32 s40, %d
        s_cbranch_scc1 L_fin
        s_lshl_b32 s60, s3, 7
        s_add_u32 s60, s60, %d
        s_lshl2_add_u32 s61, s4, s60
        v_mov_b32 v50, s43
        v_mov_b32 v51, 0
        s_mov_b64 exec, 1
        buffer_store_dword v50, v51, s[36:39], s61 offen
        """ % (o["flw"], FL))
    else:
        if o["swap3"]:
            e("s_branch L_fin\nL_cons:\ns_mov_b64 exec, -1")
        else:
            e("s_cmp_lg_u32 s40, 0")
            e("s_cbranch_scc1 L_fin")
        if o["lflag"]:
            note("""leave a completion hint; with one L2 for the group wait for the group's hints, so that the slots of
            producers that are still running are not polled across dies (the hints only time the gather)""")
            e("""
            s_lshl_b32 s60, s3, 7
            s_add_u32 s60, s60, %d
            s_lshl2_add_u32 s61, s4, s60
            v_mov_b32 v50, s43
            v_mov_b32 v51, 0
            s_mov_b64 exec, 1
            %s
            buffer_store_dword v50, v51, s[36:39], s61 offen
            s_mov_b64 exec, -1
            v_and_b32 v53, 31, v1
            v_lshlrev_b32 v53, 2, v53
            s_cmp_lg_u32 s69, 0
            s_cbranch_scc1 L_nofl
            L_flp:
            s_sub_u32 s59, s59, 1
            s_cbranch_scc1 L_end
            buffer_load_dword v52, v53, s[36:39], s60 offen sc1
            s_waitcnt vmcnt(0)
            v_cmp_ne_u32 vcc, s43, v52
            s_cbranch_vccnz L_flp
            L_nofl:
            """ % (FL, "s_waitcnt vmcnt(0)" if o["flate"] else ""))
        e("s_waitcnt vmcnt(0)")
        stamp("ack3", 1)
        final_reduce()
    e("L_fin:")
    if o["probe"]:
        a, b, k, wg = o["probe"]
        stamp("fin")
        e("s_cmp_lg_u32 s2, %d\ns_cbranch_scc1 L_end\ns_cmp_lg_u32 s40, 0\ns_cbranch_scc1 L_end" % wg)
        e("s_waitcnt lgkmcnt(0)")
        e("s_sub_u32 s60, s%d, s%d" % (70 + 2 * names.index(b), 70 + 2 * names.index(a)))
        e("s_mul_i32 s60, s60, %d" % k)
        e("L_probe:")
        e("s_memrealtime s[62:63]\ns_waitcnt lgkmcnt(0)")
        e("s_sub_u32 s61, s62, s%d" % (70 + 2 * (stamp_n[0] - 1)))
        e("s_cmp_lt_u32 s61, s60\ns_cbranch_scc1 L_probe")
        e("s_branch L_end")
    elif o["stamps"]:
        stamp("fin")
        e("s_mov_b64 exec, 1")
        e("s_getreg_b32 s68, hwreg(HW_REG_XCC_ID)")
        e("s_mov_b32 s69, s59")
        e("s_waitcnt lgkmcnt(0)")
        for i in range(32):
            e("v_mov_b32 v%d, s%d" % (64 + i, 68 + i))
        e("s_lshl_b32 s60, s2, 2\ns_add_u32 s60, s60, s40\ns_lshl_b32 s60, s60, 7\ns_add_u32 s60, s60, %d" % TS_OFF)
        e("v_mov_b32 v51, 0")
        for i in range(8):
            p.vm("buffer_store_dwordx4 %s, v51, s[36:39], s60 offen offset:%d" % (vr(64 + 4 * i), 16 * i))
    e("L_end:")
    e("s_endpgm")

    note("""helper wave: clears the slots that carry bare bf16 data to the sentinel 0xffffffff, exchanges die ids
    with the group (word = epoch + 1 with the die id in bits 13:10) and leaves the store mode
    (0 = one L2 for the whole group) in LDS before it ends""")
    clears = ["buffer_store_dwordx4 v[52:55], v40, s[36:39], s51 offen",
              "buffer_store_dwordx4 v[52:55], v40, s[36:39], s52 offen"]
    e("""
    L_helper:
    v_and_b32 v1, 63, v0
    s_and_b32 s3, s2, 7
    s_lshr_b32 s4, s2, 3
    s_and_b32 s6, s2, 3
    s_mov_b32 s38, %d
    s_mov_b32 s39, 0x20000
    s_lshl_b32 s7, s5, 8
    v_lshlrev_b32 v40, 4, v3
    v_lshl_add_u32 v40, v2, 13, v40
    s_lshl_b32 s51, s3, 16
    s_lshl_b32 s61, s4, 8
    s_add_u32 s51, s51, s61
    s_add_u32 s51, s51, %d
    s_add_u32 s52, s51, 32768
    v_mov_b32 v52, -1
    v_mov_b32 v53, -1
    v_mov_b32 v54, -1
    v_mov_b32 v55, -1
    v_lshlrev_b32 v26, 4, v1
    s_waitcnt lgkmcnt(0)
    s_load_dword s43, s[36:37], s7
    """ % (WS_BYTES, E2O))
    for t in clears:
        e(t)
    extra = []
    if o["prew1"] or o["prewml"]:
        e("v_mov_b32 v64, 0\nv_mov_b32 v65, 1\nv_mov_b32 v66, 2\nv_mov_b32 v67, 3")
    if o["prew1"]:
        assert not e1bf
        e("""
        s_and_b32 s60, s4, 7
        s_lshl3_add_u32 s60, s3, s60
        s_lshr_b32 s61, s4, 3
        s_lshl2_add_u32 s49, s60, s61
        s_lshl_b32 s49, s49, 9
        s_add_u32 s49, s49, %d
        """ % E1)
        extra += ["s_mov_b32 exec_hi, 0", "buffer_store_dwordx4 v[64:67], v26, s[36:39], s49 offen"]
    if o["prewml"]:
        e("""
        s_lshl_b32 s53, s3, 11
        s_and_b32 s60, s4, 15
        s_lshl4_add_u32 s53, s60, s53
        s_lshr_b32 s60, s4, 4
        s_lshl3_add_u32 s53, s60, s53
        s_add_u32 s53, s53, %d
        v_lshlrev_b32 v41, 8, v1
        """ % ML)
        extra += ["s_mov_b64 exec, 0xff", "buffer_store_dwordx2 v[64:65], v41, s[36:39], s53 offen"]
    if extra:
        extra.append("s_mov_b64 exec, -1")
        for t in extra:
            e(t)
    if e1bf:
        e("""
        s_and_b32 s60, s4, 7
        s_lshl3_add_u32 s60, s3, s60
        s_lshr_b32 s61, s4, 3
        s_lshl2_add_u32 s49, s60, s61
        s_lshl_b32 s49, s49, 8
        s_add_u32 s49, s49, %d
        s_mov_b64 exec, 0xffff
        buffer_store_dwordx4 v[52:55], v26, s[36:39], s49 offen
        s_mov_b64 exec, -1
        """ % E1)
    e("""
    s_movk_i32 s42, %d
    s_mov_b32 s59, %d
    s_getreg_b32 s60, hwreg(HW_REG_XCC_ID, 0, 4)
    s_lshl_b32 s69, s60, 10
    s_lshl_b32 s68, s3, 7
    s_add_u32 s68, s68, %d
    s_lshl2_add_u32 s67, s4, s68
    v_mov_b32 v57, 0
    v_and_b32 v47, 31, v1
    v_lshlrev_b32 v47, 2, v47
    """ % (TAGMASK, o["retry"], E0))
    if o["prew3"] and o["inbox"]:
        e("""
        s_and_b32 s60, s4, 3
        s_lshl2_add_u32 s55, s5, s60
        s_lshl_b32 s55, s55, 15
        s_lshr_b32 s60, s4, 2
        s_lshl3_add_u32 s60, s6, s60
        s_lshl_b32 s60, s60, 5
        s_add_u32 s55, s55, s60
        s_add_u32 s55, s55, %d
        v_lshrrev_b32 v26, 1, v1
        v_lshlrev_b32 v26, 10, v26
        v_and_b32 v60, 1, v1
        v_lshl_add_u32 v26, v60, 4, v26
        """ % E3)
    elif o["prew3"]:
        e("""
        s_and_b32 s60, s4, 3
        s_lshl2_add_u32 s55, s5, s60
        s_lshl_b32 s55, s55, 5
        s_lshl3_add_u32 s55, s6, s55
        s_lshr_b32 s60, s4, 2
        s_add_u32 s55, s55, s60
        s_lshl_b32 s55, s55, 10
        s_add_u32 s55, s55, %d
        """ % E3)
    if o["prew3"]:
        e("""
        v_mov_b32 v60, 0
        v_mov_b32 v61, 1
        v_mov_b32 v62, 2
        v_mov_b32 v63, 3
        """)
    e("s_waitcnt vmcnt(0) lgkmcnt(0)" if e1bf else "s_waitcnt lgkmcnt(0)")
    e("""
    s_add_u32 s43, s43, 1
    s_and_b32 s41, s43, s42
    s_mov_b32 s42, 0xffffc3ff
    s_and_b32 s46, s43, s42
    s_or_b32 s69, s69, s46
    s_mov_b32 s46, s69
    v_mov_b32 v56, s69
    s_mov_b64 exec, 1
    buffer_store_dword v56, v57, s[36:39], s67 offen sc1
    """)
    if o["lflag"] & 2:
        e("s_add_u32 s60, s67, %d" % (FL - E0))
        e("buffer_store_dword v57, v57, s[36:39], s60 offen")
    e("s_mov_b64 exec, -1")
    if o["prew3"]:
        note("an invalid granule written ahead makes the later write-through of the output partials faster")
        e("buffer_store_dwordx4 v[60:63], v26, s[36:39], s55 offen sc1")
    if o["e0ack"]:
        e("s_waitcnt vmcnt(0)")
    if o["e0s"]:
        e("""
        s_add_u32 s10, s36, s68
        s_addc_u32 s11, s37, 0
        L_hpoll:
        s_sub_u32 s59, s59, 1
        s_cbranch_scc1 L_end
        s_load_dwordx16 s[68:83], s[10:11], 0 glc
        s_load_dwordx16 s[84:99], s[10:11], 64 glc
        s_waitcnt lgkmcnt(0)
        """.replace("s[68:83]", "s[64:79]").replace("s[84:99]", "s[80:95]"))
        e("s_xor_b32 s60, s64, s46")
        for i in range(1, 32):
            e("s_xor_b32 s61, s%d, s46" % (64 + i))
            e("s_or_b32 s60, s60, s61")
        e("""
        s_and_b32 s61, s60, s42
        s_cbranch_scc1 L_hpoll
        s_mov_b32 s69, s60
        s_waitcnt vmcnt(0)
        """)
    else:
        e("""
        L_hpoll:
        s_sub_u32 s59, s59, 1
        s_cbranch_scc1 L_end
        buffer_load_dword v58, v47, s[36:39], s68 offen sc1
        s_waitcnt vmcnt(0)
        v_xor_b32 v58, s69, v58
        v_and_b32 v59, s42, v58
        v_cmp_ne_u32 vcc, 0, v59
        s_cbranch_vccnz L_hpoll
        v_cmp_ne_u32 vcc, 0, v58
        s_or_b32 s69, vcc_lo, vcc_hi
        """)
    if o["force_global"]:
        e("s_mov_b32 s69, 1")
    e("""
    s_cmp_lg_u32 s69, 0
    s_cbranch_scc1 L_hglob
    L_hdone:
    v_mov_b32 v56, s69
    v_mov_b32 v57, %d
    ds_write_b32 v57, v56
    s_waitcnt lgkmcnt(0)
    """ % MODE)
    if o["hcons"]:
        e("""
        s_barrier
        s_load_dwordx2 s[32:33], s[0:1], 80
        s_movk_i32 s34, 4096
        s_mov_b32 s35, 0x20000
        s_movk_i32 s42, %d
        v_and_b32 v58, 1, v1
        v_lshrrev_b32 v48, 1, v1
        v_lshlrev_b32 v48, 10, v48
        v_lshl_add_u32 v48, v58, 4, v48
        v_lshl_add_u32 v46, v3, 2, v2
        v_lshlrev_b32 v46, 1, v46
        s_lshl_b32 s56, s3, 15
        s_lshl_b32 s60, s4, 5
        s_add_u32 s56, s56, s60
        s_add_u32 s56, s56, %d
        s_lshl_b32 s57, s3, 9
        s_lshl4_add_u32 s57, s4, s57
        s_lshl_b32 s60, s3, 7
        s_add_u32 s60, s60, %d
        s_waitcnt lgkmcnt(0)
        s_barrier
        s_barrier
        s_barrier
        s_cmp_lg_u32 s69, 0
        s_cbranch_scc1 L_nofl
        L_flp:
        s_sub_u32 s59, s59, 1
        s_cbranch_scc1 L_end
        buffer_load_dword v52, v47, s[36:39], s60 offen sc1
        s_waitcnt vmcnt(0)
        v_cmp_ne_u32 vcc, s43, v52
        s_cbranch_vccnz L_flp
        L_nofl:
        """ % (TAGMASK, E3, FL))
        if o["hdelay"]:
            for _ in range(o["hdelay"]):
                e("buffer_load_dword v52, v47, s[36:39], s60 offen sc1\ns_waitcnt vmcnt(0)")
        final_reduce()
        e("L_hfin:")
    e("s_endpgm")
    note("group spread over several dies: repeat the clears write-through" +
         (", then wait until the whole group has done so" if e1bf else ""))
    e("L_hglob:")
    for t in clears + extra:
        e(t + (" sc1" if t.startswith("buffer") else ""))
    if e1bf:
        e("""
        s_mov_b64 exec, 0xffff
        buffer_store_dwordx4 v[52:55], v26, s[36:39], s49 offen sc1
        s_mov_b64 exec, 1
        s_waitcnt vmcnt(0)
        buffer_store_dword v56, v57, s[36:39], s67 offen offset:1024 sc1
        s_mov_b64 exec, -1
        L_hpoll2:
        s_sub_u32 s59, s59, 1
        s_cbranch_scc1 L_end
        buffer_load_dword v58, v47, s[36:39], s68 offen offset:1024 sc1
        s_waitcnt vmcnt(0)
        v_xor_b32 v58, s46, v58
        v_and_b32 v58, s42, v58
        v_cmp_ne_u32 vcc, 0, v58
        s_cbranch_vccnz L_hpoll2
        """)
    else:
        e("s_waitcnt vmcnt(0)")
    e("s_branch L_hdone")
    for k, texts in cold:
        e("L_glob%d:" % k)
        for t in texts:
            e(t + (" sc1" if t.startswith("buffer") else ""))
        e("s_branch L_st%d" % k)

    ref = open("cdna_kernels/%s.s.ref" % KN).read()
    layout = "".join(l + "\n" for l in ref.split("\n") if l.startswith(";   offset") or l.startswith("; Kernarg"))
    head = layout + """; Fused decode attention for both branches: q = x Wq, GQA attention over the last 4096 keys, out = o Wo.
; One launch of 256 workgroups, 32 per (branch, kv head); all of them are resident at once.
; Every byte of Wq, K, V and Wo is loaded exactly once, as one paced stream per wave.  Three hand-offs go
; through d_ws: q partials and o partials inside a group, output partials across the four groups of a branch.
; A handed-off word is valid when it carries this launch's tag (f32 data, tag in the low 10 mantissa bits)
; or differs from the sentinel its slot was cleared to earlier in this launch (packed bf16 data).
; @launch grid=(256,1,1) block=(320,1,1) lds=%d
.amdgcn_target "amdgcn-amd-amdhsa--gfx950"
.text
.globl %s_kernel
.p2align 8
.type %s_kernel,@function
""" % (LDS_BYTES, KN, KN)
    tail = """.section .rodata,"a"
.p2align 6
.amdhsa_kernel %s_kernel
  .amdhsa_next_free_vgpr 256
  .amdhsa_next_free_sgpr 102
  .amdhsa_accum_offset 256
  .amdhsa_group_segment_fixed_size 0
  .amdhsa_kernarg_size 104
  .amdhsa_user_sgpr_count 2
  .amdhsa_user_sgpr_kernarg_segment_ptr 1
  .amdhsa_system_sgpr_workgroup_id_x 1
  .amdhsa_float_denorm_mode_32 3
.end_amdhsa_kernel
""" % KN
    gen.names = names
    return head + p.text() + tail


if __name__ == "__main__":
    kw = eval("dict(%s)" % (sys.argv[2] if len(sys.argv) > 2 else ""))
    open(sys.argv[1], "w").write(gen(**kw))
```

```python
import struct
import sys
from asmlib import Prog

KN = "concat_heads__sliding_block_cached__sliding_block_cached__decode"
WS_BYTES = 301993984
TS_OFF = 200 << 20

EPOCH = 0x0
E0 = 0x1000
FL = 0x2000
E1 = 0x8000
ML = 0x30000
E3 = 0x40000
E2O = 0x80000
QRED = 32768
QB = 34816
ORED = 37120
MLR = 54016
OUTRED = 54272
MODE = 58368
OB = 58384
LDS_BYTES = 58464
TAGMASK = 0x3FF

DEFAULTS = dict(Wq=6, Wk=6, Wv=6, W=5, G1=4, B1=4, G2=12, B2=4, spr=(1, 1, 1, 1, 1, 1), early_chunks=3,
                e1bf=False, prew3=False, mimic=False, stamps=False, dump=False, probe=None, retry=1 << 20,
                force_global=False, e0s=False, e0ack=True, inbox=False, maxfirst=False, hyb=False, vstep=True, thr=0, thrspr=False, lflag=1, hcons=False, flw=3, hdelay=0, prew1=False, prewml=False, flate=False, swap3=False, xpos=0, x16=False, ct0=0, issfirst=False, ntq="nt", ntk="nt", ntv="nt", nto="nt", qmap=None, kvmap=None, pageoff=2048)


def f32bits(x):
    return struct.unpack("<I", struct.pack("<f", x))[0]


def vr(a, n=4):
    return "v[%d:%d]" % (a, a + n - 1)


def gen(**kw):
    o = dict(DEFAULTS)
    for k in kw:
        assert k in o, k
    o.update(kw)
    p = Prog()
    e = p.e
    e1bf = o["e1bf"]
    maxfirst, hyb = o["maxfirst"], o["hyb"]
    stamp_n = [0]
    names = []
    cold = []

    def note(text):
        for line in text.strip().split("\n"):
            e("; " + line.strip())

    def stamp(name, level=0):
        want = o["stamps"]
        if want and (name in want if isinstance(want, (list, tuple)) else level == 0):
            k = 70 + 2 * stamp_n[0]
            assert k <= 98
            e("s_memrealtime s[%d:%d]" % (k, k + 1))
            stamp_n[0] += 1
            names.append(name)

    def dump(reg, n, slot):
        if o["dump"]:
            e("s_mov_b32 s61, %d" % (TS_OFF + (1 << 20) + slot * (4 << 20)))
            for i in range(n):
                p.vm("buffer_store_dword v%d, v60, s[36:39], s61 offen offset:%d" % (reg + i, 4 * i))
            e("s_waitcnt vmcnt(0)")

    def handoff_stores(texts):
        k = len(cold) + 1
        e("s_cmp_eq_u32 s69, 0")
        e("s_cbranch_scc0 L_glob%d" % k)
        for t in texts:
            e(t)
        e("L_st%d:" % k)
        cold.append((k, texts))

    def retry_code(lb, chk, g):
        n0 = p.nvm
        e("%s:" % lb)
        if o["thr"] and lb == "L_retry1":
            e("s_mov_b32 s67, 1")
        e("s_sub_u32 s59, s59, 1")
        e("s_cbranch_scc1 L_end")
        g()
        e("s_waitcnt vmcnt(0)")
        e("s_branch %s" % chk)
        p.nvm = n0

    SCALE = 128 ** -0.5
    LOG2E = 1.4426950408889634
    DATA = 64
    KOP = 128
    VRAW = 160
    VT = 192
    G1R = 224
    QOP = 240
    AB = (10, 14)
    QACC = 18
    MASK = 6
    W = o["W"]

    e("%s_kernel:" % KN)
    note("""s2 = 8*j + grp, grp = 4*branch + kvh.  Waves 0-3 stream and compute, wave 4 is the helper.
    q tile: head j&7, rows 64*t + 16*(j>>3) + 4*wave + g (g = lane>>4, t = load index).""")
    e("""
    s_and_b32 s7, s2, 4
    s_mul_i32 s7, s7, 10
    s_add_u32 s8, s0, s7
    s_addc_u32 s9, s1, 0
    s_load_dwordx2 s[24:25], s[8:9], 24
    s_load_dwordx2 s[12:13], s[8:9], 0
    s_load_dwordx2 s[36:37], s[0:1], 96
    v_lshrrev_b32 v50, 6, v0
    v_bfe_u32 v2, v0, 4, 2
    v_readfirstlane_b32 s40, v50
    v_and_b32 v3, 15, v0
    s_cmpk_ge_u32 s2, 256
    s_cbranch_scc1 L_end
    v_lshlrev_b32 v5, 4, v3
    v_lshlrev_b32 v4, 7, v3
    v_lshl_add_u32 v5, v2, 13, v5
    v_lshl_add_u32 v4, v2, 1, v4
    s_bfe_u32 s5, s2, 0x10002
    s_cmp_eq_u32 s40, 4
    s_cbranch_scc1 L_helper
    s_mov_b32 s27, 0x20000
    s_mov_b32 s26, 0x800000
    s_movk_i32 s14, 2048
    s_mov_b32 s15, s27
    s_lshr_b32 s44, s2, 6
    s_lshl2_add_u32 s44, s44, s40
    s_and_b32 s45, s2, 3
    s_lshl4_add_u32 s45, s44, s45
    s_lshl_b32 s45, s45, 6
    s_and_b32 s60, s2, 56
    s_add_u32 s45, s45, s60
    s_lshl_b32 s45, s45, 5
    s_lshl_b32 s44, s44, 3
    s_waitcnt lgkmcnt(0)
    """)
    qsteps = [64 * 8192] * 15
    if o["qmap"]:
        order, cbits, sbits = o["qmap"]
        rb = {nm: i for i, nm in enumerate(order.split())}
        e("s_mov_b32 s44, 0\nv_mov_b32 v4, 0\nv_lshlrev_b32 v5, 4, v3")
        for reg, pre, bits in ((40, "w", (0, 1)), (2, "s", sbits)):
            for i, b in enumerate(bits):
                e("s_bfe_u32 s60, s%d, 0x%x\ns_lshl_b32 s60, s60, %d\ns_add_u32 s44, s44, s60" % (reg, 0x10000 | b, rb["%s%d" % (pre, i)]))
        e("s_lshl_b32 s45, s44, 13\ns_lshl_b32 s44, s44, 1\ns_and_b32 s60, s2, 3\ns_lshl_b32 s60, s60, 11\ns_add_u32 s45, s45, s60")
        for i, b in enumerate(cbits):
            e("s_bfe_u32 s60, s2, 0x%x\ns_lshl_b32 s60, s60, %d\ns_add_u32 s45, s45, s60" % (0x10000 | b, 8 + i))
        for i in range(2):
            e("v_bfe_u32 v51, v2, %d, 1\nv_lshl_add_u32 v5, v51, %d, v5\nv_lshl_add_u32 v4, v51, %d, v4" % (i, 13 + rb["g%d" % i], 1 + rb["g%d" % i]))
        for i in range(4):
            e("v_bfe_u32 v51, v3, %d, 1\nv_lshl_add_u32 v4, v51, %d, v4" % (i, 1 + rb["t%d" % i]))
        off = lambda t: sum(8192 << rb["t%d" % i] for i in range(4) if t >> i & 1)
        qsteps = [off(t + 1) - off(t) for t in range(15)]
    kvsteps = [131072] * 7
    stamp("entry")

    def xload():
        if o["x16"]:
            e("s_mov_b64 exec, 0xffff")
            s = p.vm("buffer_load_dwordx2 v[50:51], v4, s[12:15], s44 offen")
            e("s_mov_b64 exec, -1")
            return s
        return p.vm("buffer_load_ushort v4, v4, s[12:15], s44 offen")

    stream = []
    for t in range(16):
        def f(t=t):
            s = p.vm("buffer_load_dwordx4 %s, v5, s[24:27], s45 offen %s" % (vr(DATA + 4 * t), o["ntq"]))
            if t < 15:
                e("s_add_u32 s45, s45, %d" % qsteps[t] if qsteps[t] >= 0 else "s_sub_u32 s45, s45, %d" % -qsteps[t])
            return s
        stream.append(f)
    for jj in range(8):
        def f(jj=jj):
            e("s_mov_b32 m0, s58")
            if jj < 7:
                e("s_add_u32 s58, s58, 4096")
            s = p.vm("buffer_load_dwordx4 v%d, s[16:19], s46 offen %s lds" % (22 + (jj & 3), o["ntk"]))
            if jj < 7:
                e("s_add_u32 s46, s46, %d" % (kvsteps[jj] & 0xffffffff))
            return s
        stream.append(f)
    for jj in range(8):
        def f(jj=jj):
            s = p.vm("buffer_load_dwordx4 %s, v26, s[20:23], s47 offen %s" % (vr(VRAW + 4 * jj), o["ntv"]))
            if jj < 7:
                e("s_add_u32 s47, s47, %d" % (kvsteps[jj] & 0xffffffff))
            return s
        stream.append(f)
    for t in range(6 if hyb else 8):
        for c2 in range(2):
            def f(t=t, c2=c2):
                s = p.vm("buffer_load_dwordx4 %s, v27, s[28:31], s48 offen offset:%d %s" % (
                    vr(DATA + 8 * t + 4 * c2), 256 * c2, o["nto"]))
                if c2 == 1 and t < 7:
                    e("s_add_u32 s48, s48, %d" % (8192 if t % 2 == 0 else 57344))
                return s
            stream.append(f)
    if hyb:
        for u in range(4):
            def f(u=u):
                s = p.vm("buffer_load_dwordx4 %s, v24, s[28:31], s67 offen nt" % vr(DATA + 48 + 4 * u))
                if u < 3:
                    e("s_add_u32 s67, s67, 16384")
                return s
            stream.append(f)
    seq = []
    done = [0]
    actions = {}

    def issue(k=1):
        for _ in range(k):
            if len(seq) < len(stream):
                seq.append(stream[len(seq)]())

    def arrive(idx):
        if idx < done[0]:
            return
        assert idx < len(seq)
        p.wait_vm(seq[idx])
        while done[0] <= idx:
            a = actions.get(done[0])
            if a:
                a()
            done[0] += 1

    def win(idx):
        return o["Wq"] if idx < 16 else o["Wk"] if idx < 24 else o["Wv"] if idx < 32 else W

    throttle = [False]
    thr_n = [0]

    def extra_wait():
        k = len(seq) - win(len(seq)) + o["thr"]
        if throttle[0] and o["thr"] and done[0] <= k < len(seq):
            thr_n[0] += 1
            e("s_cmp_eq_u32 s67, 0\ns_cbranch_scc1 L_thr%d" % thr_n[0])
            p.wait_vm(seq[k])
            e("L_thr%d:" % thr_n[0])

    def pace(upto):
        upto = min(upto, len(stream))
        while len(seq) < upto:
            if len(seq) - win(len(seq)) >= done[0]:
                arrive(len(seq) - win(len(seq)))
            extra_wait()
            issue(1)

    def sprinkle(k):
        for _ in range(k):
            if o["thrspr"] and len(seq) < len(stream):
                extra_wait()
            issue(1)

    def top_up():
        while len(seq) < len(stream) and len(seq) - win(len(seq)) < done[0]:
            issue(1)

    issue(o["xpos"])
    xop = xload()
    issue(win(0) - o["xpos"])
    e("""
    s_lshl_b32 s7, s5, 8
    s_load_dword s43, s[36:37], s7
    s_load_dwordx2 s[16:17], s[8:9], 8
    s_load_dwordx2 s[20:21], s[8:9], 16
    s_load_dwordx2 s[28:29], s[8:9], 32
    s_load_dwordx2 s[32:33], s[0:1], 80
    """)
    stamp("issued")

    chunks = []
    c = """
    v_and_b32 v50, 1, v3
    v_lshlrev_b32 v50, 4, v50
    v_mov_b32 v51, 0xffff
    v_lshlrev_b32 v50, v50, v51
    v_lshrrev_b32 v51, 1, v3
    """
    for d in range(4):
        c += "v_cmp_eq_u32 s[%d:%d], %d, v51\n" % (50 + 2 * d, 51 + 2 * d, d)
    c += """
    v_and_b32 v1, 63, v0
    s_and_b32 s3, s2, 7
    """
    for d in range(4):
        c += "v_cndmask_b32 v%d, 0, v50, s[%d:%d]\n" % (MASK + d, 50 + 2 * d, 51 + 2 * d)
    c += """
    s_lshr_b32 s4, s2, 3
    s_and_b32 s6, s2, 3
    s_mov_b32 s38, %d
    s_mov_b32 s39, 0x20000
    s_movk_i32 s42, %d
    s_mov_b32 s59, %d
    """ % (WS_BYTES, TAGMASK, o["retry"])
    if o["thr"]:
        assert not hyb
        c += "s_mov_b32 s67, 0\n"
    chunks.append(c)
    chunks.append("""
    ; keys of a wave: 61440 + 512*jj + 128*wave + 4*j + g; K rows go to LDS with their 16-byte chunks xor-swizzled
    s_mov_b32 s18, 0x4000000
    s_mov_b32 s19, 0x20000
    s_mov_b32 s22, 0x4000000
    s_mov_b32 s23, 0x20000
    s_lshl_b32 s46, s6, 24
    s_lshl_b32 s61, s4, 10
    s_add_u32 s46, s46, s61
    s_lshl_b32 s61, s40, 15
    s_add_u32 s46, s46, s61
    s_add_u32 s46, s46, %d
    s_mov_b32 s47, s46
    s_lshl_b32 s58, s40, 10
    v_lshlrev_b32 v26, 4, v1
    v_lshlrev_b32 v50, 2, v2
    v_xor_b32 v50, v50, v3
    v_lshlrev_b32 v50, 4, v50
    v_lshl_add_u32 v22, v2, 8, v50
    v_xor_b32 v23, 16, v22
    v_xor_b32 v24, 32, v22
    v_xor_b32 v25, 48, v22
    v_and_b32 v50, 3, v3
    v_lshlrev_b32 v50, 4, v50
    v_lshrrev_b32 v51, 2, v3
    v_add_u32 v50, v50, v51
    v_lshlrev_b32 v50, 8, v50
    v_add_u32 v50, s58, v50
    v_xor_b32 v51, v2, v3
    v_lshl_add_u32 v28, v51, 4, v50
    v_xor_b32 v29, 64, v28
    v_xor_b32 v30, 0x80, v28
    v_xor_b32 v31, 0xc0, v28
    """ % (61440 * 256))
    if o["kvmap"]:
        kb = {nm: i for i, nm in enumerate(o["kvmap"].split())}
        assert kb["g0"] == 0 and kb["g1"] == 1
        c = "s_lshl_b32 s46, s6, 24\ns_add_u32 s46, s46, %d\n" % (61440 * 256)
        for reg, pre, n in ((40, "w", 2), (4, "j", 5)):
            for i in range(n):
                c += "s_bfe_u32 s61, s%d, 0x%x\ns_lshl_b32 s61, s61, %d\ns_add_u32 s46, s46, s61\n" % (reg, 0x10000 | i, 8 + kb["%s%d" % (pre, i)])
        c += "s_mov_b32 s47, s46\n"
        chunks[1] += c
        offk = lambda t: sum(256 << kb["t%d" % i] for i in range(3) if t >> i & 1)
        kvsteps[:] = [offk(t + 1) - offk(t) for t in range(7)]
    c = """
    ; LDS addresses of the two cross-wave sums, hand-off slots of the q partials
    v_lshl_add_u32 v62, v3, 1, v2
    v_lshlrev_b32 v62, 4, v62
    s_lshl_b32 s60, s40, 10
    s_add_u32 s60, s60, %d
    v_add_u32 v44, s60, v62
    s_lshl_b32 s60, s40, 9
    s_add_u32 s60, s60, %d
    v_add_u32 v62, s60, v62
    s_lshl_b32 s60, s40, 7
    s_add_u32 s60, s60, %d
    v_add_u32 v63, s60, v26
    s_lshl_b32 s60, s40, 8
    s_add_u32 s60, s60, %d
    v_add_u32 v61, s60, v26
    """ % (OUTRED, QRED, QRED, OUTRED)
    sh = 0 if not e1bf else 1
    c += """
    s_lshl_b32 s50, s3, %d
    s_add_u32 s50, s50, %d
    s_and_b32 s60, s4, 7
    s_lshl_b32 s60, s60, %d
    s_add_u32 s49, s50, s60
    s_lshr_b32 s60, s4, 3
    s_lshl2_add_u32 s60, s60, s40
    s_lshl_b32 s60, s60, %d
    s_add_u32 s49, s49, s60
    s_lshl_b32 s60, s40, %d
    s_add_u32 s50, s50, s60
    """ % (14 - sh, E1, 11 - sh, 7 - sh, 12 - sh)
    if e1bf:
        c += "v_lshlrev_b32 v33, 3, v1\n"
    if o["qmap"]:
        order, cbits, sbits = o["qmap"]
        c += "s_lshl_b32 s49, s3, 14\ns_add_u32 s49, s49, %d\ns_lshl_b32 s60, s40, 7\ns_add_u32 s49, s49, s60\n" % E1
        for i, b in enumerate(cbits):
            c += "s_bfe_u32 s60, s2, 0x%x\ns_lshl_b32 s60, s60, %d\ns_add_u32 s49, s49, s60\n" % (0x10000 | b, 11 + i)
        for i, b in enumerate(sbits):
            c += "s_bfe_u32 s60, s2, 0x%x\ns_lshl_b32 s60, s60, %d\ns_add_u32 s49, s49, s60\n" % (0x10000 | b, 9 + i)
    chunks.append(c)
    c = """
    v_lshrrev_b32 v52, 5, v1
    v_and_b32 v53, 31, v1
    v_lshlrev_b32 v54, 4, v53
    s_lshl_b32 s60, s40, 1
    v_add_u32 v55, s60, v52
    v_and_b32 v56, 7, v3
    """
    if e1bf:
        c += """
        v_lshrrev_b32 v57, 4, v53
        v_add_u32 v58, s60, v57
        v_mul_u32_u24 v34, 288, v58
        v_lshl_add_u32 v34, v3, 4, v34
        v_lshl_add_u32 v34, v52, 3, v34
        v_add_u32 v34, %d, v34
        v_lshlrev_b32 v45, 4, v3
        v_lshl_add_u32 v45, v57, 10, v45
        v_lshl_add_u32 v45, v52, 9, v45
        """ % QB
    else:
        c += """
        v_lshl_add_u32 v45, v52, 11, v54
        v_mul_u32_u24 v34, 288, v55
        v_lshl_add_u32 v34, v53, 3, v34
        v_add_u32 v34, %d, v34
        """ % QB
    c += """
    v_mul_u32_u24 v35, 288, v56
    v_lshl_add_u32 v35, v2, 4, v35
    v_add_u32 v35, %d, v35
    v_mul_u32_u24 v37, 528, v55
    v_add_u32 v37, v37, v54
    v_add_u32 v37, %d, v37
    v_lshlrev_b32 v39, %d, v55
    v_add_u32 v39, %d, v39
    v_lshlrev_b32 v40, 3, v53
    v_lshl_add_u32 v40, v52, 13, v40
    v_lshlrev_b32 v41, 8, v52
    """ % (QB, ORED, 4 if maxfirst else 5, MLR)
    chunks.append(c)
    chunks.append("""
    v_mul_u32_u24 v36, 528, v56
    v_lshl_add_u32 v36, v2, 5, v36
    v_lshrrev_b32 v57, 3, v3
    v_lshl_add_u32 v36, v57, 4, v36
    s_mul_i32 s60, s40, 4224
    s_add_u32 s60, s60, %d
    v_add_u32 v36, s60, v36
    s_lshl_b32 s60, s40, %d
    s_add_u32 s60, s60, %d
    v_lshlrev_b32 v38, %d, v56
    v_add_u32 v38, s60, v38
    v_lshrrev_b32 v59, 2, v1
    v_and_b32 v50, 3, v1
    v_lshlrev_b32 v42, 4, v50
    v_lshl_add_u32 v42, v59, 8, v42
    v_lshlrev_b32 v43, 4, v59
    v_and_b32 v58, 1, v1
    v_lshrrev_b32 v48, 1, v1
    v_lshlrev_b32 v48, 10, v48
    v_lshl_add_u32 v48, v58, 4, v48
    v_lshl_add_u32 v46, v3, 2, v2
    v_lshlrev_b32 v46, 1, v46
    """ % (ORED, 2 if maxfirst else 3, MLR, 4 if maxfirst else 5) + ("""
    v_lshlrev_b32 v49, 4, v56
    v_add_u32 v49, %d, v49
    """ % MLR if maxfirst else ""))
    chunks.append("""
    ; wo tile: rows 1024*kvh + 128*(j>>2) + wave + 4*(t&1) + 8*g + 32*(t>>1), columns 256*(j&3) .. +255
    s_mov_b32 s30, 0x800000
    s_mov_b32 s31, 0x20000
    s_movk_i32 s34, 4096
    s_mov_b32 s35, 0x20000
    s_lshl_b32 s48, s6, 21
    s_lshr_b32 s61, s4, 2
    s_lshl_b32 s61, s61, 18
    s_add_u32 s48, s48, s61
    s_and_b32 s61, s4, 3
    s_lshl_b32 s61, s61, 9
    s_add_u32 s48, s48, s61
    s_lshl_b32 s61, s40, 11
    s_add_u32 s48, s48, s61
    v_lshlrev_b32 v27, 4, v3
    v_lshl_add_u32 v27, v2, 14, v27
    """ + ("""
    s_sub_u32 s67, s48, s61
    s_lshl_b32 s61, s40, 7
    s_add_u32 s67, s67, s61
    s_add_u32 s67, s67, %d
    """ % (96 * 2048) if hyb else ""))
    chunks.append("""
    ; hand-off slots of the o partials and of their (max, sum) pairs
    s_lshl_b32 s51, s3, 16
    s_lshl_b32 s60, s40, 14
    s_add_u32 s51, s51, s60
    s_lshl_b32 s60, s4, 8
    s_add_u32 s51, s51, s60
    s_add_u32 s51, s51, %d
    s_lshl_b32 s52, s3, 11
    s_lshl_b32 s60, s40, 9
    s_add_u32 s52, s52, s60
    s_and_b32 s60, s4, 15
    s_lshl4_add_u32 s52, s60, s52
    s_lshr_b32 s60, s4, 4
    s_lshl3_add_u32 s52, s60, s52
    s_add_u32 s52, s52, %d
    s_lshr_b32 s61, s4, 2
    s_lshl3_add_u32 s61, s3, s61
    s_lshl_b32 s53, s61, 13
    s_lshl_b32 s60, s40, 6
    s_add_u32 s53, s53, s60
    s_add_u32 s53, s53, %d
    s_add_u32 s66, s53, 4096
    s_lshl_b32 s54, s61, 8
    s_add_u32 s54, s54, %d
    """ % (E2O, ML, E2O, ML))
    c = """
    """
    if o["inbox"]:
        c += """
        s_and_b32 s60, s4, 3
        s_lshl2_add_u32 s55, s5, s60
        s_lshl_b32 s55, s55, 15
        s_lshr_b32 s60, s4, 2
        s_lshl3_add_u32 s60, s6, s60
        s_lshl_b32 s60, s60, 5
        s_add_u32 s55, s55, s60
        s_lshl_b32 s60, s40, 13
        s_add_u32 s55, s55, s60
        s_add_u32 s55, s55, %d
        s_lshl_b32 s56, s3, 15
        s_lshl_b32 s60, s4, 10
        s_add_u32 s56, s56, s60
        s_add_u32 s56, s56, %d
        v_mov_b32 v49, v48
        v_mov_b32 v48, v26
        """ % (E3, E3)
    else:
        c += """
        s_and_b32 s60, s4, 3
        s_lshl2_add_u32 s55, s5, s60
        s_lshl_b32 s55, s55, 5
        s_lshl3_add_u32 s55, s6, s55
        s_lshr_b32 s60, s4, 2
        s_add_u32 s55, s55, s60
        s_lshl2_add_u32 s55, s55, s40
        s_lshl_b32 s55, s55, 8
        s_add_u32 s55, s55, %d
        s_lshl_b32 s56, s3, 15
        s_lshl_b32 s60, s4, 5
        s_add_u32 s56, s56, s60
        s_add_u32 s56, s56, %d
        """ % (E3, E3)
    c += """
    s_lshl_b32 s57, s3, 9
    s_lshl4_add_u32 s57, s4, s57
    s_mov_b32 s62, 0x05040100
    s_mov_b32 s63, 0x07060302
    s_mov_b32 s64, 0x00ff00ff
    s_mov_b32 s65, 0x00ff00ff
    """
    if o["dump"]:
        c += "v_lshlrev_b32 v60, 6, v0\ns_lshl_b32 s60, s2, 14\nv_add_u32 v60, s60, v60\n"
    chunks.append(c)
    chunks.append("""
    s_waitcnt lgkmcnt(0)
    s_add_u32 s43, s43, 1
    s_and_b32 s41, s43, s42
    v_mov_b32 v32, s41
    v_mov_b32 v47, 0x3f803f80
    """)

    if o["x16"]:
        for i in range(o["early_chunks"]):
            chunks[i] = chunks[i].replace("v50", "v56").replace("v51", "v57")

    def chunk():
        if chunks:
            e(chunks.pop(0))

    for _ in range(o["early_chunks"]):
        chunk()
    if o["x16"]:
        e("""
        v_and_b32 v54, 1, v2
        v_mul_u32_u24 v54, 0x0202, v54
        v_mul_u32_u24 v54, 0x1001, v54
        """.replace("v_mul_u32_u24 v54, 0x1001, v54", "v_lshl_or_b32 v54, v54, 16, v54\nv_add_u32 v54, 0x01000100, v54\nv_lshrrev_b32 v55, 1, v2\nv_mul_u32_u24 v55, 0x0404, v55\nv_lshl_or_b32 v55, v55, 16, v55\nv_add_u32 v54, v54, v55"))
    p.wait_vm(xop)
    if o["x16"]:
        e("""
        v_mov_b32 v52, v50
        v_mov_b32 v53, v51
        v_permlane16_swap_b32 v50, v52
        v_permlane16_swap_b32 v51, v53
        v_mov_b32 v52, v50
        v_mov_b32 v53, v51
        v_permlane32_swap_b32 v50, v52
        v_permlane32_swap_b32 v51, v53
        v_perm_b32 v4, v51, v50, v54
        """)
    else:
        e("v_lshl_or_b32 v4, v4, 16, v4")

    def build_a(dst, src, t):
        for d in range(4):
            e("v_and_b32_dpp v%d, v%d, v%d row_newbcast:%d row_mask:0xf bank_mask:0xf" % (dst + d, src, MASK + d, t))

    note("""q projection: a tile holds 4 rows x 128 columns; with a one-hot A operand carrying x[row] the MFMA
    gives D[e][n] += sum_g x[row g] * W[row g][8n + e]""")
    for t in range(16):
        build_a(AB[t & 1], 4, t)
        arrive(t)
        if t in (0, 4, 8, 12):
            stamp("wq%d" % t, 1)
        if o["issfirst"]:
            top_up()
        e("v_mfma_f32_16x16x32_bf16 %s, %s, %s, %s" % (
            vr(QACC), vr(AB[t & 1]), vr(DATA + 4 * t), "0" if t == 0 else vr(QACC)))
        top_up()
        if t >= o["ct0"]:
            chunk()
    assert not chunks
    stamp("qdone")
    e("v_mov_b32 v53, %d" % MODE)
    e("s_mov_b32 exec_hi, 0")
    e("ds_write_b128 v62, %s" % vr(QACC))
    e("s_mov_b64 exec, 0xff")
    e("s_waitcnt lgkmcnt(0)")
    stamp("preB1", 1)
    e("s_barrier")
    stamp("B1", 1)
    e("ds_read_b32 v52, v53")
    for w2 in range(4):
        e("ds_read_b128 %s, v63 offset:%d" % (vr(G1R + 4 * w2), 512 * w2))
    e("s_waitcnt lgkmcnt(0)")
    e("v_readfirstlane_b32 s69, v52")

    def sum4(R):
        for r in (0, 2):
            e("v_pk_add_f32 %s, %s, %s" % (vr(R + r, 2), vr(R + r, 2), vr(R + 4 + r, 2)))
            e("v_pk_add_f32 %s, %s, %s" % (vr(R + 8 + r, 2), vr(R + 8 + r, 2), vr(R + 12 + r, 2)))
        for r in (0, 2):
            e("v_pk_add_f32 %s, %s, %s" % (vr(R + r, 2), vr(R + r, 2), vr(R + 8 + r, 2)))

    def tag4(R):
        for r in range(4):
            e("v_bfi_b32 v%d, s42, v32, v%d" % (R + r, R + r))

    def pack4(R):
        e("v_cvt_pk_bf16_f32 v%d, v%d, v%d" % (R, R, R + 1))
        e("v_cvt_pk_bf16_f32 v%d, v%d, v%d" % (R + 1, R + 2, R + 3))
        e("v_min_u32 v%d, -2, v%d" % (R, R))
        e("v_min_u32 v%d, -2, v%d" % (R + 1, R + 1))

    sum4(G1R)
    if e1bf:
        pack4(G1R)
        handoff_stores(["buffer_store_dwordx2 %s, v33, s[36:39], s49 offen" % vr(G1R, 2)])
    else:
        tag4(G1R)
        handoff_stores(["buffer_store_dwordx4 %s, v26, s[36:39], s49 offen" % vr(G1R)])
    e("s_mov_b64 exec, -1")
    stamp("E1pub")
    PLO, PHI, ONES = AB[0], AB[1], QACC
    for r in range(4):
        e("v_mov_b32 v%d, v47" % (ONES + r))
    for r in range(8):
        e("v_mov_b32 v%d, 0" % (PLO + r))

    def k_read():
        note("K operands of the two 16-key tiles")
        for T in range(2):
            for s in range(4):
                e("ds_read_b128 %s, v%d offset:%d" % (vr(KOP + 16 * T + 4 * s), 28 + s, 16384 * T))
    actions[23] = k_read

    def v_perm(d):
        def f():
            note("V^T operands: pair element e of two consecutive key rows")
            for ee in range(8):
                e("v_perm_b32 v%d, v%d, v%d, s%d" % (
                    VT + 4 * ee + d, VRAW + 4 * (2 * d + 1) + (ee >> 1), VRAW + 4 * (2 * d) + (ee >> 1), 62 + (ee & 1)))
        return f
    for d in range(4):
        actions[24 + 2 * d + 1] = v_perm(d)

    def ortree(regs, tmp):
        regs = list(regs)
        e("v_or3_b32 v%d, v%d, v%d, v%d" % (tmp, regs[0], regs[1], regs[2]))
        regs = regs[3:]
        while len(regs) >= 2:
            e("v_or3_b32 v%d, v%d, v%d, v%d" % (tmp, tmp, regs[0], regs[1]))
            regs = regs[2:]
        if regs:
            e("v_or_b32 v%d, v%d, v%d" % (tmp, tmp, regs[0]))
        e("v_and_b32 v%d, s42, v%d" % (tmp, tmp))
        e("v_cmp_ne_u32 vcc, 0, v%d" % tmp)

    def gather1():
        s = None
        for u in range(2 if e1bf else 4):
            s = p.vm("buffer_load_dwordx4 %s, v45, s[36:39], s50 offen offset:%d sc1" % (
                vr(G1R + 4 * u), (256 if e1bf else 512) * u))
        return s

    pace(24 + o["G1"])
    g1 = gather1()
    stamp("g1iss")
    pace(len(seq) + o["B1"])
    arrive(23)
    SEL = [28, 29, 30, 31, 62, 63, 0, 33]
    if hyb:
        assert not e1bf and not o["dump"]
        e("""
        v_lshrrev_b32 v52, 3, v1
        v_and_b32 v53, 7, v1
        v_lshlrev_b32 v24, 4, v53
        v_lshl_add_u32 v24, v52, 11, v24
        v_lshlrev_b32 v22, 3, v52
        v_add_u32 v22, %d, v22
        v_lshl_add_u32 v25, v3, 1, v2
        v_lshlrev_b32 v25, 4, v25
        s_lshl_b32 s61, s40, 8
        s_add_u32 s61, s61, %d
        v_add_u32 v61, s61, v25
        s_lshl_b32 s61, s40, 3
        s_add_u32 s61, s61, %d
        v_lshlrev_b32 v23, 1, v2
        v_add_u32 v23, s61, v23
        v_and_b32 v52, 7, v3
        v_lshrrev_b32 v53, 1, v52
        v_and_b32 v52, 1, v3
        v_cmp_eq_u32 vcc, 1, v52
        v_mov_b32 v54, 0x0c0c0100
        v_mov_b32 v55, 0x01000c0c
        v_cndmask_b32 v54, v54, v55, vcc
        v_mov_b32 v52, 0x0c0c0302
        v_mov_b32 v55, 0x03020c0c
        v_cndmask_b32 v55, v52, v55, vcc
        v_mov_b32 v52, 0x0c0c0c0c
        """ % (OB, OUTRED, OB))
        for d in range(4):
            e("v_cmp_eq_u32 vcc, %d, v53" % d)
            e("v_cndmask_b32 v%d, v52, v54, vcc" % SEL[2 * d])
            e("v_cndmask_b32 v%d, v52, v55, vcc" % SEL[2 * d + 1])
    p.wait_vm(g1)
    e("L_chk1:")
    stamp("g1arr")
    if e1bf:
        T8 = G1R + 8
        for i in range(4):
            e("v_perm_b32 v%d, v%d, v%d, s62" % (T8 + 2 * i, G1R + 4 + i, G1R + i))
            e("v_perm_b32 v%d, v%d, v%d, s63" % (T8 + 2 * i + 1, G1R + 4 + i, G1R + i))
        for i in range(8):
            e("v_dot2_f32_bf16 v%d, v%d, v47, 0" % (T8 + i, T8 + i))
        e("v_max3_u32 v54, v%d, v%d, v%d" % (G1R, G1R + 1, G1R + 2))
        e("v_max3_u32 v55, v%d, v%d, v%d" % (G1R + 3, G1R + 4, G1R + 5))
        for i in range(4):
            e("v_permlane32_swap_b32 v%d, v%d" % (T8 + i, T8 + 4 + i))
        e("v_max3_u32 v54, v54, v%d, v%d" % (G1R + 6, G1R + 7))
        e("v_pk_add_f32 %s, %s, %s" % (vr(50, 2), vr(T8, 2), vr(T8 + 4, 2)))
        e("v_pk_add_f32 %s, %s, %s" % (vr(52, 2), vr(T8 + 2, 2), vr(T8 + 6, 2)))
        e("v_max_u32 v54, v54, v55")
        e("v_cvt_pk_bf16_f32 v50, v50, v51")
        e("v_cvt_pk_bf16_f32 v51, v52, v53")
        e("v_cmp_eq_u32 vcc, -1, v54")
        e("ds_write_b64 v34, v[50:51]")
    else:
        for r in range(16):
            e("v_xor_b32 v%d, s41, v%d" % (G1R + r, G1R + r))
        for r in (0, 2):
            e("v_pk_add_f32 %s, %s, %s" % (vr(50 + r, 2), vr(G1R + r, 2), vr(G1R + 4 + r, 2)))
            e("v_pk_add_f32 %s, %s, %s" % (vr(54 + r, 2), vr(G1R + 8 + r, 2), vr(G1R + 12 + r, 2)))
        for r in (0, 2):
            e("v_pk_add_f32 %s, %s, %s" % (vr(50 + r, 2), vr(50 + r, 2), vr(54 + r, 2)))
        e("v_cvt_pk_bf16_f32 v50, v50, v51")
        e("v_cvt_pk_bf16_f32 v51, v52, v53")
        e("ds_write_b64 v34, v[50:51]")
        ortree(range(G1R, G1R + 16), 54)
    e("s_cbranch_vccz L_ok1")
    retry_code("L_retry1", "L_chk1", gather1)
    e("L_ok1:")
    throttle[0] = True
    if o["vstep"] and o["G1"]:
        arrive(24 + o["G1"] - 1)
    e("s_waitcnt lgkmcnt(0)")
    stamp("preB2", 1)
    e("s_barrier")
    stamp("B2", 1)
    for s4 in range(4):
        e("ds_read_b128 %s, v35 offset:%d" % (vr(QOP + 4 * s4), 64 * s4))
    spr = list(o["spr"])
    sprinkle(spr[0])
    S = G1R
    for s4 in range(4):
        e("s_waitcnt lgkmcnt(%d)" % (0 if o["stamps"] or o["dump"] else 3 - s4))
        if s4 == 0:
            stamp("qop", 1)
            dump(QOP, 16, 0)
        for T in range(2):
            e("v_mfma_f32_16x16x32_bf16 %s, %s, %s, %s" % (
                vr(S + 4 * T), vr(KOP + 16 * T + 4 * s4), vr(QOP + 4 * s4), "0" if s4 == 0 else vr(S + 4 * T)))
    sprinkle(spr[1])
    C = SCALE * LOG2E
    if o["mimic"]:
        e("s_mov_b32 s60, 0x%x" % f32bits(SCALE))
        for rnd in range(2):
            for d in range(4):
                e("v_cvt_pk_bf16_f32 v%d, v%d, v%d" % (50 + d, S + 2 * d, S + 2 * d + 1))
            for d in range(4):
                e("v_lshlrev_b32 v%d, 16, v%d" % (S + 2 * d, 50 + d))
                e("v_and_b32 v%d, 0xffff0000, v%d" % (S + 2 * d + 1, 50 + d))
            if rnd == 0:
                for r in range(8):
                    e("v_mul_f32 v%d, s60, v%d" % (S + r, S + r))
        C = LOG2E
    dump(S, 8, 1)
    e("s_mov_b32 s60, 0x%x" % f32bits(C))
    e("v_max3_f32 v50, v%d, v%d, v%d" % (S, S + 1, S + 2))
    e("v_max3_f32 v51, v%d, v%d, v%d" % (S + 4, S + 5, S + 6))
    e("v_max3_f32 v50, v50, v%d, v%d" % (S + 3, S + 7))
    e("v_max_f32 v50, v50, v51")
    e("v_mov_b32 v51, v50")
    e("v_permlane16_swap_b32 v50, v51")
    e("v_max_f32 v50, v50, v51")
    e("v_mov_b32 v51, v50")
    e("v_permlane32_swap_b32 v50, v51")
    e("v_max_f32 v50, v50, v51")
    if maxfirst:
        note("exchange the row maxima between the waves")
        e("s_mov_b64 exec, 0xff")
        e("ds_write_b32 v38, v50")
        e("s_mov_b64 exec, -1")
        e("s_waitcnt lgkmcnt(0)")
        e("s_barrier")
        e("ds_read_b128 v[52:55], v49")
        e("ds_read_b128 v[56:59], v39")
        e("s_waitcnt lgkmcnt(%d)" % (0 if o["stamps"] else 1))
        e("v_max3_f32 v50, v52, v53, v54")
        e("v_max_f32 v50, v50, v55")
        e("v_mul_f32 v50, s60, v50")
        e("v_bfi_b32 v50, s42, 0, v50")
    else:
        e("v_mul_f32 v50, s60, v50")
    for r in range(8):
        e("v_fma_f32 v%d, v%d, s60, -v50" % (S + r, S + r))
    for r in range(8):
        e("v_exp_f32 v%d, v%d" % (S + r, S + r))
    e("s_mov_b64 exec, s[64:65]")
    for d in range(4):
        e("v_cvt_pk_bf16_f32 v%d, v%d, v%d" % (PLO + d, S + 2 * d, S + 2 * d + 1))
    e("s_not_b64 exec, s[64:65]")
    for d in range(4):
        e("v_cvt_pk_bf16_f32 v%d, v%d, v%d" % (PHI + d, S + 2 * d, S + 2 * d + 1))
    e("s_mov_b64 exec, -1")
    OA = VRAW
    LA = KOP
    e("v_mfma_f32_16x16x32_bf16 %s, %s, %s, 0" % (vr(LA), vr(ONES), vr(PLO)))
    e("v_mfma_f32_16x16x32_bf16 %s, %s, %s, %s" % (vr(LA), vr(ONES), vr(PHI), vr(LA)))
    stamp("smax")
    sprinkle(spr[2])
    if maxfirst:
        e("s_waitcnt lgkmcnt(0)")
        e("v_max3_f32 v56, v56, v57, v58")
        e("v_max_f32 v56, v56, v59")
        e("v_mul_f32 v56, s60, v56")
        e("v_bfi_b32 v56, s42, v32, v56")
        e("s_mov_b64 exec, 0xff")
        e("ds_write_b32 v38, v%d offset:128" % LA)
    else:
        e("s_mov_b64 exec, 0xff")
        e("ds_write2_b32 v38, v50, v%d offset0:0 offset1:1" % LA)
    e("s_mov_b64 exec, -1")
    pace(32)
    if o["vstep"]:
        arrive(27)
        arrive(29)
    arrive(31)
    stamp("varr", 1)
    for ep in range(4):
        e("v_mfma_f32_16x16x32_bf16 %s, %s, %s, 0" % (vr(OA + 4 * ep), vr(VT + 4 * ep), vr(PLO)))
    for ep in range(4):
        e("v_mfma_f32_16x16x32_bf16 %s, %s, %s, %s" % (vr(OA + 4 * ep), vr(VT + 4 * (ep + 4)), vr(PHI), vr(OA + 4 * ep)))
        if ep == 0:
            sprinkle(spr[3])
    for ep in range(4):
        e("ds_write_b128 v36, %s offset:%d" % (vr(OA + 4 * ep), 128 * ep))
    dump(OA, 16, 2)
    e("s_waitcnt lgkmcnt(0)")
    stamp("preB3", 1)
    e("s_barrier")
    stamp("B3", 1)
    R = VT
    if maxfirst:
        for w2 in range(4):
            e("ds_read_b128 %s, v37 offset:%d" % (vr(R + 4 * w2), 4224 * w2))
        e("ds_read_b128 %s, v39 offset:128" % vr(R + 16))
        sprinkle(spr[4])
        e("s_waitcnt lgkmcnt(1)" if not o["stamps"] else "s_waitcnt lgkmcnt(0)")
        sum4(R)
        e("s_waitcnt lgkmcnt(0)")
        e("v_pk_add_f32 %s, %s, %s" % (vr(R + 16, 2), vr(R + 16, 2), vr(R + 18, 2)))
        e("v_add_f32 v57, v%d, v%d" % (R + 16, R + 17))
    else:
        e("ds_read_b128 %s, v39" % vr(R + 16))
        e("ds_read_b128 %s, v39 offset:16" % vr(R + 20))
        for w2 in range(4):
            e("ds_read_b128 %s, v37 offset:%d" % (vr(R + 4 * w2), 4224 * w2))
        sprinkle(spr[4])
        e("s_waitcnt lgkmcnt(4)" if not o["stamps"] else "s_waitcnt lgkmcnt(0)")
        e("v_max3_f32 v56, v%d, v%d, v%d" % (R + 16, R + 18, R + 20))
        e("v_max_f32 v56, v56, v%d" % (R + 22))
        e("v_bfi_b32 v56, s42, 0, v56")
        for w2 in range(4):
            e("v_sub_f32 v%d, v%d, v56" % (52 + w2, R + 16 + 2 * w2))
        for w2 in range(4):
            e("v_exp_f32 v%d, v%d" % (52 + w2, 52 + w2))
        e("v_or_b32 v56, s41, v56")
        e("v_mul_f32 v57, v52, v%d" % (R + 17))
        for w2 in range(1, 4):
            e("v_fmac_f32 v57, v%d, v%d" % (52 + w2, R + 17 + 2 * w2))
        e("s_waitcnt lgkmcnt(0)")
        for r in range(4):
            e("v_mul_f32 v%d, v52, v%d" % (R + r, R + r))
        for w2 in range(1, 4):
            for r in range(4):
                e("v_fmac_f32 v%d, v%d, v%d" % (R + r, 52 + w2, R + 4 * w2 + r))
    e("v_bfi_b32 v57, s42, v32, v57")
    pack4(R)
    handoff_stores(["buffer_store_dwordx2 %s, v40, s[36:39], s51 offen" % vr(R, 2),
                    "s_mov_b32 exec_lo, 1", "s_mov_b32 exec_hi, 1",
                    "buffer_store_dwordx2 v[56:57], v41, s[36:39], s52 offen"])
    e("s_mov_b64 exec, -1")
    stamp("E2pub")
    sprinkle(spr[5])

    G2R = KOP
    OA_, OB_, M0 = G2R, G2R + 4, G2R + 8

    def gather2():
        p.vm("buffer_load_dwordx4 %s, v43, s[36:39], s54 offen sc1" % vr(M0))
        p.vm("buffer_load_dwordx4 %s, v42, s[36:39], s53 offen sc1" % vr(OA_))
        return p.vm("buffer_load_dwordx4 %s, v42, s[36:39], s66 offen sc1" % vr(OB_))

    pace(32 + o["G2"])
    g2 = gather2()
    stamp("g2iss")
    pace(len(seq) + o["B2"])
    p.wait_vm(g2)
    e("L_chk2:")
    stamp("g2arr")
    for r in range(4):
        e("v_xor_b32 v%d, s41, v%d" % (M0 + r, M0 + r))
    e("v_max_f32 v50, v%d, v%d" % (M0, M0 + 2))
    e("v_max3_u32 v53, v%d, v%d, v%d" % (OA_, OA_ + 1, OA_ + 2))
    e("v_max3_u32 v53, v53, v%d, v%d" % (OA_ + 3, OB_))
    e("v_max_f32_dpp v50, v50, v50 row_ror:4 row_mask:0xf bank_mask:0xf")
    e("v_max3_u32 v53, v53, v%d, v%d" % (OB_ + 1, OB_ + 2))
    e("v_max_u32 v53, v53, v%d" % (OB_ + 3))
    e("v_max_f32_dpp v50, v50, v50 row_ror:8 row_mask:0xf bank_mask:0xf")
    e("v_or3_b32 v52, v%d, v%d, v%d" % (M0, M0 + 1, M0 + 2))
    e("v_mov_b32 v51, v50")
    e("v_or_b32 v52, v52, v%d" % (M0 + 3))
    e("v_and_b32 v52, s42, v52")
    e("v_permlane16_swap_b32 v50, v51")
    e("v_max_f32 v50, v50, v51")
    e("v_mov_b32 v51, v50")
    e("v_cmp_eq_u32 vcc, -1, v53")
    e("v_cmp_ne_u32 s[10:11], 0, v52")
    e("v_permlane32_swap_b32 v50, v51")
    e("v_max_f32 v50, v50, v51")
    A8 = G2R + 12
    e("v_sub_f32 v52, v%d, v50" % M0)
    e("v_sub_f32 v53, v%d, v50" % (M0 + 2))
    e("v_exp_f32 v52, v52")
    e("v_exp_f32 v53, v53")
    e("s_or_b64 vcc, vcc, s[10:11]")
    e("s_cbranch_vccz L_ok2")
    retry_code("L_retry2", "L_chk2", gather2)
    e("L_ok2:")
    e("v_cvt_pk_bf16_f32 v54, v52, v53")
    for i in range(4):
        e("v_perm_b32 v%d, v%d, v%d, s62" % (A8 + 2 * i, OB_ + i, OA_ + i))
        e("v_perm_b32 v%d, v%d, v%d, s63" % (A8 + 2 * i + 1, OB_ + i, OA_ + i))
    e("v_lshlrev_b32 v52, 16, v54")
    e("v_and_b32 v53, 0xffff0000, v54")
    e("v_mul_f32 v51, v52, v%d" % (M0 + 1))
    e("v_fmac_f32 v51, v53, v%d" % (M0 + 3))
    for i in range(8):
        e("v_dot2_f32_bf16 v%d, v%d, v54, 0" % (A8 + i, A8 + i))
    e("v_add_f32_dpp v51, v51, v51 row_ror:4 row_mask:0xf bank_mask:0xf")
    for b in (0, 4):
        e("v_permlane32_swap_b32 v%d, v%d" % (A8 + b, A8 + b + 2))
        e("v_permlane32_swap_b32 v%d, v%d" % (A8 + b + 1, A8 + b + 3))
    e("v_add_f32_dpp v51, v51, v51 row_ror:8 row_mask:0xf bank_mask:0xf")
    for b in (0, 4):
        e("v_add_f32 v%d, v%d, v%d" % (A8 + b, A8 + b, A8 + b + 2))
        e("v_add_f32 v%d, v%d, v%d" % (A8 + b + 1, A8 + b + 1, A8 + b + 3))
    e("v_mov_b32 v50, v51")
    e("v_permlane16_swap_b32 v%d, v%d" % (A8, A8 + 1))
    e("v_permlane16_swap_b32 v%d, v%d" % (A8 + 4, A8 + 5))
    e("v_permlane16_swap_b32 v50, v51")
    e("v_add_f32 v%d, v%d, v%d" % (A8, A8, A8 + 1))
    e("v_add_f32 v%d, v%d, v%d" % (A8 + 4, A8 + 4, A8 + 5))
    e("v_add_f32 v51, v50, v51")
    e("v_add_f32_dpp v%d, v%d, v%d row_ror:4 row_mask:0xf bank_mask:0xf" % (A8, A8, A8))
    e("v_mov_b32 v50, v51")
    e("v_add_f32_dpp v%d, v%d, v%d row_ror:4 row_mask:0xf bank_mask:0xf" % (A8 + 4, A8 + 4, A8 + 4))
    e("v_add_f32_dpp v%d, v%d, v%d row_ror:8 row_mask:0xf bank_mask:0xf" % (A8, A8, A8))
    e("v_permlane32_swap_b32 v50, v51")
    e("v_add_f32 v51, v50, v51")
    e("v_add_f32_dpp v%d, v%d, v%d row_ror:8 row_mask:0xf bank_mask:0xf" % (A8 + 4, A8 + 4, A8 + 4))
    e("v_rcp_f32 v51, v51")
    X = (4, 5)
    e("v_mul_f32 v%d, v%d, v51" % (A8, A8))
    e("v_mul_f32 v%d, v%d, v51" % (A8 + 4, A8 + 4))
    e("v_cvt_pk_bf16_f32 v%d, v%d, v%d" % (X[0], A8, A8))
    e("v_cvt_pk_bf16_f32 v%d, v%d, v%d" % (X[1], A8 + 4, A8 + 4))
    dump(X[0], 1, 3)
    dump(X[1], 1, 4)
    stamp("ordy")
    OUT0, OUT1 = G1R, G1R + 4
    A4 = 56
    if hyb:
        e("s_mov_b32 exec_lo, 0x00080008\ns_mov_b32 exec_hi, 0x00080008")
        e("ds_write_b16 v23, v%d" % X[0])
        e("ds_write_b16 v23, v%d offset:32" % X[1])
        e("s_mov_b64 exec, -1")
        issue(16)
        build_a(AB[0], X[0], 0)
        for t in range(6):
            for c2, acc in ((0, OUT0), (1, OUT1)):
                arrive(32 + 2 * t + c2)
                e("v_mfma_f32_16x16x32_bf16 %s, %s, %s, %s" % (
                    vr(acc), vr(AB[t & 1]), vr(DATA + 8 * t + 4 * c2), "0" if t == 0 else vr(acc)))
                if c2 == 0 and t < 5:
                    build_a(AB[(t + 1) & 1], X[(t + 1) & 1], (t + 1) >> 1)
        for r in range(4):
            e("v_mov_b32 v%d, 0" % (R + r))
        e("s_mov_b32 exec_hi, 0")
        e("ds_write_b128 v44, %s" % vr(OUT0))
        e("ds_write_b128 v44, %s offset:512" % vr(OUT1))
        e("s_mov_b64 exec, -1")
        e("s_waitcnt lgkmcnt(0)")
        stamp("preB4", 1)
        e("s_barrier")
        stamp("B4", 1)
        XD = QOP + 8
        AU = KOP
        e("ds_read_b64 %s, v22" % vr(XD, 2))
        e("s_mov_b32 exec_lo, 0x00ff00ff\ns_mov_b32 exec_hi, 0")
        for w2 in range(4):
            e("ds_read_b128 %s, v61 offset:%d" % (vr(R + 4 * w2), 1024 * w2))
        e("s_mov_b64 exec, -1")
        e("s_waitcnt lgkmcnt(%d)" % (0 if o["stamps"] else 4))
        for u in range(4):
            for d in range(4):
                e("v_perm_b32 v%d, v%d, v%d, v%d" % (AU + 4 * u + d, XD + (u >> 1), XD + (u >> 1), SEL[2 * d + (u & 1)]))
        e("s_mov_b32 exec_lo, 0x00ff00ff\ns_mov_b32 exec_hi, 0")
        e("s_waitcnt lgkmcnt(0)")
        sum4(R)
        e("s_mov_b64 exec, -1")
        for u in range(4):
            arrive(44 + u)
            e("v_mfma_f32_16x16x32_bf16 %s, %s, %s, %s" % (vr(R), vr(AU + 4 * u), vr(DATA + 48 + 4 * u), vr(R)))
        stamp("opdone")
        for r in range(4):
            e("v_permlane32_swap_b32 v%d, v%d" % (R + r, R + 4 + r))
        for r in range(4):
            e("v_add_f32_dpp v%d, v%d, v%d row_ror:8 row_mask:0xf bank_mask:0xf" % (R + r, R + 4 + r, R + r))
        tag4(R)
        e("s_mov_b32 exec_lo, 0x00ff00ff\ns_mov_b32 exec_hi, 0")
        p.vm("buffer_store_dwordx4 %s, v25, s[36:39], s55 offen sc1" % vr(R))
    else:
        issue(16)
        build_a(AB[0], X[0], 0)
        for t in range(8):
            for c2, acc in ((0, OUT0), (1, OUT1)):
                if t == 7 and c2 == 1:
                    e("s_mov_b32 exec_hi, 0")
                    e("ds_write_b128 v44, %s" % vr(OUT0))
                    e("s_mov_b64 exec, -1")
                arrive(32 + 2 * t + c2)
                e("v_mfma_f32_16x16x32_bf16 %s, %s, %s, %s" % (
                    vr(acc), vr(AB[t & 1]), vr(DATA + 8 * t + 4 * c2), "0" if t == 0 else vr(acc)))
                if c2 == 0 and t < 7:
                    build_a(AB[(t + 1) & 1], X[(t + 1) & 1], (t + 1) >> 1)
        stamp("opdone")
        e("s_mov_b32 exec_hi, 0")
        e("ds_write_b128 v44, %s offset:512" % vr(OUT1))
        e("s_mov_b64 exec, 0xffff")
        e("s_waitcnt lgkmcnt(0)")
        stamp("preB4", 1)
        e("s_barrier")
        stamp("B4", 1)
        if o["swap3"]:
            e("s_cmp_eq_u32 s40, 0\ns_cbranch_scc1 L_cons")
            e("s_cmp_lg_u32 s40, 1\ns_cbranch_scc1 L_pub3")
            e("s_mov_b32 exec_lo, -1\ns_sub_u32 s55, s55, 256\nv_subrev_u32 v61, 256, v61\nL_pub3:")
        for w2 in range(4):
            e("ds_read_b128 %s, v61 offset:%d" % (vr(R + 4 * w2), 1024 * w2))
        e("s_waitcnt lgkmcnt(0)")
        sum4(R)
        tag4(R)
        p.vm("buffer_store_dwordx4 %s, v%d, s[36:39], s55 offen sc1" % (vr(R), 49 if o["inbox"] else 26))
    e("s_mov_b64 exec, -1")
    stamp("E3pub")
    def final_reduce():
        QR = VRAW
        e("L_retry3:")
        p.vm("buffer_load_dwordx4 %s, v48, s[36:39], s56 offen sc1" % vr(QR))
        e("s_waitcnt vmcnt(0)")
        for r in range(4):
            e("v_xor_b32 v%d, s41, v%d" % (A4 + r, QR + r))
        ortree(range(A4, A4 + 4), 52)
        e("s_cbranch_vccz L_got3")
        e("s_mov_b64 exec, vcc")
        e("s_sub_u32 s59, s59, 1")
        e("s_cbranch_scc0 L_retry3")
        e("s_branch L_end")
        e("L_got3:")
        e("s_mov_b64 exec, -1")
        stamp("got3", 1)
        e("v_permlane32_swap_b32 v%d, v%d" % (A4, A4 + 2))
        e("v_permlane32_swap_b32 v%d, v%d" % (A4 + 1, A4 + 3))
        e("v_add_f32 v%d, v%d, v%d" % (A4, A4, A4 + 2))
        e("v_add_f32 v%d, v%d, v%d" % (A4 + 1, A4 + 1, A4 + 3))
        e("v_permlane16_swap_b32 v%d, v%d" % (A4, A4 + 1))
        e("v_add_f32 v%d, v%d, v%d" % (A4, A4, A4 + 1))
        for k in (2, 4, 8):
            e("v_add_f32_dpp v%d, v%d, v%d row_ror:%d row_mask:0xf bank_mask:0xf" % (A4, A4, A4, k))
        e("v_cvt_pk_bf16_f32 v%d, v%d, v%d" % (A4, A4, A4))
        e("s_mov_b32 exec_lo, 0x00030003\ns_mov_b32 exec_hi, 0x00030003")
        p.vm("buffer_store_short v%d, v46, s[32:35], s57 offen" % A4)
        e("s_and_b32 s60, s2, 0xfb")
        e("s_cbranch_scc1 L_hfin" if o["hcons"] else "s_cbranch_scc1 L_fin")
        e("s_mov_b64 exec, 1")
        e("v_mov_b32 v50, s43")
        e("v_mov_b32 v51, 0")
        p.vm("buffer_store_dword v50, v51, s[36:39], s7 offen sc1")

    if o["hcons"]:
        note("the last wave leaves a completion hint for the group's helpers")
        e("""
        s_cmp_lg_u32 s40, %d
        s_cbranch_scc1 L_fin
        s_lshl_b32 s60, s3, 7
        s_add_u32 s60, s60, %d
        s_lshl2_add_u32 s61, s4, s60
        v_mov_b32 v50, s43
        v_mov_b32 v51, 0
        s_mov_b64 exec, 1
        buffer_store_dword v50, v51, s[36:39], s61 offen
        """ % (o["flw"], FL))
    else:
        if o["swap3"]:
            e("s_branch L_fin\nL_cons:\ns_mov_b64 exec, -1")
        else:
            e("s_cmp_lg_u32 s40, 0")
            e("s_cbranch_scc1 L_fin")
        if o["lflag"]:
            note("""leave a completion hint; with one L2 for the group wait for the group's hints, so that the slots of
            producers that are still running are not polled across dies (the hints only time the gather)""")
            e("""
            s_lshl_b32 s60, s3, 7
            s_add_u32 s60, s60, %d
            s_lshl2_add_u32 s61, s4, s60
            v_mov_b32 v50, s43
            v_mov_b32 v51, 0
            s_mov_b64 exec, 1
            %s
            buffer_store_dword v50, v51, s[36:39], s61 offen
            s_mov_b64 exec, -1
            v_and_b32 v53, 31, v1
            v_lshlrev_b32 v53, 2, v53
            s_cmp_lg_u32 s69, 0
            s_cbranch_scc1 L_nofl
            L_flp:
            s_sub_u32 s59, s59, 1
            s_cbranch_scc1 L_end
            buffer_load_dword v52, v53, s[36:39], s60 offen sc1
            s_waitcnt vmcnt(0)
            v_cmp_ne_u32 vcc, s43, v52
            s_cbranch_vccnz L_flp
            L_nofl:
            """ % (FL, "s_waitcnt vmcnt(0)" if o["flate"] else ""))
        e("s_waitcnt vmcnt(0)")
        stamp("ack3", 1)
        final_reduce()
    e("L_fin:")
    if o["probe"]:
        a, b, k, wg = o["probe"]
        stamp("fin")
        e("s_cmp_lg_u32 s2, %d\ns_cbranch_scc1 L_end\ns_cmp_lg_u32 s40, 0\ns_cbranch_scc1 L_end" % wg)
        e("s_waitcnt lgkmcnt(0)")
        e("s_sub_u32 s60, s%d, s%d" % (70 + 2 * names.index(b), 70 + 2 * names.index(a)))
        e("s_mul_i32 s60, s60, %d" % k)
        e("L_probe:")
        e("s_memrealtime s[62:63]\ns_waitcnt lgkmcnt(0)")
        e("s_sub_u32 s61, s62, s%d" % (70 + 2 * (stamp_n[0] - 1)))
        e("s_cmp_lt_u32 s61, s60\ns_cbranch_scc1 L_probe")
        e("s_branch L_end")
    elif o["stamps"]:
        stamp("fin")
        e("s_mov_b64 exec, 1")
        e("s_getreg_b32 s68, hwreg(HW_REG_XCC_ID)")
        e("s_mov_b32 s69, s59")
        e("s_waitcnt lgkmcnt(0)")
        for i in range(32):
            e("v_mov_b32 v%d, s%d" % (64 + i, 68 + i))
        e("s_lshl_b32 s60, s2, 2\ns_add_u32 s60, s60, s40\ns_lshl_b32 s60, s60, 7\ns_add_u32 s60, s60, %d" % TS_OFF)
        e("v_mov_b32 v51, 0")
        for i in range(8):
            p.vm("buffer_store_dwordx4 %s, v51, s[36:39], s60 offen offset:%d" % (vr(64 + 4 * i), 16 * i))
    e("L_end:")
    e("s_endpgm")

    note("""helper wave: clears the slots that carry bare bf16 data to the sentinel 0xffffffff, exchanges die ids
    with the group (word = epoch + 1 with the die id in bits 13:10) and leaves the store mode
    (0 = one L2 for the whole group) in LDS before it ends""")
    clears = ["buffer_store_dwordx4 v[52:55], v40, s[36:39], s51 offen",
              "buffer_store_dwordx4 v[52:55], v40, s[36:39], s52 offen"]
    e("""
    L_helper:
    v_and_b32 v1, 63, v0
    s_and_b32 s3, s2, 7
    s_lshr_b32 s4, s2, 3
    s_and_b32 s6, s2, 3
    s_mov_b32 s38, %d
    s_mov_b32 s39, 0x20000
    s_lshl_b32 s7, s5, 8
    v_lshlrev_b32 v40, 4, v3
    v_lshl_add_u32 v40, v2, 13, v40
    s_lshl_b32 s51, s3, 16
    s_lshl_b32 s61, s4, 8
    s_add_u32 s51, s51, s61
    s_add_u32 s51, s51, %d
    s_add_u32 s52, s51, 32768
    v_mov_b32 v52, -1
    v_mov_b32 v53, -1
    v_mov_b32 v54, -1
    v_mov_b32 v55, -1
    v_lshlrev_b32 v26, 4, v1
    s_waitcnt lgkmcnt(0)
    s_load_dword s43, s[36:37], s7
    """ % (WS_BYTES, E2O))
    for t in clears:
        e(t)
    extra = []
    if o["prew1"] or o["prewml"]:
        e("v_mov_b32 v64, 0\nv_mov_b32 v65, 1\nv_mov_b32 v66, 2\nv_mov_b32 v67, 3")
    if o["prew1"]:
        assert not e1bf
        e("""
        s_and_b32 s60, s4, 7
        s_lshl3_add_u32 s60, s3, s60
        s_lshr_b32 s61, s4, 3
        s_lshl2_add_u32 s49, s60, s61
        s_lshl_b32 s49, s49, 9
        s_add_u32 s49, s49, %d
        """ % E1)
        extra += ["s_mov_b32 exec_hi, 0", "buffer_store_dwordx4 v[64:67], v26, s[36:39], s49 offen"]
    if o["prewml"]:
        e("""
        s_lshl_b32 s53, s3, 11
        s_and_b32 s60, s4, 15
        s_lshl4_add_u32 s53, s60, s53
        s_lshr_b32 s60, s4, 4
        s_lshl3_add_u32 s53, s60, s53
        s_add_u32 s53, s53, %d
        v_lshlrev_b32 v41, 8, v1
        """ % ML)
        extra += ["s_mov_b64 exec, 0xff", "buffer_store_dwordx2 v[64:65], v41, s[36:39], s53 offen"]
    if extra:
        extra.append("s_mov_b64 exec, -1")
        for t in extra:
            e(t)
    if e1bf:
        e("""
        s_and_b32 s60, s4, 7
        s_lshl3_add_u32 s60, s3, s60
        s_lshr_b32 s61, s4, 3
        s_lshl2_add_u32 s49, s60, s61
        s_lshl_b32 s49, s49, 8
        s_add_u32 s49, s49, %d
        s_mov_b64 exec, 0xffff
        buffer_store_dwordx4 v[52:55], v26, s[36:39], s49 offen
        s_mov_b64 exec, -1
        """ % E1)
    e("""
    s_movk_i32 s42, %d
    s_mov_b32 s59, %d
    s_getreg_b32 s60, hwreg(HW_REG_XCC_ID, 0, 4)
    s_lshl_b32 s69, s60, 10
    s_lshl_b32 s68, s3, 7
    s_add_u32 s68, s68, %d
    s_lshl2_add_u32 s67, s4, s68
    v_mov_b32 v57, 0
    v_and_b32 v47, 31, v1
    v_lshlrev_b32 v47, 2, v47
    """ % (TAGMASK, o["retry"], E0))
    if o["prew3"] and o["inbox"]:
        e("""
        s_and_b32 s60, s4, 3
        s_lshl2_add_u32 s55, s5, s60
        s_lshl_b32 s55, s55, 15
        s_lshr_b32 s60, s4, 2
        s_lshl3_add_u32 s60, s6, s60
        s_lshl_b32 s60, s60, 5
        s_add_u32 s55, s55, s60
        s_add_u32 s55, s55, %d
        v_lshrrev_b32 v26, 1, v1
        v_lshlrev_b32 v26, 10, v26
        v_and_b32 v60, 1, v1
        v_lshl_add_u32 v26, v60, 4, v26
        """ % E3)
    elif o["prew3"]:
        e("""
        s_and_b32 s60, s4, 3
        s_lshl2_add_u32 s55, s5, s60
        s_lshl_b32 s55, s55, 5
        s_lshl3_add_u32 s55, s6, s55
        s_lshr_b32 s60, s4, 2
        s_add_u32 s55, s55, s60
        s_lshl_b32 s55, s55, 10
        s_add_u32 s55, s55, %d
        """ % E3)
    if o["prew3"]:
        e("""
        v_mov_b32 v60, 0
        v_mov_b32 v61, 1
        v_mov_b32 v62, 2
        v_mov_b32 v63, 3
        """)
    e("s_waitcnt vmcnt(0) lgkmcnt(0)" if e1bf else "s_waitcnt lgkmcnt(0)")
    e("""
    s_add_u32 s43, s43, 1
    s_and_b32 s41, s43, s42
    s_mov_b32 s42, 0xffffc3ff
    s_and_b32 s46, s43, s42
    s_or_b32 s69, s69, s46
    s_mov_b32 s46, s69
    v_mov_b32 v56, s69
    s_mov_b64 exec, 1
    buffer_store_dword v56, v57, s[36:39], s67 offen sc1
    """)
    if o["lflag"] & 2:
        e("s_add_u32 s60, s67, %d" % (FL - E0))
        e("buffer_store_dword v57, v57, s[36:39], s60 offen")
    e("s_mov_b64 exec, -1")
    if o["prew3"]:
        note("an invalid granule written ahead makes the later write-through of the output partials faster")
        e("buffer_store_dwordx4 v[60:63], v26, s[36:39], s55 offen sc1")
    if o["e0ack"]:
        e("s_waitcnt vmcnt(0)")
    if o["e0s"]:
        e("""
        s_add_u32 s10, s36, s68
        s_addc_u32 s11, s37, 0
        L_hpoll:
        s_sub_u32 s59, s59, 1
        s_cbranch_scc1 L_end
        s_load_dwordx16 s[68:83], s[10:11], 0 glc
        s_load_dwordx16 s[84:99], s[10:11], 64 glc
        s_waitcnt lgkmcnt(0)
        """.replace("s[68:83]", "s[64:79]").replace("s[84:99]", "s[80:95]"))
        e("s_xor_b32 s60, s64, s46")
        for i in range(1, 32):
            e("s_xor_b32 s61, s%d, s46" % (64 + i))
            e("s_or_b32 s60, s60, s61")
        e("""
        s_and_b32 s61, s60, s42
        s_cbranch_scc1 L_hpoll
        s_mov_b32 s69, s60
        s_waitcnt vmcnt(0)
        """)
    else:
        e("""
        L_hpoll:
        s_sub_u32 s59, s59, 1
        s_cbranch_scc1 L_end
        buffer_load_dword v58, v47, s[36:39], s68 offen sc1
        s_waitcnt vmcnt(0)
        v_xor_b32 v58, s69, v58
        v_and_b32 v59, s42, v58
        v_cmp_ne_u32 vcc, 0, v59
        s_cbranch_vccnz L_hpoll
        v_cmp_ne_u32 vcc, 0, v58
        s_or_b32 s69, vcc_lo, vcc_hi
        """)
    if o["force_global"]:
        e("s_mov_b32 s69, 1")
    e("""
    s_cmp_lg_u32 s69, 0
    s_cbranch_scc1 L_hglob
    L_hdone:
    v_mov_b32 v56, s69
    v_mov_b32 v57, %d
    ds_write_b32 v57, v56
    s_waitcnt lgkmcnt(0)
    """ % MODE)
    if o["hcons"]:
        e("""
        s_barrier
        s_load_dwordx2 s[32:33], s[0:1], 80
        s_movk_i32 s34, 4096
        s_mov_b32 s35, 0x20000
        s_movk_i32 s42, %d
        v_and_b32 v58, 1, v1
        v_lshrrev_b32 v48, 1, v1
        v_lshlrev_b32 v48, 10, v48
        v_lshl_add_u32 v48, v58, 4, v48
        v_lshl_add_u32 v46, v3, 2, v2
        v_lshlrev_b32 v46, 1, v46
        s_lshl_b32 s56, s3, 15
        s_lshl_b32 s60, s4, 5
        s_add_u32 s56, s56, s60
        s_add_u32 s56, s56, %d
        s_lshl_b32 s57, s3, 9
        s_lshl4_add_u32 s57, s4, s57
        s_lshl_b32 s60, s3, 7
        s_add_u32 s60, s60, %d
        s_waitcnt lgkmcnt(0)
        s_barrier
        s_barrier
        s_barrier
        s_cmp_lg_u32 s69, 0
        s_cbranch_scc1 L_nofl
        L_flp:
        s_sub_u32 s59, s59, 1
        s_cbranch_scc1 L_end
        buffer_load_dword v52, v47, s[36:39], s60 offen sc1
        s_waitcnt vmcnt(0)
        v_cmp_ne_u32 vcc, s43, v52
        s_cbranch_vccnz L_flp
        L_nofl:
        """ % (TAGMASK, E3, FL))
        if o["hdelay"]:
            for _ in range(o["hdelay"]):
                e("buffer_load_dword v52, v47, s[36:39], s60 offen sc1\ns_waitcnt vmcnt(0)")
        final_reduce()
        e("L_hfin:")
    e("s_endpgm")
    note("group spread over several dies: repeat the clears write-through" +
         (", then wait until the whole group has done so" if e1bf else ""))
    e("L_hglob:")
    for t in clears + extra:
        e(t + (" sc1" if t.startswith("buffer") else ""))
    if e1bf:
        e("""
        s_mov_b64 exec, 0xffff
        buffer_store_dwordx4 v[52:55], v26, s[36:39], s49 offen sc1
        s_mov_b64 exec, 1
        s_waitcnt vmcnt(0)
        buffer_store_dword v56, v57, s[36:39], s67 offen offset:1024 sc1
        s_mov_b64 exec, -1
        L_hpoll2:
        s_sub_u32 s59, s59, 1
        s_cbranch_scc1 L_end
        buffer_load_dword v58, v47, s[36:39], s68 offen offset:1024 sc1
        s_waitcnt vmcnt(0)
        v_xor_b32 v58, s46, v58
        v_and_b32 v58, s42, v58
        v_cmp_ne_u32 vcc, 0, v58
        s_cbranch_vccnz L_hpoll2
        """)
    else:
        e("s_waitcnt vmcnt(0)")
    e("s_branch L_hdone")
    for k, texts in cold:
        e("L_glob%d:" % k)
        for t in texts:
            e(t + (" sc1" if t.startswith("buffer") else ""))
        e("s_branch L_st%d" % k)

    ref = open("cdna_kernels/%s.s.ref" % KN).read()
    layout = "".join(l + "\n" for l in ref.split("\n") if l.startswith(";   offset") or l.startswith("; Kernarg"))
    head = layout + """; Fused decode attention for both branches: q = x Wq, GQA attention over the last 4096 keys, out = o Wo.
; One launch of 256 workgroups, 32 per (branch, kv head); all of them are resident at once.
; Every byte of Wq, K, V and Wo is loaded exactly once, as one paced stream per wave.  Three hand-offs go
; through d_ws: q partials and o partials inside a group, output partials across the four groups of a branch.
; A handed-off word is valid when it carries this launch's tag (f32 data, tag in the low 10 mantissa bits)
; or differs from the sentinel its slot was cleared to earlier in this launch (packed bf16 data).
; @launch grid=(256,1,1) block=(320,1,1) lds=%d
.amdgcn_target "amdgcn-amd-amdhsa--gfx950"
.text
%s.globl %s_kernel
.p2align 8
.type %s_kernel,@function
""" % (LDS_BYTES, "" if o["pageoff"] is None else ".p2align 12\n.fill %d, 4, 0xbf810000\n" % (((o["pageoff"] - 0x300) % 4096) // 4), KN, KN)
    tail = """.section .rodata,"a"
.p2align 6
.amdhsa_kernel %s_kernel
  .amdhsa_next_free_vgpr 256
  .amdhsa_next_free_sgpr 102
  .amdhsa_accum_offset 256
  .amdhsa_group_segment_fixed_size 0
  .amdhsa_kernarg_size 104
  .amdhsa_user_sgpr_count 2
  .amdhsa_user_sgpr_kernarg_segment_ptr 1
  .amdhsa_system_sgpr_workgroup_id_x 1
  .amdhsa_float_denorm_mode_32 3
.end_amdhsa_kernel
""" % KN
    gen.names = names
    return head + p.text() + tail


if __name__ == "__main__":
    kw = eval("dict(%s)" % (sys.argv[2] if len(sys.argv) > 2 else ""))
    open(sys.argv[1], "w").write(gen(**kw))
```

```python
import struct
import sys
from asmlib import Prog

KN = "concat_heads__sliding_block_cached__sliding_block_cached__decode"
WS_BYTES = 301993984
TS_OFF = 200 << 20

EPOCH = 0x0
E0 = 0x1000
FL = 0x2000
E1 = 0x8000
ML = 0x30000
E3 = 0x40000
E2O = 0x80000
QRED = 32768
QB = 34816
ORED = 37120
MLR = 54016
OUTRED = 54272
MODE = 58368
OB = 58384
LDS_BYTES = 58464
TAGMASK = 0x3FF

DEFAULTS = dict(Wq=6, Wk=6, Wv=6, W=5, G1=4, B1=4, G2=12, B2=4, spr=(1, 1, 1, 1, 1, 1), early_chunks=3,
                e1bf=False, prew3=False, mimic=False, stamps=False, dump=False, probe=None, retry=1 << 20,
                force_global=False, e0s=False, e0ack=True, inbox=False, maxfirst=False, hyb=False, vstep=True, thr=0, thrspr=False, lflag=1, hcons=False, flw=3, hdelay=0, prew1=False, prewml=False, flate=False, swap3=False, xpos=0, x16=False, ct0=0, issfirst=False, ntq="nt", ntk="nt", ntv="nt", nto="nt", qmap=None, kvmap=None, pageoff=2048, hoist=True)


def f32bits(x):
    return struct.unpack("<I", struct.pack("<f", x))[0]


def vr(a, n=4):
    return "v[%d:%d]" % (a, a + n - 1)


def gen(**kw):
    o = dict(DEFAULTS)
    for k in kw:
        assert k in o, k
    o.update(kw)
    p = Prog()
    e = p.e
    e1bf = o["e1bf"]
    maxfirst, hyb = o["maxfirst"], o["hyb"]
    stamp_n = [0]
    names = []
    cold = []

    def note(text):
        for line in text.strip().split("\n"):
            e("; " + line.strip())

    def stamp(name, level=0):
        want = o["stamps"]
        if want and (name in want if isinstance(want, (list, tuple)) else level == 0):
            k = 70 + 2 * stamp_n[0]
            assert k <= 98
            e("s_memrealtime s[%d:%d]" % (k, k + 1))
            stamp_n[0] += 1
            names.append(name)

    def dump(reg, n, slot):
        if o["dump"]:
            e("s_mov_b32 s61, %d" % (TS_OFF + (1 << 20) + slot * (4 << 20)))
            for i in range(n):
                p.vm("buffer_store_dword v%d, v60, s[36:39], s61 offen offset:%d" % (reg + i, 4 * i))
            e("s_waitcnt vmcnt(0)")

    def handoff_stores(texts):
        k = len(cold) + 1
        e("s_cmp_eq_u32 s69, 0")
        e("s_cbranch_scc0 L_glob%d" % k)
        for t in texts:
            e(t)
        e("L_st%d:" % k)
        cold.append((k, texts))

    def retry_code(lb, chk, g):
        n0 = p.nvm
        e("%s:" % lb)
        if o["thr"] and lb == "L_retry1":
            e("s_mov_b32 s67, 1")
        e("s_sub_u32 s59, s59, 1")
        e("s_cbranch_scc1 L_end")
        g()
        e("s_waitcnt vmcnt(0)")
        e("s_branch %s" % chk)
        p.nvm = n0

    SCALE = 128 ** -0.5
    LOG2E = 1.4426950408889634
    DATA = 64
    KOP = 128
    VRAW = 160
    VT = 192
    G1R = 224
    QOP = 240
    AB = (10, 14)
    QACC = 18
    MASK = 6
    W = o["W"]

    e("%s_kernel:" % KN)
    note("""s2 = 8*j + grp, grp = 4*branch + kvh.  Waves 0-3 stream and compute, wave 4 is the helper.
    q tile: head j&7, rows 64*t + 16*(j>>3) + 4*wave + g (g = lane>>4, t = load index).""")
    e("""
    s_and_b32 s7, s2, 4
    s_mul_i32 s7, s7, 10
    s_add_u32 s8, s0, s7
    s_addc_u32 s9, s1, 0
    s_load_dwordx2 s[24:25], s[8:9], 24
    s_load_dwordx2 s[12:13], s[8:9], 0
    s_load_dwordx2 s[36:37], s[0:1], 96
    v_lshrrev_b32 v50, 6, v0
    v_bfe_u32 v2, v0, 4, 2
    v_readfirstlane_b32 s40, v50
    v_and_b32 v3, 15, v0
    s_cmpk_ge_u32 s2, 256
    s_cbranch_scc1 L_end
    v_lshlrev_b32 v5, 4, v3
    v_lshlrev_b32 v4, 7, v3
    v_lshl_add_u32 v5, v2, 13, v5
    v_lshl_add_u32 v4, v2, 1, v4
    s_bfe_u32 s5, s2, 0x10002
    s_cmp_eq_u32 s40, 4
    s_cbranch_scc1 L_helper
    s_mov_b32 s27, 0x20000
    s_mov_b32 s26, 0x800000
    s_movk_i32 s14, 2048
    s_mov_b32 s15, s27
    s_lshr_b32 s44, s2, 6
    s_lshl2_add_u32 s44, s44, s40
    s_and_b32 s45, s2, 3
    s_lshl4_add_u32 s45, s44, s45
    s_lshl_b32 s45, s45, 6
    s_and_b32 s60, s2, 56
    s_add_u32 s45, s45, s60
    s_lshl_b32 s45, s45, 5
    s_lshl_b32 s44, s44, 3
    s_waitcnt lgkmcnt(0)
    """)
    qsteps = [64 * 8192] * 15
    if o["qmap"]:
        order, cbits, sbits = o["qmap"]
        rb = {nm: i for i, nm in enumerate(order.split())}
        e("s_mov_b32 s44, 0\nv_mov_b32 v4, 0\nv_lshlrev_b32 v5, 4, v3")
        for reg, pre, bits in ((40, "w", (0, 1)), (2, "s", sbits)):
            for i, b in enumerate(bits):
                e("s_bfe_u32 s60, s%d, 0x%x\ns_lshl_b32 s60, s60, %d\ns_add_u32 s44, s44, s60" % (reg, 0x10000 | b, rb["%s%d" % (pre, i)]))
        e("s_lshl_b32 s45, s44, 13\ns_lshl_b32 s44, s44, 1\ns_and_b32 s60, s2, 3\ns_lshl_b32 s60, s60, 11\ns_add_u32 s45, s45, s60")
        for i, b in enumerate(cbits):
            e("s_bfe_u32 s60, s2, 0x%x\ns_lshl_b32 s60, s60, %d\ns_add_u32 s45, s45, s60" % (0x10000 | b, 8 + i))
        for i in range(2):
            e("v_bfe_u32 v51, v2, %d, 1\nv_lshl_add_u32 v5, v51, %d, v5\nv_lshl_add_u32 v4, v51, %d, v4" % (i, 13 + rb["g%d" % i], 1 + rb["g%d" % i]))
        for i in range(4):
            e("v_bfe_u32 v51, v3, %d, 1\nv_lshl_add_u32 v4, v51, %d, v4" % (i, 1 + rb["t%d" % i]))
        off = lambda t: sum(8192 << rb["t%d" % i] for i in range(4) if t >> i & 1)
        qsteps = [off(t + 1) - off(t) for t in range(15)]
    kvsteps = [131072] * 7
    stamp("entry")

    def xload():
        if o["x16"]:
            e("s_mov_b64 exec, 0xffff")
            s = p.vm("buffer_load_dwordx2 v[50:51], v4, s[12:15], s44 offen")
            e("s_mov_b64 exec, -1")
            return s
        return p.vm("buffer_load_ushort v4, v4, s[12:15], s44 offen")

    stream = []
    for t in range(16):
        def f(t=t):
            s = p.vm("buffer_load_dwordx4 %s, v5, s[24:27], s45 offen %s" % (vr(DATA + 4 * t), o["ntq"]))
            if t < 15:
                e("s_add_u32 s45, s45, %d" % qsteps[t] if qsteps[t] >= 0 else "s_sub_u32 s45, s45, %d" % -qsteps[t])
            return s
        stream.append(f)
    for jj in range(8):
        def f(jj=jj):
            e("s_mov_b32 m0, s58")
            if jj < 7:
                e("s_add_u32 s58, s58, 4096")
            s = p.vm("buffer_load_dwordx4 v%d, s[16:19], s46 offen %s lds" % (22 + (jj & 3), o["ntk"]))
            if jj < 7:
                e("s_add_u32 s46, s46, %d" % (kvsteps[jj] & 0xffffffff))
            return s
        stream.append(f)
    for jj in range(8):
        def f(jj=jj):
            s = p.vm("buffer_load_dwordx4 %s, v26, s[20:23], s47 offen %s" % (vr(VRAW + 4 * jj), o["ntv"]))
            if jj < 7:
                e("s_add_u32 s47, s47, %d" % (kvsteps[jj] & 0xffffffff))
            return s
        stream.append(f)
    for t in range(6 if hyb else 8):
        for c2 in range(2):
            def f(t=t, c2=c2):
                s = p.vm("buffer_load_dwordx4 %s, v27, s[28:31], s48 offen offset:%d %s" % (
                    vr(DATA + 8 * t + 4 * c2), 256 * c2, o["nto"]))
                if c2 == 1 and t < 7:
                    e("s_add_u32 s48, s48, %d" % (8192 if t % 2 == 0 else 57344))
                return s
            stream.append(f)
    if hyb:
        for u in range(4):
            def f(u=u):
                s = p.vm("buffer_load_dwordx4 %s, v24, s[28:31], s67 offen nt" % vr(DATA + 48 + 4 * u))
                if u < 3:
                    e("s_add_u32 s67, s67, 16384")
                return s
            stream.append(f)
    seq = []
    done = [0]
    actions = {}

    def issue(k=1):
        for _ in range(k):
            if len(seq) < len(stream):
                seq.append(stream[len(seq)]())

    def arrive(idx):
        if idx < done[0]:
            return
        assert idx < len(seq)
        p.wait_vm(seq[idx])
        while done[0] <= idx:
            a = actions.get(done[0])
            if a:
                a()
            done[0] += 1

    def win(idx):
        return o["Wq"] if idx < 16 else o["Wk"] if idx < 24 else o["Wv"] if idx < 32 else W

    throttle = [False]
    thr_n = [0]

    def extra_wait():
        k = len(seq) - win(len(seq)) + o["thr"]
        if throttle[0] and o["thr"] and done[0] <= k < len(seq):
            thr_n[0] += 1
            e("s_cmp_eq_u32 s67, 0\ns_cbranch_scc1 L_thr%d" % thr_n[0])
            p.wait_vm(seq[k])
            e("L_thr%d:" % thr_n[0])

    def pace(upto):
        upto = min(upto, len(stream))
        while len(seq) < upto:
            if len(seq) - win(len(seq)) >= done[0]:
                arrive(len(seq) - win(len(seq)))
            extra_wait()
            issue(1)

    def sprinkle(k):
        for _ in range(k):
            if o["thrspr"] and len(seq) < len(stream):
                extra_wait()
            issue(1)

    def top_up():
        while len(seq) < len(stream) and len(seq) - win(len(seq)) < done[0]:
            issue(1)

    issue(o["xpos"])
    xop = xload()
    issue(win(0) - o["xpos"])
    e("""
    s_lshl_b32 s7, s5, 8
    s_load_dword s43, s[36:37], s7
    s_load_dwordx2 s[16:17], s[8:9], 8
    s_load_dwordx2 s[20:21], s[8:9], 16
    s_load_dwordx2 s[28:29], s[8:9], 32
    s_load_dwordx2 s[32:33], s[0:1], 80
    """)
    stamp("issued")

    chunks = []
    c = """
    v_and_b32 v50, 1, v3
    v_lshlrev_b32 v50, 4, v50
    v_mov_b32 v51, 0xffff
    v_lshlrev_b32 v50, v50, v51
    v_lshrrev_b32 v51, 1, v3
    """
    for d in range(4):
        c += "v_cmp_eq_u32 s[%d:%d], %d, v51\n" % (50 + 2 * d, 51 + 2 * d, d)
    c += """
    v_and_b32 v1, 63, v0
    s_and_b32 s3, s2, 7
    """
    for d in range(4):
        c += "v_cndmask_b32 v%d, 0, v50, s[%d:%d]\n" % (MASK + d, 50 + 2 * d, 51 + 2 * d)
    c += """
    s_lshr_b32 s4, s2, 3
    s_and_b32 s6, s2, 3
    s_mov_b32 s38, %d
    s_mov_b32 s39, 0x20000
    s_movk_i32 s42, %d
    s_mov_b32 s59, %d
    """ % (WS_BYTES, TAGMASK, o["retry"])
    if o["thr"]:
        assert not hyb
        c += "s_mov_b32 s67, 0\n"
    chunks.append(c)
    chunks.append("""
    ; keys of a wave: 61440 + 512*jj + 128*wave + 4*j + g; K rows go to LDS with their 16-byte chunks xor-swizzled
    s_mov_b32 s18, 0x4000000
    s_mov_b32 s19, 0x20000
    s_mov_b32 s22, 0x4000000
    s_mov_b32 s23, 0x20000
    s_lshl_b32 s46, s6, 24
    s_lshl_b32 s61, s4, 10
    s_add_u32 s46, s46, s61
    s_lshl_b32 s61, s40, 15
    s_add_u32 s46, s46, s61
    s_add_u32 s46, s46, %d
    s_mov_b32 s47, s46
    s_lshl_b32 s58, s40, 10
    v_lshlrev_b32 v26, 4, v1
    v_lshlrev_b32 v50, 2, v2
    v_xor_b32 v50, v50, v3
    v_lshlrev_b32 v50, 4, v50
    v_lshl_add_u32 v22, v2, 8, v50
    v_xor_b32 v23, 16, v22
    v_xor_b32 v24, 32, v22
    v_xor_b32 v25, 48, v22
    v_and_b32 v50, 3, v3
    v_lshlrev_b32 v50, 4, v50
    v_lshrrev_b32 v51, 2, v3
    v_add_u32 v50, v50, v51
    v_lshlrev_b32 v50, 8, v50
    v_add_u32 v50, s58, v50
    v_xor_b32 v51, v2, v3
    v_lshl_add_u32 v28, v51, 4, v50
    v_xor_b32 v29, 64, v28
    v_xor_b32 v30, 0x80, v28
    v_xor_b32 v31, 0xc0, v28
    """ % (61440 * 256))
    if o["kvmap"]:
        kb = {nm: i for i, nm in enumerate(o["kvmap"].split())}
        assert kb["g0"] == 0 and kb["g1"] == 1
        c = "s_lshl_b32 s46, s6, 24\ns_add_u32 s46, s46, %d\n" % (61440 * 256)
        for reg, pre, n in ((40, "w", 2), (4, "j", 5)):
            for i in range(n):
                c += "s_bfe_u32 s61, s%d, 0x%x\ns_lshl_b32 s61, s61, %d\ns_add_u32 s46, s46, s61\n" % (reg, 0x10000 | i, 8 + kb["%s%d" % (pre, i)])
        c += "s_mov_b32 s47, s46\n"
        chunks[1] += c
        offk = lambda t: sum(256 << kb["t%d" % i] for i in range(3) if t >> i & 1)
        kvsteps[:] = [offk(t + 1) - offk(t) for t in range(7)]
    c = """
    ; LDS addresses of the two cross-wave sums, hand-off slots of the q partials
    v_lshl_add_u32 v62, v3, 1, v2
    v_lshlrev_b32 v62, 4, v62
    s_lshl_b32 s60, s40, 10
    s_add_u32 s60, s60, %d
    v_add_u32 v44, s60, v62
    s_lshl_b32 s60, s40, 9
    s_add_u32 s60, s60, %d
    v_add_u32 v62, s60, v62
    s_lshl_b32 s60, s40, 7
    s_add_u32 s60, s60, %d
    v_add_u32 v63, s60, v26
    s_lshl_b32 s60, s40, 8
    s_add_u32 s60, s60, %d
    v_add_u32 v61, s60, v26
    """ % (OUTRED, QRED, QRED, OUTRED)
    sh = 0 if not e1bf else 1
    c += """
    s_lshl_b32 s50, s3, %d
    s_add_u32 s50, s50, %d
    s_and_b32 s60, s4, 7
    s_lshl_b32 s60, s60, %d
    s_add_u32 s49, s50, s60
    s_lshr_b32 s60, s4, 3
    s_lshl2_add_u32 s60, s60, s40
    s_lshl_b32 s60, s60, %d
    s_add_u32 s49, s49, s60
    s_lshl_b32 s60, s40, %d
    s_add_u32 s50, s50, s60
    """ % (14 - sh, E1, 11 - sh, 7 - sh, 12 - sh)
    if e1bf:
        c += "v_lshlrev_b32 v33, 3, v1\n"
    if o["qmap"]:
        order, cbits, sbits = o["qmap"]
        c += "s_lshl_b32 s49, s3, 14\ns_add_u32 s49, s49, %d\ns_lshl_b32 s60, s40, 7\ns_add_u32 s49, s49, s60\n" % E1
        for i, b in enumerate(cbits):
            c += "s_bfe_u32 s60, s2, 0x%x\ns_lshl_b32 s60, s60, %d\ns_add_u32 s49, s49, s60\n" % (0x10000 | b, 11 + i)
        for i, b in enumerate(sbits):
            c += "s_bfe_u32 s60, s2, 0x%x\ns_lshl_b32 s60, s60, %d\ns_add_u32 s49, s49, s60\n" % (0x10000 | b, 9 + i)
    chunks.append(c)
    c = """
    v_lshrrev_b32 v52, 5, v1
    v_and_b32 v53, 31, v1
    v_lshlrev_b32 v54, 4, v53
    s_lshl_b32 s60, s40, 1
    v_add_u32 v55, s60, v52
    v_and_b32 v56, 7, v3
    """
    if e1bf:
        c += """
        v_lshrrev_b32 v57, 4, v53
        v_add_u32 v58, s60, v57
        v_mul_u32_u24 v34, 288, v58
        v_lshl_add_u32 v34, v3, 4, v34
        v_lshl_add_u32 v34, v52, 3, v34
        v_add_u32 v34, %d, v34
        v_lshlrev_b32 v45, 4, v3
        v_lshl_add_u32 v45, v57, 10, v45
        v_lshl_add_u32 v45, v52, 9, v45
        """ % QB
    else:
        c += """
        v_lshl_add_u32 v45, v52, 11, v54
        v_mul_u32_u24 v34, 288, v55
        v_lshl_add_u32 v34, v53, 3, v34
        v_add_u32 v34, %d, v34
        """ % QB
    c += """
    v_mul_u32_u24 v35, 288, v56
    v_lshl_add_u32 v35, v2, 4, v35
    v_add_u32 v35, %d, v35
    v_mul_u32_u24 v37, 528, v55
    v_add_u32 v37, v37, v54
    v_add_u32 v37, %d, v37
    v_lshlrev_b32 v39, %d, v55
    v_add_u32 v39, %d, v39
    v_lshlrev_b32 v40, 3, v53
    v_lshl_add_u32 v40, v52, 13, v40
    v_lshlrev_b32 v41, 8, v52
    """ % (QB, ORED, 4 if maxfirst else 5, MLR)
    chunks.append(c)
    chunks.append("""
    v_mul_u32_u24 v36, 528, v56
    v_lshl_add_u32 v36, v2, 5, v36
    v_lshrrev_b32 v57, 3, v3
    v_lshl_add_u32 v36, v57, 4, v36
    s_mul_i32 s60, s40, 4224
    s_add_u32 s60, s60, %d
    v_add_u32 v36, s60, v36
    s_lshl_b32 s60, s40, %d
    s_add_u32 s60, s60, %d
    v_lshlrev_b32 v38, %d, v56
    v_add_u32 v38, s60, v38
    v_lshrrev_b32 v59, 2, v1
    v_and_b32 v50, 3, v1
    v_lshlrev_b32 v42, 4, v50
    v_lshl_add_u32 v42, v59, 8, v42
    v_lshlrev_b32 v43, 4, v59
    v_and_b32 v58, 1, v1
    v_lshrrev_b32 v48, 1, v1
    v_lshlrev_b32 v48, 10, v48
    v_lshl_add_u32 v48, v58, 4, v48
    v_lshl_add_u32 v46, v3, 2, v2
    v_lshlrev_b32 v46, 1, v46
    """ % (ORED, 2 if maxfirst else 3, MLR, 4 if maxfirst else 5) + ("""
    v_lshlrev_b32 v49, 4, v56
    v_add_u32 v49, %d, v49
    """ % MLR if maxfirst else ""))
    chunks.append("""
    ; wo tile: rows 1024*kvh + 128*(j>>2) + wave + 4*(t&1) + 8*g + 32*(t>>1), columns 256*(j&3) .. +255
    s_mov_b32 s30, 0x800000
    s_mov_b32 s31, 0x20000
    s_movk_i32 s34, 4096
    s_mov_b32 s35, 0x20000
    s_lshl_b32 s48, s6, 21
    s_lshr_b32 s61, s4, 2
    s_lshl_b32 s61, s61, 18
    s_add_u32 s48, s48, s61
    s_and_b32 s61, s4, 3
    s_lshl_b32 s61, s61, 9
    s_add_u32 s48, s48, s61
    s_lshl_b32 s61, s40, 11
    s_add_u32 s48, s48, s61
    v_lshlrev_b32 v27, 4, v3
    v_lshl_add_u32 v27, v2, 14, v27
    """ + ("""
    s_sub_u32 s67, s48, s61
    s_lshl_b32 s61, s40, 7
    s_add_u32 s67, s67, s61
    s_add_u32 s67, s67, %d
    """ % (96 * 2048) if hyb else ""))
    chunks.append("""
    ; hand-off slots of the o partials and of their (max, sum) pairs
    s_lshl_b32 s51, s3, 16
    s_lshl_b32 s60, s40, 14
    s_add_u32 s51, s51, s60
    s_lshl_b32 s60, s4, 8
    s_add_u32 s51, s51, s60
    s_add_u32 s51, s51, %d
    s_lshl_b32 s52, s3, 11
    s_lshl_b32 s60, s40, 9
    s_add_u32 s52, s52, s60
    s_and_b32 s60, s4, 15
    s_lshl4_add_u32 s52, s60, s52
    s_lshr_b32 s60, s4, 4
    s_lshl3_add_u32 s52, s60, s52
    s_add_u32 s52, s52, %d
    s_lshr_b32 s61, s4, 2
    s_lshl3_add_u32 s61, s3, s61
    s_lshl_b32 s53, s61, 13
    s_lshl_b32 s60, s40, 6
    s_add_u32 s53, s53, s60
    s_add_u32 s53, s53, %d
    s_add_u32 s66, s53, 4096
    s_lshl_b32 s54, s61, 8
    s_add_u32 s54, s54, %d
    """ % (E2O, ML, E2O, ML))
    c = """
    """
    if o["inbox"]:
        c += """
        s_and_b32 s60, s4, 3
        s_lshl2_add_u32 s55, s5, s60
        s_lshl_b32 s55, s55, 15
        s_lshr_b32 s60, s4, 2
        s_lshl3_add_u32 s60, s6, s60
        s_lshl_b32 s60, s60, 5
        s_add_u32 s55, s55, s60
        s_lshl_b32 s60, s40, 13
        s_add_u32 s55, s55, s60
        s_add_u32 s55, s55, %d
        s_lshl_b32 s56, s3, 15
        s_lshl_b32 s60, s4, 10
        s_add_u32 s56, s56, s60
        s_add_u32 s56, s56, %d
        v_mov_b32 v49, v48
        v_mov_b32 v48, v26
        """ % (E3, E3)
    else:
        c += """
        s_and_b32 s60, s4, 3
        s_lshl2_add_u32 s55, s5, s60
        s_lshl_b32 s55, s55, 5
        s_lshl3_add_u32 s55, s6, s55
        s_lshr_b32 s60, s4, 2
        s_add_u32 s55, s55, s60
        s_lshl2_add_u32 s55, s55, s40
        s_lshl_b32 s55, s55, 8
        s_add_u32 s55, s55, %d
        s_lshl_b32 s56, s3, 15
        s_lshl_b32 s60, s4, 5
        s_add_u32 s56, s56, s60
        s_add_u32 s56, s56, %d
        """ % (E3, E3)
    c += """
    s_lshl_b32 s57, s3, 9
    s_lshl4_add_u32 s57, s4, s57
    s_mov_b32 s62, 0x05040100
    s_mov_b32 s63, 0x07060302
    s_mov_b32 s64, 0x00ff00ff
    s_mov_b32 s65, 0x00ff00ff
    """
    if o["dump"]:
        c += "v_lshlrev_b32 v60, 6, v0\ns_lshl_b32 s60, s2, 14\nv_add_u32 v60, s60, v60\n"
    chunks.append(c)
    chunks.append("""
    s_waitcnt lgkmcnt(0)
    s_add_u32 s43, s43, 1
    s_and_b32 s41, s43, s42
    v_mov_b32 v32, s41
    v_mov_b32 v47, 0x3f803f80
    """)

    if o["x16"]:
        for i in range(o["early_chunks"]):
            chunks[i] = chunks[i].replace("v50", "v56").replace("v51", "v57")

    def chunk():
        if chunks:
            e(chunks.pop(0))

    for _ in range(o["early_chunks"]):
        chunk()
    if o["x16"]:
        e("""
        v_and_b32 v54, 1, v2
        v_mul_u32_u24 v54, 0x0202, v54
        v_mul_u32_u24 v54, 0x1001, v54
        """.replace("v_mul_u32_u24 v54, 0x1001, v54", "v_lshl_or_b32 v54, v54, 16, v54\nv_add_u32 v54, 0x01000100, v54\nv_lshrrev_b32 v55, 1, v2\nv_mul_u32_u24 v55, 0x0404, v55\nv_lshl_or_b32 v55, v55, 16, v55\nv_add_u32 v54, v54, v55"))
    p.wait_vm(xop)
    if o["x16"]:
        e("""
        v_mov_b32 v52, v50
        v_mov_b32 v53, v51
        v_permlane16_swap_b32 v50, v52
        v_permlane16_swap_b32 v51, v53
        v_mov_b32 v52, v50
        v_mov_b32 v53, v51
        v_permlane32_swap_b32 v50, v52
        v_permlane32_swap_b32 v51, v53
        v_perm_b32 v4, v51, v50, v54
        """)
    else:
        e("v_lshl_or_b32 v4, v4, 16, v4")

    def build_a(dst, src, t):
        for d in range(4):
            e("v_and_b32_dpp v%d, v%d, v%d row_newbcast:%d row_mask:0xf bank_mask:0xf" % (dst + d, src, MASK + d, t))

    note("""q projection: a tile holds 4 rows x 128 columns; with a one-hot A operand carrying x[row] the MFMA
    gives D[e][n] += sum_g x[row g] * W[row g][8n + e]""")
    for t in range(16):
        build_a(AB[t & 1], 4, t)
        arrive(t)
        if t in (0, 4, 8, 12):
            stamp("wq%d" % t, 1)
        if o["issfirst"]:
            top_up()
        e("v_mfma_f32_16x16x32_bf16 %s, %s, %s, %s" % (
            vr(QACC), vr(AB[t & 1]), vr(DATA + 4 * t), "0" if t == 0 else vr(QACC)))
        top_up()
        if t >= o["ct0"]:
            chunk()
    assert not chunks
    stamp("qdone")
    e("v_mov_b32 v53, %d" % MODE)
    e("s_mov_b32 exec_hi, 0")
    e("ds_write_b128 v62, %s" % vr(QACC))
    e("s_mov_b64 exec, 0xff")
    e("s_waitcnt lgkmcnt(0)")
    stamp("preB1", 1)
    e("s_barrier")
    stamp("B1", 1)
    e("ds_read_b32 v52, v53")
    for w2 in range(4):
        e("ds_read_b128 %s, v63 offset:%d" % (vr(G1R + 4 * w2), 512 * w2))
    e("s_waitcnt lgkmcnt(0)")
    e("v_readfirstlane_b32 s69, v52")

    def sum4(R):
        for r in (0, 2):
            e("v_pk_add_f32 %s, %s, %s" % (vr(R + r, 2), vr(R + r, 2), vr(R + 4 + r, 2)))
            e("v_pk_add_f32 %s, %s, %s" % (vr(R + 8 + r, 2), vr(R + 8 + r, 2), vr(R + 12 + r, 2)))
        for r in (0, 2):
            e("v_pk_add_f32 %s, %s, %s" % (vr(R + r, 2), vr(R + r, 2), vr(R + 8 + r, 2)))

    def tag4(R):
        for r in range(4):
            e("v_bfi_b32 v%d, s42, v32, v%d" % (R + r, R + r))

    def pack4(R):
        e("v_cvt_pk_bf16_f32 v%d, v%d, v%d" % (R, R, R + 1))
        e("v_cvt_pk_bf16_f32 v%d, v%d, v%d" % (R + 1, R + 2, R + 3))
        e("v_min_u32 v%d, -2, v%d" % (R, R))
        e("v_min_u32 v%d, -2, v%d" % (R + 1, R + 1))

    sum4(G1R)
    if e1bf:
        pack4(G1R)
        handoff_stores(["buffer_store_dwordx2 %s, v33, s[36:39], s49 offen" % vr(G1R, 2)])
    else:
        tag4(G1R)
        handoff_stores(["buffer_store_dwordx4 %s, v26, s[36:39], s49 offen" % vr(G1R)])
    e("s_mov_b64 exec, -1")
    stamp("E1pub")
    PLO, PHI, ONES = AB[0], AB[1], QACC
    for r in range(4):
        e("v_mov_b32 v%d, v47" % (ONES + r))
    for r in range(8):
        e("v_mov_b32 v%d, 0" % (PLO + r))

    def k_read():
        note("K operands of the two 16-key tiles")
        for T in range(2):
            for s in range(4):
                e("ds_read_b128 %s, v%d offset:%d" % (vr(KOP + 16 * T + 4 * s), 28 + s, 16384 * T))
    actions[23] = k_read

    def v_perm(d):
        def f():
            note("V^T operands: pair element e of two consecutive key rows")
            for ee in range(8):
                e("v_perm_b32 v%d, v%d, v%d, s%d" % (
                    VT + 4 * ee + d, VRAW + 4 * (2 * d + 1) + (ee >> 1), VRAW + 4 * (2 * d) + (ee >> 1), 62 + (ee & 1)))
        return f
    for d in range(4):
        actions[24 + 2 * d + 1] = v_perm(d)

    def ortree(regs, tmp):
        regs = list(regs)
        e("v_or3_b32 v%d, v%d, v%d, v%d" % (tmp, regs[0], regs[1], regs[2]))
        regs = regs[3:]
        while len(regs) >= 2:
            e("v_or3_b32 v%d, v%d, v%d, v%d" % (tmp, tmp, regs[0], regs[1]))
            regs = regs[2:]
        if regs:
            e("v_or_b32 v%d, v%d, v%d" % (tmp, tmp, regs[0]))
        e("v_and_b32 v%d, s42, v%d" % (tmp, tmp))
        e("v_cmp_ne_u32 vcc, 0, v%d" % tmp)

    def gather1():
        s = None
        for u in range(2 if e1bf else 4):
            s = p.vm("buffer_load_dwordx4 %s, v45, s[36:39], s50 offen offset:%d sc1" % (
                vr(G1R + 4 * u), (256 if e1bf else 512) * u))
        return s

    pace(24 + o["G1"])
    g1 = gather1()
    stamp("g1iss")
    pace(len(seq) + o["B1"])
    arrive(23)
    SEL = [28, 29, 30, 31, 62, 63, 0, 33]
    if hyb:
        assert not e1bf and not o["dump"]
        e("""
        v_lshrrev_b32 v52, 3, v1
        v_and_b32 v53, 7, v1
        v_lshlrev_b32 v24, 4, v53
        v_lshl_add_u32 v24, v52, 11, v24
        v_lshlrev_b32 v22, 3, v52
        v_add_u32 v22, %d, v22
        v_lshl_add_u32 v25, v3, 1, v2
        v_lshlrev_b32 v25, 4, v25
        s_lshl_b32 s61, s40, 8
        s_add_u32 s61, s61, %d
        v_add_u32 v61, s61, v25
        s_lshl_b32 s61, s40, 3
        s_add_u32 s61, s61, %d
        v_lshlrev_b32 v23, 1, v2
        v_add_u32 v23, s61, v23
        v_and_b32 v52, 7, v3
        v_lshrrev_b32 v53, 1, v52
        v_and_b32 v52, 1, v3
        v_cmp_eq_u32 vcc, 1, v52
        v_mov_b32 v54, 0x0c0c0100
        v_mov_b32 v55, 0x01000c0c
        v_cndmask_b32 v54, v54, v55, vcc
        v_mov_b32 v52, 0x0c0c0302
        v_mov_b32 v55, 0x03020c0c
        v_cndmask_b32 v55, v52, v55, vcc
        v_mov_b32 v52, 0x0c0c0c0c
        """ % (OB, OUTRED, OB))
        for d in range(4):
            e("v_cmp_eq_u32 vcc, %d, v53" % d)
            e("v_cndmask_b32 v%d, v52, v54, vcc" % SEL[2 * d])
            e("v_cndmask_b32 v%d, v52, v55, vcc" % SEL[2 * d + 1])
    p.wait_vm(g1)
    e("L_chk1:")
    stamp("g1arr")
    if e1bf:
        T8 = G1R + 8
        for i in range(4):
            e("v_perm_b32 v%d, v%d, v%d, s62" % (T8 + 2 * i, G1R + 4 + i, G1R + i))
            e("v_perm_b32 v%d, v%d, v%d, s63" % (T8 + 2 * i + 1, G1R + 4 + i, G1R + i))
        for i in range(8):
            e("v_dot2_f32_bf16 v%d, v%d, v47, 0" % (T8 + i, T8 + i))
        e("v_max3_u32 v54, v%d, v%d, v%d" % (G1R, G1R + 1, G1R + 2))
        e("v_max3_u32 v55, v%d, v%d, v%d" % (G1R + 3, G1R + 4, G1R + 5))
        for i in range(4):
            e("v_permlane32_swap_b32 v%d, v%d" % (T8 + i, T8 + 4 + i))
        e("v_max3_u32 v54, v54, v%d, v%d" % (G1R + 6, G1R + 7))
        e("v_pk_add_f32 %s, %s, %s" % (vr(50, 2), vr(T8, 2), vr(T8 + 4, 2)))
        e("v_pk_add_f32 %s, %s, %s" % (vr(52, 2), vr(T8 + 2, 2), vr(T8 + 6, 2)))
        e("v_max_u32 v54, v54, v55")
        e("v_cvt_pk_bf16_f32 v50, v50, v51")
        e("v_cvt_pk_bf16_f32 v51, v52, v53")
        e("v_cmp_eq_u32 vcc, -1, v54")
        e("ds_write_b64 v34, v[50:51]")
    else:
        for r in range(16):
            e("v_xor_b32 v%d, s41, v%d" % (G1R + r, G1R + r))
        for r in (0, 2):
            e("v_pk_add_f32 %s, %s, %s" % (vr(50 + r, 2), vr(G1R + r, 2), vr(G1R + 4 + r, 2)))
            e("v_pk_add_f32 %s, %s, %s" % (vr(54 + r, 2), vr(G1R + 8 + r, 2), vr(G1R + 12 + r, 2)))
        for r in (0, 2):
            e("v_pk_add_f32 %s, %s, %s" % (vr(50 + r, 2), vr(50 + r, 2), vr(54 + r, 2)))
        e("v_cvt_pk_bf16_f32 v50, v50, v51")
        e("v_cvt_pk_bf16_f32 v51, v52, v53")
        e("ds_write_b64 v34, v[50:51]")
        ortree(range(G1R, G1R + 16), 54)
    e("s_cbranch_vccz L_ok1")
    retry_code("L_retry1", "L_chk1", gather1)
    e("L_ok1:")
    throttle[0] = True
    if o["vstep"] and o["G1"]:
        arrive(24 + o["G1"] - 1)
    e("s_waitcnt lgkmcnt(0)")
    stamp("preB2", 1)
    e("s_barrier")
    stamp("B2", 1)
    for s4 in range(4):
        e("ds_read_b128 %s, v35 offset:%d" % (vr(QOP + 4 * s4), 64 * s4))
    spr = list(o["spr"])
    sprinkle(spr[0])
    S = G1R
    for s4 in range(4):
        e("s_waitcnt lgkmcnt(%d)" % (0 if o["stamps"] or o["dump"] else 3 - s4))
        if s4 == 0:
            stamp("qop", 1)
            dump(QOP, 16, 0)
        for T in range(2):
            e("v_mfma_f32_16x16x32_bf16 %s, %s, %s, %s" % (
                vr(S + 4 * T), vr(KOP + 16 * T + 4 * s4), vr(QOP + 4 * s4), "0" if s4 == 0 else vr(S + 4 * T)))
    sprinkle(spr[1])
    C = SCALE * LOG2E
    if o["mimic"]:
        e("s_mov_b32 s60, 0x%x" % f32bits(SCALE))
        for rnd in range(2):
            for d in range(4):
                e("v_cvt_pk_bf16_f32 v%d, v%d, v%d" % (50 + d, S + 2 * d, S + 2 * d + 1))
            for d in range(4):
                e("v_lshlrev_b32 v%d, 16, v%d" % (S + 2 * d, 50 + d))
                e("v_and_b32 v%d, 0xffff0000, v%d" % (S + 2 * d + 1, 50 + d))
            if rnd == 0:
                for r in range(8):
                    e("v_mul_f32 v%d, s60, v%d" % (S + r, S + r))
        C = LOG2E
    dump(S, 8, 1)
    e("s_mov_b32 s60, 0x%x" % f32bits(C))
    e("v_max3_f32 v50, v%d, v%d, v%d" % (S, S + 1, S + 2))
    e("v_max3_f32 v51, v%d, v%d, v%d" % (S + 4, S + 5, S + 6))
    e("v_max3_f32 v50, v50, v%d, v%d" % (S + 3, S + 7))
    e("v_max_f32 v50, v50, v51")
    e("v_mov_b32 v51, v50")
    e("v_permlane16_swap_b32 v50, v51")
    e("v_max_f32 v50, v50, v51")
    e("v_mov_b32 v51, v50")
    e("v_permlane32_swap_b32 v50, v51")
    e("v_max_f32 v50, v50, v51")
    if maxfirst:
        note("exchange the row maxima between the waves")
        e("s_mov_b64 exec, 0xff")
        e("ds_write_b32 v38, v50")
        e("s_mov_b64 exec, -1")
        e("s_waitcnt lgkmcnt(0)")
        e("s_barrier")
        e("ds_read_b128 v[52:55], v49")
        e("ds_read_b128 v[56:59], v39")
        e("s_waitcnt lgkmcnt(%d)" % (0 if o["stamps"] else 1))
        e("v_max3_f32 v50, v52, v53, v54")
        e("v_max_f32 v50, v50, v55")
        e("v_mul_f32 v50, s60, v50")
        e("v_bfi_b32 v50, s42, 0, v50")
    else:
        e("v_mul_f32 v50, s60, v50")
    for r in range(8):
        e("v_fma_f32 v%d, v%d, s60, -v50" % (S + r, S + r))
    for r in range(8):
        e("v_exp_f32 v%d, v%d" % (S + r, S + r))
    e("s_mov_b64 exec, s[64:65]")
    for d in range(4):
        e("v_cvt_pk_bf16_f32 v%d, v%d, v%d" % (PLO + d, S + 2 * d, S + 2 * d + 1))
    e("s_not_b64 exec, s[64:65]")
    for d in range(4):
        e("v_cvt_pk_bf16_f32 v%d, v%d, v%d" % (PHI + d, S + 2 * d, S + 2 * d + 1))
    e("s_mov_b64 exec, -1")
    OA = VRAW
    LA = KOP
    e("v_mfma_f32_16x16x32_bf16 %s, %s, %s, 0" % (vr(LA), vr(ONES), vr(PLO)))
    e("v_mfma_f32_16x16x32_bf16 %s, %s, %s, %s" % (vr(LA), vr(ONES), vr(PHI), vr(LA)))
    stamp("smax")
    sprinkle(spr[2])
    if maxfirst:
        e("s_waitcnt lgkmcnt(0)")
        e("v_max3_f32 v56, v56, v57, v58")
        e("v_max_f32 v56, v56, v59")
        e("v_mul_f32 v56, s60, v56")
        e("v_bfi_b32 v56, s42, v32, v56")
        e("s_mov_b64 exec, 0xff")
        e("ds_write_b32 v38, v%d offset:128" % LA)
    else:
        e("s_mov_b64 exec, 0xff")
        e("ds_write2_b32 v38, v50, v%d offset0:0 offset1:1" % LA)
    e("s_mov_b64 exec, -1")
    pace(32)
    if o["vstep"]:
        arrive(27)
        arrive(29)
    arrive(31)
    stamp("varr", 1)
    for ep in range(4):
        e("v_mfma_f32_16x16x32_bf16 %s, %s, %s, 0" % (vr(OA + 4 * ep), vr(VT + 4 * ep), vr(PLO)))
    for ep in range(4):
        e("v_mfma_f32_16x16x32_bf16 %s, %s, %s, %s" % (vr(OA + 4 * ep), vr(VT + 4 * (ep + 4)), vr(PHI), vr(OA + 4 * ep)))
        if ep == 0:
            sprinkle(spr[3])
    for ep in range(4):
        e("ds_write_b128 v36, %s offset:%d" % (vr(OA + 4 * ep), 128 * ep))
    dump(OA, 16, 2)
    e("s_waitcnt lgkmcnt(0)")
    stamp("preB3", 1)
    e("s_barrier")
    stamp("B3", 1)
    R = VT
    if maxfirst:
        for w2 in range(4):
            e("ds_read_b128 %s, v37 offset:%d" % (vr(R + 4 * w2), 4224 * w2))
        e("ds_read_b128 %s, v39 offset:128" % vr(R + 16))
        sprinkle(spr[4])
        e("s_waitcnt lgkmcnt(1)" if not o["stamps"] else "s_waitcnt lgkmcnt(0)")
        sum4(R)
        e("s_waitcnt lgkmcnt(0)")
        e("v_pk_add_f32 %s, %s, %s" % (vr(R + 16, 2), vr(R + 16, 2), vr(R + 18, 2)))
        e("v_add_f32 v57, v%d, v%d" % (R + 16, R + 17))
    else:
        e("ds_read_b128 %s, v39" % vr(R + 16))
        e("ds_read_b128 %s, v39 offset:16" % vr(R + 20))
        for w2 in range(4):
            e("ds_read_b128 %s, v37 offset:%d" % (vr(R + 4 * w2), 4224 * w2))
        sprinkle(spr[4])
        e("s_waitcnt lgkmcnt(4)" if not o["stamps"] else "s_waitcnt lgkmcnt(0)")
        e("v_max3_f32 v56, v%d, v%d, v%d" % (R + 16, R + 18, R + 20))
        e("v_max_f32 v56, v56, v%d" % (R + 22))
        e("v_bfi_b32 v56, s42, 0, v56")
        for w2 in range(4):
            e("v_sub_f32 v%d, v%d, v56" % (52 + w2, R + 16 + 2 * w2))
        for w2 in range(4):
            e("v_exp_f32 v%d, v%d" % (52 + w2, 52 + w2))
        e("v_or_b32 v56, s41, v56")
        e("v_mul_f32 v57, v52, v%d" % (R + 17))
        for w2 in range(1, 4):
            e("v_fmac_f32 v57, v%d, v%d" % (52 + w2, R + 17 + 2 * w2))
        e("s_waitcnt lgkmcnt(0)")
        for r in range(4):
            e("v_mul_f32 v%d, v52, v%d" % (R + r, R + r))
        for w2 in range(1, 4):
            for r in range(4):
                e("v_fmac_f32 v%d, v%d, v%d" % (R + r, 52 + w2, R + 4 * w2 + r))
    e("v_bfi_b32 v57, s42, v32, v57")
    pack4(R)
    handoff_stores(["buffer_store_dwordx2 %s, v40, s[36:39], s51 offen" % vr(R, 2),
                    "s_mov_b32 exec_lo, 1", "s_mov_b32 exec_hi, 1",
                    "buffer_store_dwordx2 v[56:57], v41, s[36:39], s52 offen"])
    e("s_mov_b64 exec, -1")
    stamp("E2pub")
    sprinkle(spr[5])

    G2R = KOP
    OA_, OB_, M0 = G2R, G2R + 4, G2R + 8

    def gather2():
        p.vm("buffer_load_dwordx4 %s, v43, s[36:39], s54 offen sc1" % vr(M0))
        p.vm("buffer_load_dwordx4 %s, v42, s[36:39], s53 offen sc1" % vr(OA_))
        return p.vm("buffer_load_dwordx4 %s, v42, s[36:39], s66 offen sc1" % vr(OB_))

    pace(32 + o["G2"])
    g2 = gather2()
    stamp("g2iss")
    pace(len(seq) + o["B2"])
    p.wait_vm(g2)
    e("L_chk2:")
    stamp("g2arr")
    for r in range(4):
        e("v_xor_b32 v%d, s41, v%d" % (M0 + r, M0 + r))
    e("v_max_f32 v50, v%d, v%d" % (M0, M0 + 2))
    e("v_max3_u32 v53, v%d, v%d, v%d" % (OA_, OA_ + 1, OA_ + 2))
    e("v_max3_u32 v53, v53, v%d, v%d" % (OA_ + 3, OB_))
    e("v_max_f32_dpp v50, v50, v50 row_ror:4 row_mask:0xf bank_mask:0xf")
    e("v_max3_u32 v53, v53, v%d, v%d" % (OB_ + 1, OB_ + 2))
    e("v_max_u32 v53, v53, v%d" % (OB_ + 3))
    e("v_max_f32_dpp v50, v50, v50 row_ror:8 row_mask:0xf bank_mask:0xf")
    e("v_or3_b32 v52, v%d, v%d, v%d" % (M0, M0 + 1, M0 + 2))
    e("v_mov_b32 v51, v50")
    e("v_or_b32 v52, v52, v%d" % (M0 + 3))
    e("v_and_b32 v52, s42, v52")
    e("v_permlane16_swap_b32 v50, v51")
    e("v_max_f32 v50, v50, v51")
    e("v_mov_b32 v51, v50")
    e("v_cmp_eq_u32 vcc, -1, v53")
    e("v_cmp_ne_u32 s[10:11], 0, v52")
    e("v_permlane32_swap_b32 v50, v51")
    e("v_max_f32 v50, v50, v51")
    A8 = G2R + 12
    e("v_sub_f32 v52, v%d, v50" % M0)
    e("v_sub_f32 v53, v%d, v50" % (M0 + 2))
    e("v_exp_f32 v52, v52")
    e("v_exp_f32 v53, v53")
    e("s_or_b64 vcc, vcc, s[10:11]")
    e("s_cbranch_vccz L_ok2")
    retry_code("L_retry2", "L_chk2", gather2)
    e("L_ok2:")
    e("v_cvt_pk_bf16_f32 v54, v52, v53")
    for i in range(4):
        e("v_perm_b32 v%d, v%d, v%d, s62" % (A8 + 2 * i, OB_ + i, OA_ + i))
        e("v_perm_b32 v%d, v%d, v%d, s63" % (A8 + 2 * i + 1, OB_ + i, OA_ + i))
    e("v_lshlrev_b32 v52, 16, v54")
    e("v_and_b32 v53, 0xffff0000, v54")
    e("v_mul_f32 v51, v52, v%d" % (M0 + 1))
    e("v_fmac_f32 v51, v53, v%d" % (M0 + 3))
    for i in range(8):
        e("v_dot2_f32_bf16 v%d, v%d, v54, 0" % (A8 + i, A8 + i))
    e("v_add_f32_dpp v51, v51, v51 row_ror:4 row_mask:0xf bank_mask:0xf")
    for b in (0, 4):
        e("v_permlane32_swap_b32 v%d, v%d" % (A8 + b, A8 + b + 2))
        e("v_permlane32_swap_b32 v%d, v%d" % (A8 + b + 1, A8 + b + 3))
    e("v_add_f32_dpp v51, v51, v51 row_ror:8 row_mask:0xf bank_mask:0xf")
    for b in (0, 4):
        e("v_add_f32 v%d, v%d, v%d" % (A8 + b, A8 + b, A8 + b + 2))
        e("v_add_f32 v%d, v%d, v%d" % (A8 + b + 1, A8 + b + 1, A8 + b + 3))
    e("v_mov_b32 v50, v51")
    e("v_permlane16_swap_b32 v%d, v%d" % (A8, A8 + 1))
    e("v_permlane16_swap_b32 v%d, v%d" % (A8 + 4, A8 + 5))
    e("v_permlane16_swap_b32 v50, v51")
    e("v_add_f32 v%d, v%d, v%d" % (A8, A8, A8 + 1))
    e("v_add_f32 v%d, v%d, v%d" % (A8 + 4, A8 + 4, A8 + 5))
    e("v_add_f32 v51, v50, v51")
    e("v_add_f32_dpp v%d, v%d, v%d row_ror:4 row_mask:0xf bank_mask:0xf" % (A8, A8, A8))
    e("v_mov_b32 v50, v51")
    e("v_add_f32_dpp v%d, v%d, v%d row_ror:4 row_mask:0xf bank_mask:0xf" % (A8 + 4, A8 + 4, A8 + 4))
    e("v_add_f32_dpp v%d, v%d, v%d row_ror:8 row_mask:0xf bank_mask:0xf" % (A8, A8, A8))
    e("v_permlane32_swap_b32 v50, v51")
    e("v_add_f32 v51, v50, v51")
    e("v_add_f32_dpp v%d, v%d, v%d row_ror:8 row_mask:0xf bank_mask:0xf" % (A8 + 4, A8 + 4, A8 + 4))
    e("v_rcp_f32 v51, v51")
    X = (4, 5)
    e("v_mul_f32 v%d, v%d, v51" % (A8, A8))
    e("v_mul_f32 v%d, v%d, v51" % (A8 + 4, A8 + 4))
    e("v_cvt_pk_bf16_f32 v%d, v%d, v%d" % (X[0], A8, A8))
    e("v_cvt_pk_bf16_f32 v%d, v%d, v%d" % (X[1], A8 + 4, A8 + 4))
    dump(X[0], 1, 3)
    dump(X[1], 1, 4)
    stamp("ordy")
    OUT0, OUT1 = G1R, G1R + 4
    A4 = 56
    if hyb:
        e("s_mov_b32 exec_lo, 0x00080008\ns_mov_b32 exec_hi, 0x00080008")
        e("ds_write_b16 v23, v%d" % X[0])
        e("ds_write_b16 v23, v%d offset:32" % X[1])
        e("s_mov_b64 exec, -1")
        issue(16)
        build_a(AB[0], X[0], 0)
        for t in range(6):
            for c2, acc in ((0, OUT0), (1, OUT1)):
                arrive(32 + 2 * t + c2)
                e("v_mfma_f32_16x16x32_bf16 %s, %s, %s, %s" % (
                    vr(acc), vr(AB[t & 1]), vr(DATA + 8 * t + 4 * c2), "0" if t == 0 else vr(acc)))
                if c2 == 0 and t < 5:
                    build_a(AB[(t + 1) & 1], X[(t + 1) & 1], (t + 1) >> 1)
        for r in range(4):
            e("v_mov_b32 v%d, 0" % (R + r))
        e("s_mov_b32 exec_hi, 0")
        e("ds_write_b128 v44, %s" % vr(OUT0))
        e("ds_write_b128 v44, %s offset:512" % vr(OUT1))
        e("s_mov_b64 exec, -1")
        e("s_waitcnt lgkmcnt(0)")
        stamp("preB4", 1)
        e("s_barrier")
        stamp("B4", 1)
        XD = QOP + 8
        AU = KOP
        e("ds_read_b64 %s, v22" % vr(XD, 2))
        e("s_mov_b32 exec_lo, 0x00ff00ff\ns_mov_b32 exec_hi, 0")
        for w2 in range(4):
            e("ds_read_b128 %s, v61 offset:%d" % (vr(R + 4 * w2), 1024 * w2))
        e("s_mov_b64 exec, -1")
        e("s_waitcnt lgkmcnt(%d)" % (0 if o["stamps"] else 4))
        for u in range(4):
            for d in range(4):
                e("v_perm_b32 v%d, v%d, v%d, v%d" % (AU + 4 * u + d, XD + (u >> 1), XD + (u >> 1), SEL[2 * d + (u & 1)]))
        e("s_mov_b32 exec_lo, 0x00ff00ff\ns_mov_b32 exec_hi, 0")
        e("s_waitcnt lgkmcnt(0)")
        sum4(R)
        e("s_mov_b64 exec, -1")
        for u in range(4):
            arrive(44 + u)
            e("v_mfma_f32_16x16x32_bf16 %s, %s, %s, %s" % (vr(R), vr(AU + 4 * u), vr(DATA + 48 + 4 * u), vr(R)))
        stamp("opdone")
        for r in range(4):
            e("v_permlane32_swap_b32 v%d, v%d" % (R + r, R + 4 + r))
        for r in range(4):
            e("v_add_f32_dpp v%d, v%d, v%d row_ror:8 row_mask:0xf bank_mask:0xf" % (R + r, R + 4 + r, R + r))
        tag4(R)
        e("s_mov_b32 exec_lo, 0x00ff00ff\ns_mov_b32 exec_hi, 0")
        p.vm("buffer_store_dwordx4 %s, v25, s[36:39], s55 offen sc1" % vr(R))
    else:
        issue(16)
        build_a(AB[0], X[0], 0)
        for t in range(8):
            for c2, acc in ((0, OUT0), (1, OUT1)):
                if t == 7 and c2 == 1:
                    e("s_mov_b32 exec_hi, 0")
                    e("ds_write_b128 v44, %s" % vr(OUT0))
                    e("s_mov_b64 exec, -1")
                arrive(32 + 2 * t + c2)
                e("v_mfma_f32_16x16x32_bf16 %s, %s, %s, %s" % (
                    vr(acc), vr(AB[t & 1]), vr(DATA + 8 * t + 4 * c2), "0" if t == 0 else vr(acc)))
                if c2 == 0 and t < 7:
                    build_a(AB[(t + 1) & 1], X[(t + 1) & 1], (t + 1) >> 1)
        stamp("opdone")
        if o["hoist"] and o["lflag"]:
            e("""
            s_lshl_b32 s60, s3, 7
            s_add_u32 s60, s60, %d
            s_lshl2_add_u32 s61, s4, s60
            v_mov_b32 v50, s43
            v_mov_b32 v51, 0
            v_and_b32 v53, 31, v1
            v_lshlrev_b32 v53, 2, v53
            """ % FL)
        e("s_mov_b32 exec_hi, 0")
        e("ds_write_b128 v44, %s offset:512" % vr(OUT1))
        e("s_mov_b64 exec, 0xffff")
        e("s_waitcnt lgkmcnt(0)")
        stamp("preB4", 1)
        e("s_barrier")
        stamp("B4", 1)
        if o["swap3"]:
            e("s_cmp_eq_u32 s40, 0\ns_cbranch_scc1 L_cons")
            e("s_cmp_lg_u32 s40, 1\ns_cbranch_scc1 L_pub3")
            e("s_mov_b32 exec_lo, -1\ns_sub_u32 s55, s55, 256\nv_subrev_u32 v61, 256, v61\nL_pub3:")
        for w2 in range(4):
            e("ds_read_b128 %s, v61 offset:%d" % (vr(R + 4 * w2), 1024 * w2))
        e("s_waitcnt lgkmcnt(0)")
        sum4(R)
        tag4(R)
        p.vm("buffer_store_dwordx4 %s, v%d, s[36:39], s55 offen sc1" % (vr(R), 49 if o["inbox"] else 26))
    e("s_mov_b64 exec, -1")
    stamp("E3pub")
    def final_reduce():
        QR = VRAW
        e("L_retry3:")
        p.vm("buffer_load_dwordx4 %s, v48, s[36:39], s56 offen sc1" % vr(QR))
        e("s_waitcnt vmcnt(0)")
        for r in range(4):
            e("v_xor_b32 v%d, s41, v%d" % (A4 + r, QR + r))
        ortree(range(A4, A4 + 4), 52)
        e("s_cbranch_vccz L_got3")
        e("s_mov_b64 exec, vcc")
        e("s_sub_u32 s59, s59, 1")
        e("s_cbranch_scc0 L_retry3")
        e("s_branch L_end")
        e("L_got3:")
        e("s_mov_b64 exec, -1")
        stamp("got3", 1)
        e("v_permlane32_swap_b32 v%d, v%d" % (A4, A4 + 2))
        e("v_permlane32_swap_b32 v%d, v%d" % (A4 + 1, A4 + 3))
        e("v_add_f32 v%d, v%d, v%d" % (A4, A4, A4 + 2))
        e("v_add_f32 v%d, v%d, v%d" % (A4 + 1, A4 + 1, A4 + 3))
        e("v_permlane16_swap_b32 v%d, v%d" % (A4, A4 + 1))
        e("v_add_f32 v%d, v%d, v%d" % (A4, A4, A4 + 1))
        for k in (2, 4, 8):
            e("v_add_f32_dpp v%d, v%d, v%d row_ror:%d row_mask:0xf bank_mask:0xf" % (A4, A4, A4, k))
        e("v_cvt_pk_bf16_f32 v%d, v%d, v%d" % (A4, A4, A4))
        e("s_mov_b32 exec_lo, 0x00030003\ns_mov_b32 exec_hi, 0x00030003")
        p.vm("buffer_store_short v%d, v46, s[32:35], s57 offen" % A4)
        e("s_and_b32 s60, s2, 0xfb")
        e("s_cbranch_scc1 L_hfin" if o["hcons"] else "s_cbranch_scc1 L_fin")
        e("s_mov_b64 exec, 1")
        e("v_mov_b32 v50, s43")
        e("v_mov_b32 v51, 0")
        p.vm("buffer_store_dword v50, v51, s[36:39], s7 offen sc1")

    if o["hcons"]:
        note("the last wave leaves a completion hint for the group's helpers")
        e("""
        s_cmp_lg_u32 s40, %d
        s_cbranch_scc1 L_fin
        s_lshl_b32 s60, s3, 7
        s_add_u32 s60, s60, %d
        s_lshl2_add_u32 s61, s4, s60
        v_mov_b32 v50, s43
        v_mov_b32 v51, 0
        s_mov_b64 exec, 1
        buffer_store_dword v50, v51, s[36:39], s61 offen
        """ % (o["flw"], FL))
    else:
        if o["swap3"]:
            e("s_branch L_fin\nL_cons:\ns_mov_b64 exec, -1")
        else:
            e("s_cmp_lg_u32 s40, 0")
            e("s_cbranch_scc1 L_fin")
        if o["lflag"]:
            note("""leave a completion hint; with one L2 for the group wait for the group's hints, so that the slots of
            producers that are still running are not polled across dies (the hints only time the gather)""")
            if not o["hoist"]:
                e("""
                s_lshl_b32 s60, s3, 7
                s_add_u32 s60, s60, %d
                s_lshl2_add_u32 s61, s4, s60
                v_mov_b32 v50, s43
                v_mov_b32 v51, 0
                v_and_b32 v53, 31, v1
                v_lshlrev_b32 v53, 2, v53
                """ % FL)
            e("""
            s_mov_b64 exec, 1
            %s
            buffer_store_dword v50, v51, s[36:39], s61 offen
            s_mov_b64 exec, -1
            s_cmp_lg_u32 s69, 0
            s_cbranch_scc1 L_nofl
            L_flp:
            s_sub_u32 s59, s59, 1
            s_cbranch_scc1 L_end
            buffer_load_dword v52, v53, s[36:39], s60 offen sc1
            s_waitcnt vmcnt(0)
            v_cmp_ne_u32 vcc, s43, v52
            s_cbranch_vccnz L_flp
            L_nofl:
            """ % ("s_waitcnt vmcnt(0)" if o["flate"] else ""))
        e("s_waitcnt vmcnt(0)")
        stamp("ack3", 1)
        final_reduce()
    e("L_fin:")
    if o["probe"]:
        a, b, k, wg = o["probe"]
        stamp("fin")
        e("s_cmp_lg_u32 s2, %d\ns_cbranch_scc1 L_end\ns_cmp_lg_u32 s40, 0\ns_cbranch_scc1 L_end" % wg)
        e("s_waitcnt lgkmcnt(0)")
        e("s_sub_u32 s60, s%d, s%d" % (70 + 2 * names.index(b), 70 + 2 * names.index(a)))
        e("s_mul_i32 s60, s60, %d" % k)
        e("L_probe:")
        e("s_memrealtime s[62:63]\ns_waitcnt lgkmcnt(0)")
        e("s_sub_u32 s61, s62, s%d" % (70 + 2 * (stamp_n[0] - 1)))
        e("s_cmp_lt_u32 s61, s60\ns_cbranch_scc1 L_probe")
        e("s_branch L_end")
    elif o["stamps"]:
        stamp("fin")
        e("s_mov_b64 exec, 1")
        e("s_getreg_b32 s68, hwreg(HW_REG_XCC_ID)")
        e("s_mov_b32 s69, s59")
        e("s_waitcnt lgkmcnt(0)")
        for i in range(32):
            e("v_mov_b32 v%d, s%d" % (64 + i, 68 + i))
        e("s_lshl_b32 s60, s2, 2\ns_add_u32 s60, s60, s40\ns_lshl_b32 s60, s60, 7\ns_add_u32 s60, s60, %d" % TS_OFF)
        e("v_mov_b32 v51, 0")
        for i in range(8):
            p.vm("buffer_store_dwordx4 %s, v51, s[36:39], s60 offen offset:%d" % (vr(64 + 4 * i), 16 * i))
    e("L_end:")
    e("s_endpgm")

    note("""helper wave: clears the slots that carry bare bf16 data to the sentinel 0xffffffff, exchanges die ids
    with the group (word = epoch + 1 with the die id in bits 13:10) and leaves the store mode
    (0 = one L2 for the whole group) in LDS before it ends""")
    clears = ["buffer_store_dwordx4 v[52:55], v40, s[36:39], s51 offen",
              "buffer_store_dwordx4 v[52:55], v40, s[36:39], s52 offen"]
    e("""
    L_helper:
    v_and_b32 v1, 63, v0
    s_and_b32 s3, s2, 7
    s_lshr_b32 s4, s2, 3
    s_and_b32 s6, s2, 3
    s_mov_b32 s38, %d
    s_mov_b32 s39, 0x20000
    s_lshl_b32 s7, s5, 8
    v_lshlrev_b32 v40, 4, v3
    v_lshl_add_u32 v40, v2, 13, v40
    s_lshl_b32 s51, s3, 16
    s_lshl_b32 s61, s4, 8
    s_add_u32 s51, s51, s61
    s_add_u32 s51, s51, %d
    s_add_u32 s52, s51, 32768
    v_mov_b32 v52, -1
    v_mov_b32 v53, -1
    v_mov_b32 v54, -1
    v_mov_b32 v55, -1
    v_lshlrev_b32 v26, 4, v1
    s_waitcnt lgkmcnt(0)
    s_load_dword s43, s[36:37], s7
    """ % (WS_BYTES, E2O))
    for t in clears:
        e(t)
    extra = []
    if o["prew1"] or o["prewml"]:
        e("v_mov_b32 v64, 0\nv_mov_b32 v65, 1\nv_mov_b32 v66, 2\nv_mov_b32 v67, 3")
    if o["prew1"]:
        assert not e1bf
        e("""
        s_and_b32 s60, s4, 7
        s_lshl3_add_u32 s60, s3, s60
        s_lshr_b32 s61, s4, 3
        s_lshl2_add_u32 s49, s60, s61
        s_lshl_b32 s49, s49, 9
        s_add_u32 s49, s49, %d
        """ % E1)
        extra += ["s_mov_b32 exec_hi, 0", "buffer_store_dwordx4 v[64:67], v26, s[36:39], s49 offen"]
    if o["prewml"]:
        e("""
        s_lshl_b32 s53, s3, 11
        s_and_b32 s60, s4, 15
        s_lshl4_add_u32 s53, s60, s53
        s_lshr_b32 s60, s4, 4
        s_lshl3_add_u32 s53, s60, s53
        s_add_u32 s53, s53, %d
        v_lshlrev_b32 v41, 8, v1
        """ % ML)
        extra += ["s_mov_b64 exec, 0xff", "buffer_store_dwordx2 v[64:65], v41, s[36:39], s53 offen"]
    if extra:
        extra.append("s_mov_b64 exec, -1")
        for t in extra:
            e(t)
    if e1bf:
        e("""
        s_and_b32 s60, s4, 7
        s_lshl3_add_u32 s60, s3, s60
        s_lshr_b32 s61, s4, 3
        s_lshl2_add_u32 s49, s60, s61
        s_lshl_b32 s49, s49, 8
        s_add_u32 s49, s49, %d
        s_mov_b64 exec, 0xffff
        buffer_store_dwordx4 v[52:55], v26, s[36:39], s49 offen
        s_mov_b64 exec, -1
        """ % E1)
    e("""
    s_movk_i32 s42, %d
    s_mov_b32 s59, %d
    s_getreg_b32 s60, hwreg(HW_REG_XCC_ID, 0, 4)
    s_lshl_b32 s69, s60, 10
    s_lshl_b32 s68, s3, 7
    s_add_u32 s68, s68, %d
    s_lshl2_add_u32 s67, s4, s68
    v_mov_b32 v57, 0
    v_and_b32 v47, 31, v1
    v_lshlrev_b32 v47, 2, v47
    """ % (TAGMASK, o["retry"], E0))
    if o["prew3"] and o["inbox"]:
        e("""
        s_and_b32 s60, s4, 3
        s_lshl2_add_u32 s55, s5, s60
        s_lshl_b32 s55, s55, 15
        s_lshr_b32 s60, s4, 2
        s_lshl3_add_u32 s60, s6, s60
        s_lshl_b32 s60, s60, 5
        s_add_u32 s55, s55, s60
        s_add_u32 s55, s55, %d
        v_lshrrev_b32 v26, 1, v1
        v_lshlrev_b32 v26, 10, v26
        v_and_b32 v60, 1, v1
        v_lshl_add_u32 v26, v60, 4, v26
        """ % E3)
    elif o["prew3"]:
        e("""
        s_and_b32 s60, s4, 3
        s_lshl2_add_u32 s55, s5, s60
        s_lshl_b32 s55, s55, 5
        s_lshl3_add_u32 s55, s6, s55
        s_lshr_b32 s60, s4, 2
        s_add_u32 s55, s55, s60
        s_lshl_b32 s55, s55, 10
        s_add_u32 s55, s55, %d
        """ % E3)
    if o["prew3"]:
        e("""
        v_mov_b32 v60, 0
        v_mov_b32 v61, 1
        v_mov_b32 v62, 2
        v_mov_b32 v63, 3
        """)
    e("s_waitcnt vmcnt(0) lgkmcnt(0)" if e1bf else "s_waitcnt lgkmcnt(0)")
    e("""
    s_add_u32 s43, s43, 1
    s_and_b32 s41, s43, s42
    s_mov_b32 s42, 0xffffc3ff
    s_and_b32 s46, s43, s42
    s_or_b32 s69, s69, s46
    s_mov_b32 s46, s69
    v_mov_b32 v56, s69
    s_mov_b64 exec, 1
    buffer_store_dword v56, v57, s[36:39], s67 offen sc1
    """)
    if o["lflag"] & 2:
        e("s_add_u32 s60, s67, %d" % (FL - E0))
        e("buffer_store_dword v57, v57, s[36:39], s60 offen")
    e("s_mov_b64 exec, -1")
    if o["prew3"]:
        note("an invalid granule written ahead makes the later write-through of the output partials faster")
        e("buffer_store_dwordx4 v[60:63], v26, s[36:39], s55 offen sc1")
    if o["e0ack"]:
        e("s_waitcnt vmcnt(0)")
    if o["e0s"]:
        e("""
        s_add_u32 s10, s36, s68
        s_addc_u32 s11, s37, 0
        L_hpoll:
        s_sub_u32 s59, s59, 1
        s_cbranch_scc1 L_end
        s_load_dwordx16 s[68:83], s[10:11], 0 glc
        s_load_dwordx16 s[84:99], s[10:11], 64 glc
        s_waitcnt lgkmcnt(0)
        """.replace("s[68:83]", "s[64:79]").replace("s[84:99]", "s[80:95]"))
        e("s_xor_b32 s60, s64, s46")
        for i in range(1, 32):
            e("s_xor_b32 s61, s%d, s46" % (64 + i))
            e("s_or_b32 s60, s60, s61")
        e("""
        s_and_b32 s61, s60, s42
        s_cbranch_scc1 L_hpoll
        s_mov_b32 s69, s60
        s_waitcnt vmcnt(0)
        """)
    else:
        e("""
        L_hpoll:
        s_sub_u32 s59, s59, 1
        s_cbranch_scc1 L_end
        buffer_load_dword v58, v47, s[36:39], s68 offen sc1
        s_waitcnt vmcnt(0)
        v_xor_b32 v58, s69, v58
        v_and_b32 v59, s42, v58
        v_cmp_ne_u32 vcc, 0, v59
        s_cbranch_vccnz L_hpoll
        v_cmp_ne_u32 vcc, 0, v58
        s_or_b32 s69, vcc_lo, vcc_hi
        """)
    if o["force_global"]:
        e("s_mov_b32 s69, 1")
    e("""
    s_cmp_lg_u32 s69, 0
    s_cbranch_scc1 L_hglob
    L_hdone:
    v_mov_b32 v56, s69
    v_mov_b32 v57, %d
    ds_write_b32 v57, v56
    s_waitcnt lgkmcnt(0)
    """ % MODE)
    if o["hcons"]:
        e("""
        s_barrier
        s_load_dwordx2 s[32:33], s[0:1], 80
        s_movk_i32 s34, 4096
        s_mov_b32 s35, 0x20000
        s_movk_i32 s42, %d
        v_and_b32 v58, 1, v1
        v_lshrrev_b32 v48, 1, v1
        v_lshlrev_b32 v48, 10, v48
        v_lshl_add_u32 v48, v58, 4, v48
        v_lshl_add_u32 v46, v3, 2, v2
        v_lshlrev_b32 v46, 1, v46
        s_lshl_b32 s56, s3, 15
        s_lshl_b32 s60, s4, 5
        s_add_u32 s56, s56, s60
        s_add_u32 s56, s56, %d
        s_lshl_b32 s57, s3, 9
        s_lshl4_add_u32 s57, s4, s57
        s_lshl_b32 s60, s3, 7
        s_add_u32 s60, s60, %d
        s_waitcnt lgkmcnt(0)
        s_barrier
        s_barrier
        s_barrier
        s_cmp_lg_u32 s69, 0
        s_cbranch_scc1 L_nofl
        L_flp:
        s_sub_u32 s59, s59, 1
        s_cbranch_scc1 L_end
        buffer_load_dword v52, v47, s[36:39], s60 offen sc1
        s_waitcnt vmcnt(0)
        v_cmp_ne_u32 vcc, s43, v52
        s_cbranch_vccnz L_flp
        L_nofl:
        """ % (TAGMASK, E3, FL))
        if o["hdelay"]:
            for _ in range(o["hdelay"]):
                e("buffer_load_dword v52, v47, s[36:39], s60 offen sc1\ns_waitcnt vmcnt(0)")
        final_reduce()
        e("L_hfin:")
    e("s_endpgm")
    note("group spread over several dies: repeat the clears write-through" +
         (", then wait until the whole group has done so" if e1bf else ""))
    e("L_hglob:")
    for t in clears + extra:
        e(t + (" sc1" if t.startswith("buffer") else ""))
    if e1bf:
        e("""
        s_mov_b64 exec, 0xffff
        buffer_store_dwordx4 v[52:55], v26, s[36:39], s49 offen sc1
        s_mov_b64 exec, 1
        s_waitcnt vmcnt(0)
        buffer_store_dword v56, v57, s[36:39], s67 offen offset:1024 sc1
        s_mov_b64 exec, -1
        L_hpoll2:
        s_sub_u32 s59, s59, 1
        s_cbranch_scc1 L_end
        buffer_load_dword v58, v47, s[36:39], s68 offen offset:1024 sc1
        s_waitcnt vmcnt(0)
        v_xor_b32 v58, s46, v58
        v_and_b32 v58, s42, v58
        v_cmp_ne_u32 vcc, 0, v58
        s_cbranch_vccnz L_hpoll2
        """)
    else:
        e("s_waitcnt vmcnt(0)")
    e("s_branch L_hdone")
    for k, texts in cold:
        e("L_glob%d:" % k)
        for t in texts:
            e(t + (" sc1" if t.startswith("buffer") else ""))
        e("s_branch L_st%d" % k)

    ref = open("cdna_kernels/%s.s.ref" % KN).read()
    layout = "".join(l + "\n" for l in ref.split("\n") if l.startswith(";   offset") or l.startswith("; Kernarg"))
    head = layout + """; Fused decode attention for both branches: q = x Wq, GQA attention over the last 4096 keys, out = o Wo.
; One launch of 256 workgroups, 32 per (branch, kv head); all of them are resident at once.
; Every byte of Wq, K, V and Wo is loaded exactly once, as one paced stream per wave.  Three hand-offs go
; through d_ws: q partials and o partials inside a group, output partials across the four groups of a branch.
; A handed-off word is valid when it carries this launch's tag (f32 data, tag in the low 10 mantissa bits)
; or differs from the sentinel its slot was cleared to earlier in this launch (packed bf16 data).
; @launch grid=(256,1,1) block=(320,1,1) lds=%d
.amdgcn_target "amdgcn-amd-amdhsa--gfx950"
.text
%s.globl %s_kernel
.p2align 8
.type %s_kernel,@function
""" % (LDS_BYTES, "" if o["pageoff"] is None else ".p2align 12\n.fill %d, 4, 0xbf810000\n" % (((o["pageoff"] - 0x300) % 4096) // 4), KN, KN)
    tail = """.section .rodata,"a"
.p2align 6
.amdhsa_kernel %s_kernel
  .amdhsa_next_free_vgpr 256
  .amdhsa_next_free_sgpr 102
  .amdhsa_accum_offset 256
  .amdhsa_group_segment_fixed_size 0
  .amdhsa_kernarg_size 104
  .amdhsa_user_sgpr_count 2
  .amdhsa_user_sgpr_kernarg_segment_ptr 1
  .amdhsa_system_sgpr_workgroup_id_x 1
  .amdhsa_float_denorm_mode_32 3
.end_amdhsa_kernel
""" % KN
    gen.names = names
    return head + p.text() + tail


if __name__ == "__main__":
    kw = eval("dict(%s)" % (sys.argv[2] if len(sys.argv) > 2 else ""))
    open(sys.argv[1], "w").write(gen(**kw))
```

```python
import struct
import sys
from asmlib import Prog

KN = "concat_heads__sliding_block_cached__sliding_block_cached__decode"
WS_BYTES = 301993984
TS_OFF = 200 << 20

EPOCH = 0x0
E0 = 0x1000
FL = 0x2000
E1 = 0x8000
ML = 0x30000
E3 = 0x40000
E2O = 0x80000
QRED = 32768
QB = 34816
ORED = 37120
MLR = 54016
OUTRED = 54272
MODE = 58368
OB = 58384
LDS_BYTES = 58464
TAGMASK = 0x3FF

DEFAULTS = dict(Wq=6, Wk=6, Wv=6, W=5, G1=4, B1=4, G2=12, B2=4, spr=(1, 1, 1, 1, 1, 1), early_chunks=3,
                e1bf=False, prew3=False, mimic=False, stamps=False, dump=False, probe=None, retry=1 << 20,
                force_global=False, e0s=False, e0ack=True, inbox=False, maxfirst=False, hyb=False, vstep=True, thr=0, thrspr=False, lflag=1, hcons=False, flw=3, hdelay=0, prew1=False, prewml=False, flate=False, swap3=False, xpos=0, x16=False, ct0=0, issfirst=False, ntq="nt", ntk="nt", ntv="nt", nto="nt", qmap=None, kvmap=None, pageoff=2048, hoist=True, otouch=0, outsc="", epsc="", fake=0)


def f32bits(x):
    return struct.unpack("<I", struct.pack("<f", x))[0]


def vr(a, n=4):
    return "v[%d:%d]" % (a, a + n - 1)


def gen(**kw):
    o = dict(DEFAULTS)
    for k in kw:
        assert k in o, k
    o.update(kw)
    p = Prog()
    e = p.e
    e1bf = o["e1bf"]
    E2O = globals()["E2O"] + (0x20000000 if o["fake"] & 1 else 0)
    maxfirst, hyb = o["maxfirst"], o["hyb"]
    stamp_n = [0]
    names = []
    cold = []

    def note(text):
        for line in text.strip().split("\n"):
            e("; " + line.strip())

    def stamp(name, level=0):
        want = o["stamps"]
        if want and (name in want if isinstance(want, (list, tuple)) else level == 0):
            k = 70 + 2 * stamp_n[0]
            assert k <= 98
            e("s_memrealtime s[%d:%d]" % (k, k + 1))
            stamp_n[0] += 1
            names.append(name)

    def dump(reg, n, slot):
        if o["dump"]:
            e("s_mov_b32 s61, %d" % (TS_OFF + (1 << 20) + slot * (4 << 20)))
            for i in range(n):
                p.vm("buffer_store_dword v%d, v60, s[36:39], s61 offen offset:%d" % (reg + i, 4 * i))
            e("s_waitcnt vmcnt(0)")

    def handoff_stores(texts):
        k = len(cold) + 1
        e("s_cmp_eq_u32 s69, 0")
        e("s_cbranch_scc0 L_glob%d" % k)
        for t in texts:
            e(t)
        e("L_st%d:" % k)
        cold.append((k, texts))

    def retry_code(lb, chk, g):
        n0 = p.nvm
        e("%s:" % lb)
        if o["thr"] and lb == "L_retry1":
            e("s_mov_b32 s67, 1")
        e("s_sub_u32 s59, s59, 1")
        e("s_cbranch_scc1 L_end")
        g()
        e("s_waitcnt vmcnt(0)")
        e("s_branch %s" % chk)
        p.nvm = n0

    SCALE = 128 ** -0.5
    LOG2E = 1.4426950408889634
    DATA = 64
    KOP = 128
    VRAW = 160
    VT = 192
    G1R = 224
    QOP = 240
    AB = (10, 14)
    QACC = 18
    MASK = 6
    W = o["W"]

    e("%s_kernel:" % KN)
    note("""s2 = 8*j + grp, grp = 4*branch + kvh.  Waves 0-3 stream and compute, wave 4 is the helper.
    q tile: head j&7, rows 64*t + 16*(j>>3) + 4*wave + g (g = lane>>4, t = load index).""")
    e("""
    s_and_b32 s7, s2, 4
    s_mul_i32 s7, s7, 10
    s_add_u32 s8, s0, s7
    s_addc_u32 s9, s1, 0
    s_load_dwordx2 s[24:25], s[8:9], 24
    s_load_dwordx2 s[12:13], s[8:9], 0
    s_load_dwordx2 s[36:37], s[0:1], 96
    v_lshrrev_b32 v50, 6, v0
    v_bfe_u32 v2, v0, 4, 2
    v_readfirstlane_b32 s40, v50
    v_and_b32 v3, 15, v0
    s_cmpk_ge_u32 s2, 256
    s_cbranch_scc1 L_end
    v_lshlrev_b32 v5, 4, v3
    v_lshlrev_b32 v4, 7, v3
    v_lshl_add_u32 v5, v2, 13, v5
    v_lshl_add_u32 v4, v2, 1, v4
    s_bfe_u32 s5, s2, 0x10002
    s_cmp_eq_u32 s40, 4
    s_cbranch_scc1 L_helper
    s_mov_b32 s27, 0x20000
    s_mov_b32 s26, 0x800000
    s_movk_i32 s14, 2048
    s_mov_b32 s15, s27
    s_lshr_b32 s44, s2, 6
    s_lshl2_add_u32 s44, s44, s40
    s_and_b32 s45, s2, 3
    s_lshl4_add_u32 s45, s44, s45
    s_lshl_b32 s45, s45, 6
    s_and_b32 s60, s2, 56
    s_add_u32 s45, s45, s60
    s_lshl_b32 s45, s45, 5
    s_lshl_b32 s44, s44, 3
    s_waitcnt lgkmcnt(0)
    """)
    qsteps = [64 * 8192] * 15
    if o["qmap"]:
        order, cbits, sbits = o["qmap"]
        rb = {nm: i for i, nm in enumerate(order.split())}
        e("s_mov_b32 s44, 0\nv_mov_b32 v4, 0\nv_lshlrev_b32 v5, 4, v3")
        for reg, pre, bits in ((40, "w", (0, 1)), (2, "s", sbits)):
            for i, b in enumerate(bits):
                e("s_bfe_u32 s60, s%d, 0x%x\ns_lshl_b32 s60, s60, %d\ns_add_u32 s44, s44, s60" % (reg, 0x10000 | b, rb["%s%d" % (pre, i)]))
        e("s_lshl_b32 s45, s44, 13\ns_lshl_b32 s44, s44, 1\ns_and_b32 s60, s2, 3\ns_lshl_b32 s60, s60, 11\ns_add_u32 s45, s45, s60")
        for i, b in enumerate(cbits):
            e("s_bfe_u32 s60, s2, 0x%x\ns_lshl_b32 s60, s60, %d\ns_add_u32 s45, s45, s60" % (0x10000 | b, 8 + i))
        for i in range(2):
            e("v_bfe_u32 v51, v2, %d, 1\nv_lshl_add_u32 v5, v51, %d, v5\nv_lshl_add_u32 v4, v51, %d, v4" % (i, 13 + rb["g%d" % i], 1 + rb["g%d" % i]))
        for i in range(4):
            e("v_bfe_u32 v51, v3, %d, 1\nv_lshl_add_u32 v4, v51, %d, v4" % (i, 1 + rb["t%d" % i]))
        off = lambda t: sum(8192 << rb["t%d" % i] for i in range(4) if t >> i & 1)
        qsteps = [off(t + 1) - off(t) for t in range(15)]
    kvsteps = [131072] * 7
    stamp("entry")

    def xload():
        if o["x16"]:
            e("s_mov_b64 exec, 0xffff")
            s = p.vm("buffer_load_dwordx2 v[50:51], v4, s[12:15], s44 offen")
            e("s_mov_b64 exec, -1")
            return s
        return p.vm("buffer_load_ushort v4, v4, s[12:15], s44 offen")

    stream = []
    for t in range(16):
        def f(t=t):
            s = p.vm("buffer_load_dwordx4 %s, v5, s[24:27], s45 offen %s" % (vr(DATA + 4 * t), o["ntq"]))
            if t < 15:
                e("s_add_u32 s45, s45, %d" % qsteps[t] if qsteps[t] >= 0 else "s_sub_u32 s45, s45, %d" % -qsteps[t])
            return s
        stream.append(f)
    for jj in range(8):
        def f(jj=jj):
            e("s_mov_b32 m0, s58")
            if jj < 7:
                e("s_add_u32 s58, s58, 4096")
            s = p.vm("buffer_load_dwordx4 v%d, s[16:19], s46 offen %s lds" % (22 + (jj & 3), o["ntk"]))
            if jj < 7:
                e("s_add_u32 s46, s46, %d" % (kvsteps[jj] & 0xffffffff))
            return s
        stream.append(f)
    for jj in range(8):
        def f(jj=jj):
            s = p.vm("buffer_load_dwordx4 %s, v26, s[20:23], s47 offen %s" % (vr(VRAW + 4 * jj), o["ntv"]))
            if jj < 7:
                e("s_add_u32 s47, s47, %d" % (kvsteps[jj] & 0xffffffff))
            return s
        stream.append(f)
    for t in range(6 if hyb else 8):
        for c2 in range(2):
            def f(t=t, c2=c2):
                s = p.vm("buffer_load_dwordx4 %s, v27, s[28:31], s48 offen offset:%d %s" % (
                    vr(DATA + 8 * t + 4 * c2), 256 * c2, o["nto"]))
                if c2 == 1 and t < 7:
                    e("s_add_u32 s48, s48, %d" % (8192 if t % 2 == 0 else 57344))
                return s
            stream.append(f)
    if hyb:
        for u in range(4):
            def f(u=u):
                s = p.vm("buffer_load_dwordx4 %s, v24, s[28:31], s67 offen nt" % vr(DATA + 48 + 4 * u))
                if u < 3:
                    e("s_add_u32 s67, s67, 16384")
                return s
            stream.append(f)
    seq = []
    done = [0]
    actions = {}

    def issue(k=1):
        for _ in range(k):
            if len(seq) < len(stream):
                seq.append(stream[len(seq)]())

    def arrive(idx):
        if idx < done[0]:
            return
        assert idx < len(seq)
        p.wait_vm(seq[idx])
        while done[0] <= idx:
            a = actions.get(done[0])
            if a:
                a()
            done[0] += 1

    def win(idx):
        return o["Wq"] if idx < 16 else o["Wk"] if idx < 24 else o["Wv"] if idx < 32 else W

    throttle = [False]
    thr_n = [0]

    def extra_wait():
        k = len(seq) - win(len(seq)) + o["thr"]
        if throttle[0] and o["thr"] and done[0] <= k < len(seq):
            thr_n[0] += 1
            e("s_cmp_eq_u32 s67, 0\ns_cbranch_scc1 L_thr%d" % thr_n[0])
            p.wait_vm(seq[k])
            e("L_thr%d:" % thr_n[0])

    def pace(upto):
        upto = min(upto, len(stream))
        while len(seq) < upto:
            if len(seq) - win(len(seq)) >= done[0]:
                arrive(len(seq) - win(len(seq)))
            extra_wait()
            issue(1)

    def sprinkle(k):
        for _ in range(k):
            if o["thrspr"] and len(seq) < len(stream):
                extra_wait()
            issue(1)

    def top_up():
        while len(seq) < len(stream) and len(seq) - win(len(seq)) < done[0]:
            issue(1)

    issue(o["xpos"])
    xop = xload()
    issue(win(0) - o["xpos"])
    e("""
    s_lshl_b32 s7, s5, 8
    s_load_dword s43, s[36:37], s7
    s_load_dwordx2 s[16:17], s[8:9], 8
    s_load_dwordx2 s[20:21], s[8:9], 16
    s_load_dwordx2 s[28:29], s[8:9], 32
    s_load_dwordx2 s[32:33], s[0:1], 80
    """)
    stamp("issued")

    chunks = []
    c = """
    v_and_b32 v50, 1, v3
    v_lshlrev_b32 v50, 4, v50
    v_mov_b32 v51, 0xffff
    v_lshlrev_b32 v50, v50, v51
    v_lshrrev_b32 v51, 1, v3
    """
    for d in range(4):
        c += "v_cmp_eq_u32 s[%d:%d], %d, v51\n" % (50 + 2 * d, 51 + 2 * d, d)
    c += """
    v_and_b32 v1, 63, v0
    s_and_b32 s3, s2, 7
    """
    for d in range(4):
        c += "v_cndmask_b32 v%d, 0, v50, s[%d:%d]\n" % (MASK + d, 50 + 2 * d, 51 + 2 * d)
    c += """
    s_lshr_b32 s4, s2, 3
    s_and_b32 s6, s2, 3
    s_mov_b32 s38, %d
    s_mov_b32 s39, 0x20000
    s_movk_i32 s42, %d
    s_mov_b32 s59, %d
    """ % (WS_BYTES, TAGMASK, o["retry"])
    if o["thr"]:
        assert not hyb
        c += "s_mov_b32 s67, 0\n"
    chunks.append(c)
    chunks.append("""
    ; keys of a wave: 61440 + 512*jj + 128*wave + 4*j + g; K rows go to LDS with their 16-byte chunks xor-swizzled
    s_mov_b32 s18, 0x4000000
    s_mov_b32 s19, 0x20000
    s_mov_b32 s22, 0x4000000
    s_mov_b32 s23, 0x20000
    s_lshl_b32 s46, s6, 24
    s_lshl_b32 s61, s4, 10
    s_add_u32 s46, s46, s61
    s_lshl_b32 s61, s40, 15
    s_add_u32 s46, s46, s61
    s_add_u32 s46, s46, %d
    s_mov_b32 s47, s46
    s_lshl_b32 s58, s40, 10
    v_lshlrev_b32 v26, 4, v1
    v_lshlrev_b32 v50, 2, v2
    v_xor_b32 v50, v50, v3
    v_lshlrev_b32 v50, 4, v50
    v_lshl_add_u32 v22, v2, 8, v50
    v_xor_b32 v23, 16, v22
    v_xor_b32 v24, 32, v22
    v_xor_b32 v25, 48, v22
    v_and_b32 v50, 3, v3
    v_lshlrev_b32 v50, 4, v50
    v_lshrrev_b32 v51, 2, v3
    v_add_u32 v50, v50, v51
    v_lshlrev_b32 v50, 8, v50
    v_add_u32 v50, s58, v50
    v_xor_b32 v51, v2, v3
    v_lshl_add_u32 v28, v51, 4, v50
    v_xor_b32 v29, 64, v28
    v_xor_b32 v30, 0x80, v28
    v_xor_b32 v31, 0xc0, v28
    """ % (61440 * 256))
    if o["kvmap"]:
        kb = {nm: i for i, nm in enumerate(o["kvmap"].split())}
        assert kb["g0"] == 0 and kb["g1"] == 1
        c = "s_lshl_b32 s46, s6, 24\ns_add_u32 s46, s46, %d\n" % (61440 * 256)
        for reg, pre, n in ((40, "w", 2), (4, "j", 5)):
            for i in range(n):
                c += "s_bfe_u32 s61, s%d, 0x%x\ns_lshl_b32 s61, s61, %d\ns_add_u32 s46, s46, s61\n" % (reg, 0x10000 | i, 8 + kb["%s%d" % (pre, i)])
        c += "s_mov_b32 s47, s46\n"
        chunks[1] += c
        offk = lambda t: sum(256 << kb["t%d" % i] for i in range(3) if t >> i & 1)
        kvsteps[:] = [offk(t + 1) - offk(t) for t in range(7)]
    c = """
    ; LDS addresses of the two cross-wave sums, hand-off slots of the q partials
    v_lshl_add_u32 v62, v3, 1, v2
    v_lshlrev_b32 v62, 4, v62
    s_lshl_b32 s60, s40, 10
    s_add_u32 s60, s60, %d
    v_add_u32 v44, s60, v62
    s_lshl_b32 s60, s40, 9
    s_add_u32 s60, s60, %d
    v_add_u32 v62, s60, v62
    s_lshl_b32 s60, s40, 7
    s_add_u32 s60, s60, %d
    v_add_u32 v63, s60, v26
    s_lshl_b32 s60, s40, 8
    s_add_u32 s60, s60, %d
    v_add_u32 v61, s60, v26
    """ % (OUTRED, QRED, QRED, OUTRED)
    sh = 0 if not e1bf else 1
    c += """
    s_lshl_b32 s50, s3, %d
    s_add_u32 s50, s50, %d
    s_and_b32 s60, s4, 7
    s_lshl_b32 s60, s60, %d
    s_add_u32 s49, s50, s60
    s_lshr_b32 s60, s4, 3
    s_lshl2_add_u32 s60, s60, s40
    s_lshl_b32 s60, s60, %d
    s_add_u32 s49, s49, s60
    s_lshl_b32 s60, s40, %d
    s_add_u32 s50, s50, s60
    """ % (14 - sh, E1, 11 - sh, 7 - sh, 12 - sh)
    if e1bf:
        c += "v_lshlrev_b32 v33, 3, v1\n"
    if o["qmap"]:
        order, cbits, sbits = o["qmap"]
        c += "s_lshl_b32 s49, s3, 14\ns_add_u32 s49, s49, %d\ns_lshl_b32 s60, s40, 7\ns_add_u32 s49, s49, s60\n" % E1
        for i, b in enumerate(cbits):
            c += "s_bfe_u32 s60, s2, 0x%x\ns_lshl_b32 s60, s60, %d\ns_add_u32 s49, s49, s60\n" % (0x10000 | b, 11 + i)
        for i, b in enumerate(sbits):
            c += "s_bfe_u32 s60, s2, 0x%x\ns_lshl_b32 s60, s60, %d\ns_add_u32 s49, s49, s60\n" % (0x10000 | b, 9 + i)
    chunks.append(c)
    c = """
    v_lshrrev_b32 v52, 5, v1
    v_and_b32 v53, 31, v1
    v_lshlrev_b32 v54, 4, v53
    s_lshl_b32 s60, s40, 1
    v_add_u32 v55, s60, v52
    v_and_b32 v56, 7, v3
    """
    if e1bf:
        c += """
        v_lshrrev_b32 v57, 4, v53
        v_add_u32 v58, s60, v57
        v_mul_u32_u24 v34, 288, v58
        v_lshl_add_u32 v34, v3, 4, v34
        v_lshl_add_u32 v34, v52, 3, v34
        v_add_u32 v34, %d, v34
        v_lshlrev_b32 v45, 4, v3
        v_lshl_add_u32 v45, v57, 10, v45
        v_lshl_add_u32 v45, v52, 9, v45
        """ % QB
    else:
        c += """
        v_lshl_add_u32 v45, v52, 11, v54
        v_mul_u32_u24 v34, 288, v55
        v_lshl_add_u32 v34, v53, 3, v34
        v_add_u32 v34, %d, v34
        """ % QB
    c += """
    v_mul_u32_u24 v35, 288, v56
    v_lshl_add_u32 v35, v2, 4, v35
    v_add_u32 v35, %d, v35
    v_mul_u32_u24 v37, 528, v55
    v_add_u32 v37, v37, v54
    v_add_u32 v37, %d, v37
    v_lshlrev_b32 v39, %d, v55
    v_add_u32 v39, %d, v39
    v_lshlrev_b32 v40, 3, v53
    v_lshl_add_u32 v40, v52, 13, v40
    v_lshlrev_b32 v41, 8, v52
    """ % (QB, ORED, 4 if maxfirst else 5, MLR)
    chunks.append(c)
    chunks.append("""
    v_mul_u32_u24 v36, 528, v56
    v_lshl_add_u32 v36, v2, 5, v36
    v_lshrrev_b32 v57, 3, v3
    v_lshl_add_u32 v36, v57, 4, v36
    s_mul_i32 s60, s40, 4224
    s_add_u32 s60, s60, %d
    v_add_u32 v36, s60, v36
    s_lshl_b32 s60, s40, %d
    s_add_u32 s60, s60, %d
    v_lshlrev_b32 v38, %d, v56
    v_add_u32 v38, s60, v38
    v_lshrrev_b32 v59, 2, v1
    v_and_b32 v50, 3, v1
    v_lshlrev_b32 v42, 4, v50
    v_lshl_add_u32 v42, v59, 8, v42
    v_lshlrev_b32 v43, 4, v59
    v_and_b32 v58, 1, v1
    v_lshrrev_b32 v48, 1, v1
    v_lshlrev_b32 v48, 10, v48
    v_lshl_add_u32 v48, v58, 4, v48
    v_lshl_add_u32 v46, v3, 2, v2
    v_lshlrev_b32 v46, 1, v46
    """ % (ORED, 2 if maxfirst else 3, MLR, 4 if maxfirst else 5) + ("""
    v_lshlrev_b32 v49, 4, v56
    v_add_u32 v49, %d, v49
    """ % MLR if maxfirst else ""))
    chunks.append("""
    ; wo tile: rows 1024*kvh + 128*(j>>2) + wave + 4*(t&1) + 8*g + 32*(t>>1), columns 256*(j&3) .. +255
    s_mov_b32 s30, 0x800000
    s_mov_b32 s31, 0x20000
    s_movk_i32 s34, 4096
    s_mov_b32 s35, 0x20000
    s_lshl_b32 s48, s6, 21
    s_lshr_b32 s61, s4, 2
    s_lshl_b32 s61, s61, 18
    s_add_u32 s48, s48, s61
    s_and_b32 s61, s4, 3
    s_lshl_b32 s61, s61, 9
    s_add_u32 s48, s48, s61
    s_lshl_b32 s61, s40, 11
    s_add_u32 s48, s48, s61
    v_lshlrev_b32 v27, 4, v3
    v_lshl_add_u32 v27, v2, 14, v27
    """ + ("""
    s_sub_u32 s67, s48, s61
    s_lshl_b32 s61, s40, 7
    s_add_u32 s67, s67, s61
    s_add_u32 s67, s67, %d
    """ % (96 * 2048) if hyb else ""))
    chunks.append("""
    ; hand-off slots of the o partials and of their (max, sum) pairs
    s_lshl_b32 s51, s3, 16
    s_lshl_b32 s60, s40, 14
    s_add_u32 s51, s51, s60
    s_lshl_b32 s60, s4, 8
    s_add_u32 s51, s51, s60
    s_add_u32 s51, s51, %d
    s_lshl_b32 s52, s3, 11
    s_lshl_b32 s60, s40, 9
    s_add_u32 s52, s52, s60
    s_and_b32 s60, s4, 15
    s_lshl4_add_u32 s52, s60, s52
    s_lshr_b32 s60, s4, 4
    s_lshl3_add_u32 s52, s60, s52
    s_add_u32 s52, s52, %d
    s_lshr_b32 s61, s4, 2
    s_lshl3_add_u32 s61, s3, s61
    s_lshl_b32 s53, s61, 13
    s_lshl_b32 s60, s40, 6
    s_add_u32 s53, s53, s60
    s_add_u32 s53, s53, %d
    s_add_u32 s66, s53, 4096
    s_lshl_b32 s54, s61, 8
    s_add_u32 s54, s54, %d
    """ % (E2O, ML, E2O, ML))
    c = """
    """
    if o["inbox"]:
        c += """
        s_and_b32 s60, s4, 3
        s_lshl2_add_u32 s55, s5, s60
        s_lshl_b32 s55, s55, 15
        s_lshr_b32 s60, s4, 2
        s_lshl3_add_u32 s60, s6, s60
        s_lshl_b32 s60, s60, 5
        s_add_u32 s55, s55, s60
        s_lshl_b32 s60, s40, 13
        s_add_u32 s55, s55, s60
        s_add_u32 s55, s55, %d
        s_lshl_b32 s56, s3, 15
        s_lshl_b32 s60, s4, 10
        s_add_u32 s56, s56, s60
        s_add_u32 s56, s56, %d
        v_mov_b32 v49, v48
        v_mov_b32 v48, v26
        """ % (E3, E3)
    else:
        c += """
        s_and_b32 s60, s4, 3
        s_lshl2_add_u32 s55, s5, s60
        s_lshl_b32 s55, s55, 5
        s_lshl3_add_u32 s55, s6, s55
        s_lshr_b32 s60, s4, 2
        s_add_u32 s55, s55, s60
        s_lshl2_add_u32 s55, s55, s40
        s_lshl_b32 s55, s55, 8
        s_add_u32 s55, s55, %d
        s_lshl_b32 s56, s3, 15
        s_lshl_b32 s60, s4, 5
        s_add_u32 s56, s56, s60
        s_add_u32 s56, s56, %d
        """ % (E3, E3)
    c += """
    s_lshl_b32 s57, s3, 9
    s_lshl4_add_u32 s57, s4, s57
    s_mov_b32 s62, 0x05040100
    s_mov_b32 s63, 0x07060302
    s_mov_b32 s64, 0x00ff00ff
    s_mov_b32 s65, 0x00ff00ff
    """
    if o["dump"]:
        c += "v_lshlrev_b32 v60, 6, v0\ns_lshl_b32 s60, s2, 14\nv_add_u32 v60, s60, v60\n"
    chunks.append(c)
    chunks.append("""
    s_waitcnt lgkmcnt(0)
    s_add_u32 s43, s43, 1
    s_and_b32 s41, s43, s42
    v_mov_b32 v32, s41
    v_mov_b32 v47, 0x3f803f80
    """)

    if o["x16"]:
        for i in range(o["early_chunks"]):
            chunks[i] = chunks[i].replace("v50", "v56").replace("v51", "v57")

    def chunk():
        if chunks:
            e(chunks.pop(0))

    for _ in range(o["early_chunks"]):
        chunk()
    if o["x16"]:
        e("""
        v_and_b32 v54, 1, v2
        v_mul_u32_u24 v54, 0x0202, v54
        v_mul_u32_u24 v54, 0x1001, v54
        """.replace("v_mul_u32_u24 v54, 0x1001, v54", "v_lshl_or_b32 v54, v54, 16, v54\nv_add_u32 v54, 0x01000100, v54\nv_lshrrev_b32 v55, 1, v2\nv_mul_u32_u24 v55, 0x0404, v55\nv_lshl_or_b32 v55, v55, 16, v55\nv_add_u32 v54, v54, v55"))
    p.wait_vm(xop)
    if o["x16"]:
        e("""
        v_mov_b32 v52, v50
        v_mov_b32 v53, v51
        v_permlane16_swap_b32 v50, v52
        v_permlane16_swap_b32 v51, v53
        v_mov_b32 v52, v50
        v_mov_b32 v53, v51
        v_permlane32_swap_b32 v50, v52
        v_permlane32_swap_b32 v51, v53
        v_perm_b32 v4, v51, v50, v54
        """)
    else:
        e("v_lshl_or_b32 v4, v4, 16, v4")

    def build_a(dst, src, t):
        for d in range(4):
            e("v_and_b32_dpp v%d, v%d, v%d row_newbcast:%d row_mask:0xf bank_mask:0xf" % (dst + d, src, MASK + d, t))

    note("""q projection: a tile holds 4 rows x 128 columns; with a one-hot A operand carrying x[row] the MFMA
    gives D[e][n] += sum_g x[row g] * W[row g][8n + e]""")
    for t in range(16):
        build_a(AB[t & 1], 4, t)
        arrive(t)
        if t in (0, 4, 8, 12):
            stamp("wq%d" % t, 1)
        if o["issfirst"]:
            top_up()
        e("v_mfma_f32_16x16x32_bf16 %s, %s, %s, %s" % (
            vr(QACC), vr(AB[t & 1]), vr(DATA + 4 * t), "0" if t == 0 else vr(QACC)))
        top_up()
        if t >= o["ct0"]:
            chunk()
    assert not chunks
    stamp("qdone")
    e("v_mov_b32 v53, %d" % MODE)
    e("s_mov_b32 exec_hi, 0")
    e("ds_write_b128 v62, %s" % vr(QACC))
    e("s_mov_b64 exec, 0xff")
    e("s_waitcnt lgkmcnt(0)")
    stamp("preB1", 1)
    e("s_barrier")
    stamp("B1", 1)
    e("ds_read_b32 v52, v53")
    for w2 in range(4):
        e("ds_read_b128 %s, v63 offset:%d" % (vr(G1R + 4 * w2), 512 * w2))
    e("s_waitcnt lgkmcnt(0)")
    e("v_readfirstlane_b32 s69, v52")

    def sum4(R):
        for r in (0, 2):
            e("v_pk_add_f32 %s, %s, %s" % (vr(R + r, 2), vr(R + r, 2), vr(R + 4 + r, 2)))
            e("v_pk_add_f32 %s, %s, %s" % (vr(R + 8 + r, 2), vr(R + 8 + r, 2), vr(R + 12 + r, 2)))
        for r in (0, 2):
            e("v_pk_add_f32 %s, %s, %s" % (vr(R + r, 2), vr(R + r, 2), vr(R + 8 + r, 2)))

    def tag4(R):
        for r in range(4):
            e("v_bfi_b32 v%d, s42, v32, v%d" % (R + r, R + r))

    def pack4(R):
        e("v_cvt_pk_bf16_f32 v%d, v%d, v%d" % (R, R, R + 1))
        e("v_cvt_pk_bf16_f32 v%d, v%d, v%d" % (R + 1, R + 2, R + 3))
        e("v_min_u32 v%d, -2, v%d" % (R, R))
        e("v_min_u32 v%d, -2, v%d" % (R + 1, R + 1))

    sum4(G1R)
    if e1bf:
        pack4(G1R)
        handoff_stores(["buffer_store_dwordx2 %s, v33, s[36:39], s49 offen" % vr(G1R, 2)])
    else:
        tag4(G1R)
        handoff_stores(["buffer_store_dwordx4 %s, v26, s[36:39], s49 offen" % vr(G1R)])
    e("s_mov_b64 exec, -1")
    if o["otouch"] == 1:
        e("s_mov_b64 exec, 1")
        p.vm("buffer_load_ushort v49, v46, s[32:35], s57 offen nt")
        e("s_mov_b64 exec, -1")
    stamp("E1pub")
    PLO, PHI, ONES = AB[0], AB[1], QACC
    for r in range(4):
        e("v_mov_b32 v%d, v47" % (ONES + r))
    for r in range(8):
        e("v_mov_b32 v%d, 0" % (PLO + r))

    def k_read():
        note("K operands of the two 16-key tiles")
        for T in range(2):
            for s in range(4):
                e("ds_read_b128 %s, v%d offset:%d" % (vr(KOP + 16 * T + 4 * s), 28 + s, 16384 * T))
    actions[23] = k_read

    def v_perm(d):
        def f():
            note("V^T operands: pair element e of two consecutive key rows")
            for ee in range(8):
                e("v_perm_b32 v%d, v%d, v%d, s%d" % (
                    VT + 4 * ee + d, VRAW + 4 * (2 * d + 1) + (ee >> 1), VRAW + 4 * (2 * d) + (ee >> 1), 62 + (ee & 1)))
        return f
    for d in range(4):
        actions[24 + 2 * d + 1] = v_perm(d)

    def ortree(regs, tmp):
        regs = list(regs)
        e("v_or3_b32 v%d, v%d, v%d, v%d" % (tmp, regs[0], regs[1], regs[2]))
        regs = regs[3:]
        while len(regs) >= 2:
            e("v_or3_b32 v%d, v%d, v%d, v%d" % (tmp, tmp, regs[0], regs[1]))
            regs = regs[2:]
        if regs:
            e("v_or_b32 v%d, v%d, v%d" % (tmp, tmp, regs[0]))
        e("v_and_b32 v%d, s42, v%d" % (tmp, tmp))
        e("v_cmp_ne_u32 vcc, 0, v%d" % tmp)

    def gather1():
        s = None
        for u in range(2 if e1bf else 4):
            s = p.vm("buffer_load_dwordx4 %s, v45, s[36:39], s50 offen offset:%d sc1" % (
                vr(G1R + 4 * u), (256 if e1bf else 512) * u))
        return s

    pace(24 + o["G1"])
    g1 = gather1()
    stamp("g1iss")
    pace(len(seq) + o["B1"])
    arrive(23)
    SEL = [28, 29, 30, 31, 62, 63, 0, 33]
    if hyb:
        assert not e1bf and not o["dump"]
        e("""
        v_lshrrev_b32 v52, 3, v1
        v_and_b32 v53, 7, v1
        v_lshlrev_b32 v24, 4, v53
        v_lshl_add_u32 v24, v52, 11, v24
        v_lshlrev_b32 v22, 3, v52
        v_add_u32 v22, %d, v22
        v_lshl_add_u32 v25, v3, 1, v2
        v_lshlrev_b32 v25, 4, v25
        s_lshl_b32 s61, s40, 8
        s_add_u32 s61, s61, %d
        v_add_u32 v61, s61, v25
        s_lshl_b32 s61, s40, 3
        s_add_u32 s61, s61, %d
        v_lshlrev_b32 v23, 1, v2
        v_add_u32 v23, s61, v23
        v_and_b32 v52, 7, v3
        v_lshrrev_b32 v53, 1, v52
        v_and_b32 v52, 1, v3
        v_cmp_eq_u32 vcc, 1, v52
        v_mov_b32 v54, 0x0c0c0100
        v_mov_b32 v55, 0x01000c0c
        v_cndmask_b32 v54, v54, v55, vcc
        v_mov_b32 v52, 0x0c0c0302
        v_mov_b32 v55, 0x03020c0c
        v_cndmask_b32 v55, v52, v55, vcc
        v_mov_b32 v52, 0x0c0c0c0c
        """ % (OB, OUTRED, OB))
        for d in range(4):
            e("v_cmp_eq_u32 vcc, %d, v53" % d)
            e("v_cndmask_b32 v%d, v52, v54, vcc" % SEL[2 * d])
            e("v_cndmask_b32 v%d, v52, v55, vcc" % SEL[2 * d + 1])
    p.wait_vm(g1)
    e("L_chk1:")
    stamp("g1arr")
    if e1bf:
        T8 = G1R + 8
        for i in range(4):
            e("v_perm_b32 v%d, v%d, v%d, s62" % (T8 + 2 * i, G1R + 4 + i, G1R + i))
            e("v_perm_b32 v%d, v%d, v%d, s63" % (T8 + 2 * i + 1, G1R + 4 + i, G1R + i))
        for i in range(8):
            e("v_dot2_f32_bf16 v%d, v%d, v47, 0" % (T8 + i, T8 + i))
        e("v_max3_u32 v54, v%d, v%d, v%d" % (G1R, G1R + 1, G1R + 2))
        e("v_max3_u32 v55, v%d, v%d, v%d" % (G1R + 3, G1R + 4, G1R + 5))
        for i in range(4):
            e("v_permlane32_swap_b32 v%d, v%d" % (T8 + i, T8 + 4 + i))
        e("v_max3_u32 v54, v54, v%d, v%d" % (G1R + 6, G1R + 7))
        e("v_pk_add_f32 %s, %s, %s" % (vr(50, 2), vr(T8, 2), vr(T8 + 4, 2)))
        e("v_pk_add_f32 %s, %s, %s" % (vr(52, 2), vr(T8 + 2, 2), vr(T8 + 6, 2)))
        e("v_max_u32 v54, v54, v55")
        e("v_cvt_pk_bf16_f32 v50, v50, v51")
        e("v_cvt_pk_bf16_f32 v51, v52, v53")
        e("v_cmp_eq_u32 vcc, -1, v54")
        e("ds_write_b64 v34, v[50:51]")
    else:
        for r in range(16):
            e("v_xor_b32 v%d, s41, v%d" % (G1R + r, G1R + r))
        for r in (0, 2):
            e("v_pk_add_f32 %s, %s, %s" % (vr(50 + r, 2), vr(G1R + r, 2), vr(G1R + 4 + r, 2)))
            e("v_pk_add_f32 %s, %s, %s" % (vr(54 + r, 2), vr(G1R + 8 + r, 2), vr(G1R + 12 + r, 2)))
        for r in (0, 2):
            e("v_pk_add_f32 %s, %s, %s" % (vr(50 + r, 2), vr(50 + r, 2), vr(54 + r, 2)))
        e("v_cvt_pk_bf16_f32 v50, v50, v51")
        e("v_cvt_pk_bf16_f32 v51, v52, v53")
        e("ds_write_b64 v34, v[50:51]")
        ortree(range(G1R, G1R + 16), 54)
    e("s_cbranch_vccz L_ok1")
    retry_code("L_retry1", "L_chk1", gather1)
    e("L_ok1:")
    throttle[0] = True
    if o["vstep"] and o["G1"]:
        arrive(24 + o["G1"] - 1)
    e("s_waitcnt lgkmcnt(0)")
    stamp("preB2", 1)
    e("s_barrier")
    stamp("B2", 1)
    for s4 in range(4):
        e("ds_read_b128 %s, v35 offset:%d" % (vr(QOP + 4 * s4), 64 * s4))
    spr = list(o["spr"])
    sprinkle(spr[0])
    S = G1R
    for s4 in range(4):
        e("s_waitcnt lgkmcnt(%d)" % (0 if o["stamps"] or o["dump"] else 3 - s4))
        if s4 == 0:
            stamp("qop", 1)
            dump(QOP, 16, 0)
        for T in range(2):
            e("v_mfma_f32_16x16x32_bf16 %s, %s, %s, %s" % (
                vr(S + 4 * T), vr(KOP + 16 * T + 4 * s4), vr(QOP + 4 * s4), "0" if s4 == 0 else vr(S + 4 * T)))
    sprinkle(spr[1])
    C = SCALE * LOG2E
    if o["mimic"]:
        e("s_mov_b32 s60, 0x%x" % f32bits(SCALE))
        for rnd in range(2):
            for d in range(4):
                e("v_cvt_pk_bf16_f32 v%d, v%d, v%d" % (50 + d, S + 2 * d, S + 2 * d + 1))
            for d in range(4):
                e("v_lshlrev_b32 v%d, 16, v%d" % (S + 2 * d, 50 + d))
                e("v_and_b32 v%d, 0xffff0000, v%d" % (S + 2 * d + 1, 50 + d))
            if rnd == 0:
                for r in range(8):
                    e("v_mul_f32 v%d, s60, v%d" % (S + r, S + r))
        C = LOG2E
    dump(S, 8, 1)
    e("s_mov_b32 s60, 0x%x" % f32bits(C))
    e("v_max3_f32 v50, v%d, v%d, v%d" % (S, S + 1, S + 2))
    e("v_max3_f32 v51, v%d, v%d, v%d" % (S + 4, S + 5, S + 6))
    e("v_max3_f32 v50, v50, v%d, v%d" % (S + 3, S + 7))
    e("v_max_f32 v50, v50, v51")
    e("v_mov_b32 v51, v50")
    e("v_permlane16_swap_b32 v50, v51")
    e("v_max_f32 v50, v50, v51")
    e("v_mov_b32 v51, v50")
    e("v_permlane32_swap_b32 v50, v51")
    e("v_max_f32 v50, v50, v51")
    if maxfirst:
        note("exchange the row maxima between the waves")
        e("s_mov_b64 exec, 0xff")
        e("ds_write_b32 v38, v50")
        e("s_mov_b64 exec, -1")
        e("s_waitcnt lgkmcnt(0)")
        e("s_barrier")
        e("ds_read_b128 v[52:55], v49")
        e("ds_read_b128 v[56:59], v39")
        e("s_waitcnt lgkmcnt(%d)" % (0 if o["stamps"] else 1))
        e("v_max3_f32 v50, v52, v53, v54")
        e("v_max_f32 v50, v50, v55")
        e("v_mul_f32 v50, s60, v50")
        e("v_bfi_b32 v50, s42, 0, v50")
    else:
        e("v_mul_f32 v50, s60, v50")
    for r in range(8):
        e("v_fma_f32 v%d, v%d, s60, -v50" % (S + r, S + r))
    for r in range(8):
        e("v_exp_f32 v%d, v%d" % (S + r, S + r))
    e("s_mov_b64 exec, s[64:65]")
    for d in range(4):
        e("v_cvt_pk_bf16_f32 v%d, v%d, v%d" % (PLO + d, S + 2 * d, S + 2 * d + 1))
    e("s_not_b64 exec, s[64:65]")
    for d in range(4):
        e("v_cvt_pk_bf16_f32 v%d, v%d, v%d" % (PHI + d, S + 2 * d, S + 2 * d + 1))
    e("s_mov_b64 exec, -1")
    OA = VRAW
    LA = KOP
    e("v_mfma_f32_16x16x32_bf16 %s, %s, %s, 0" % (vr(LA), vr(ONES), vr(PLO)))
    e("v_mfma_f32_16x16x32_bf16 %s, %s, %s, %s" % (vr(LA), vr(ONES), vr(PHI), vr(LA)))
    stamp("smax")
    sprinkle(spr[2])
    if maxfirst:
        e("s_waitcnt lgkmcnt(0)")
        e("v_max3_f32 v56, v56, v57, v58")
        e("v_max_f32 v56, v56, v59")
        e("v_mul_f32 v56, s60, v56")
        e("v_bfi_b32 v56, s42, v32, v56")
        e("s_mov_b64 exec, 0xff")
        e("ds_write_b32 v38, v%d offset:128" % LA)
    else:
        e("s_mov_b64 exec, 0xff")
        e("ds_write2_b32 v38, v50, v%d offset0:0 offset1:1" % LA)
    e("s_mov_b64 exec, -1")
    pace(32)
    if o["vstep"]:
        arrive(27)
        arrive(29)
    arrive(31)
    stamp("varr", 1)
    for ep in range(4):
        e("v_mfma_f32_16x16x32_bf16 %s, %s, %s, 0" % (vr(OA + 4 * ep), vr(VT + 4 * ep), vr(PLO)))
    for ep in range(4):
        e("v_mfma_f32_16x16x32_bf16 %s, %s, %s, %s" % (vr(OA + 4 * ep), vr(VT + 4 * (ep + 4)), vr(PHI), vr(OA + 4 * ep)))
        if ep == 0:
            sprinkle(spr[3])
    for ep in range(4):
        e("ds_write_b128 v36, %s offset:%d" % (vr(OA + 4 * ep), 128 * ep))
    dump(OA, 16, 2)
    e("s_waitcnt lgkmcnt(0)")
    stamp("preB3", 1)
    e("s_barrier")
    stamp("B3", 1)
    R = VT
    if maxfirst:
        for w2 in range(4):
            e("ds_read_b128 %s, v37 offset:%d" % (vr(R + 4 * w2), 4224 * w2))
        e("ds_read_b128 %s, v39 offset:128" % vr(R + 16))
        sprinkle(spr[4])
        e("s_waitcnt lgkmcnt(1)" if not o["stamps"] else "s_waitcnt lgkmcnt(0)")
        sum4(R)
        e("s_waitcnt lgkmcnt(0)")
        e("v_pk_add_f32 %s, %s, %s" % (vr(R + 16, 2), vr(R + 16, 2), vr(R + 18, 2)))
        e("v_add_f32 v57, v%d, v%d" % (R + 16, R + 17))
    else:
        e("ds_read_b128 %s, v39" % vr(R + 16))
        e("ds_read_b128 %s, v39 offset:16" % vr(R + 20))
        for w2 in range(4):
            e("ds_read_b128 %s, v37 offset:%d" % (vr(R + 4 * w2), 4224 * w2))
        sprinkle(spr[4])
        e("s_waitcnt lgkmcnt(4)" if not o["stamps"] else "s_waitcnt lgkmcnt(0)")
        e("v_max3_f32 v56, v%d, v%d, v%d" % (R + 16, R + 18, R + 20))
        e("v_max_f32 v56, v56, v%d" % (R + 22))
        e("v_bfi_b32 v56, s42, 0, v56")
        for w2 in range(4):
            e("v_sub_f32 v%d, v%d, v56" % (52 + w2, R + 16 + 2 * w2))
        for w2 in range(4):
            e("v_exp_f32 v%d, v%d" % (52 + w2, 52 + w2))
        e("v_or_b32 v56, s41, v56")
        e("v_mul_f32 v57, v52, v%d" % (R + 17))
        for w2 in range(1, 4):
            e("v_fmac_f32 v57, v%d, v%d" % (52 + w2, R + 17 + 2 * w2))
        e("s_waitcnt lgkmcnt(0)")
        for r in range(4):
            e("v_mul_f32 v%d, v52, v%d" % (R + r, R + r))
        for w2 in range(1, 4):
            for r in range(4):
                e("v_fmac_f32 v%d, v%d, v%d" % (R + r, 52 + w2, R + 4 * w2 + r))
    e("v_bfi_b32 v57, s42, v32, v57")
    pack4(R)
    handoff_stores(["buffer_store_dwordx2 %s, v40, s[36:39], s51 offen" % vr(R, 2),
                    "s_mov_b32 exec_lo, 1", "s_mov_b32 exec_hi, 1",
                    "buffer_store_dwordx2 v[56:57], v41, s[36:39], s52 offen"])
    e("s_mov_b64 exec, -1")
    if o["otouch"] == 2:
        e("s_mov_b64 exec, 1")
        p.vm("buffer_load_ushort v49, v46, s[32:35], s57 offen nt")
        e("s_mov_b64 exec, -1")
    stamp("E2pub")
    sprinkle(spr[5])

    G2R = KOP
    OA_, OB_, M0 = G2R, G2R + 4, G2R + 8

    def gather2():
        p.vm("buffer_load_dwordx4 %s, v43, s[36:39], s54 offen sc1" % vr(M0))
        p.vm("buffer_load_dwordx4 %s, v42, s[36:39], s53 offen sc1" % vr(OA_))
        return p.vm("buffer_load_dwordx4 %s, v42, s[36:39], s66 offen sc1" % vr(OB_))

    pace(32 + o["G2"])
    g2 = gather2()
    stamp("g2iss")
    pace(len(seq) + o["B2"])
    p.wait_vm(g2)
    e("L_chk2:")
    stamp("g2arr")
    for r in range(4):
        e("v_xor_b32 v%d, s41, v%d" % (M0 + r, M0 + r))
    e("v_max_f32 v50, v%d, v%d" % (M0, M0 + 2))
    e("v_max3_u32 v53, v%d, v%d, v%d" % (OA_, OA_ + 1, OA_ + 2))
    e("v_max3_u32 v53, v53, v%d, v%d" % (OA_ + 3, OB_))
    e("v_max_f32_dpp v50, v50, v50 row_ror:4 row_mask:0xf bank_mask:0xf")
    e("v_max3_u32 v53, v53, v%d, v%d" % (OB_ + 1, OB_ + 2))
    e("v_max_u32 v53, v53, v%d" % (OB_ + 3))
    e("v_max_f32_dpp v50, v50, v50 row_ror:8 row_mask:0xf bank_mask:0xf")
    e("v_or3_b32 v52, v%d, v%d, v%d" % (M0, M0 + 1, M0 + 2))
    e("v_mov_b32 v51, v50")
    e("v_or_b32 v52, v52, v%d" % (M0 + 3))
    e("v_and_b32 v52, s42, v52")
    e("v_permlane16_swap_b32 v50, v51")
    e("v_max_f32 v50, v50, v51")
    e("v_mov_b32 v51, v50")
    e("v_cmp_eq_u32 vcc, -1, v53")
    e("v_cmp_ne_u32 s[10:11], 0, v52")
    e("v_permlane32_swap_b32 v50, v51")
    e("v_max_f32 v50, v50, v51")
    A8 = G2R + 12
    e("v_sub_f32 v52, v%d, v50" % M0)
    e("v_sub_f32 v53, v%d, v50" % (M0 + 2))
    e("v_exp_f32 v52, v52")
    e("v_exp_f32 v53, v53")
    e("s_or_b64 vcc, vcc, s[10:11]")
    e("s_cbranch_vccz L_ok2")
    retry_code("L_retry2", "L_chk2", gather2)
    e("L_ok2:")
    e("v_cvt_pk_bf16_f32 v54, v52, v53")
    for i in range(4):
        e("v_perm_b32 v%d, v%d, v%d, s62" % (A8 + 2 * i, OB_ + i, OA_ + i))
        e("v_perm_b32 v%d, v%d, v%d, s63" % (A8 + 2 * i + 1, OB_ + i, OA_ + i))
    e("v_lshlrev_b32 v52, 16, v54")
    e("v_and_b32 v53, 0xffff0000, v54")
    e("v_mul_f32 v51, v52, v%d" % (M0 + 1))
    e("v_fmac_f32 v51, v53, v%d" % (M0 + 3))
    for i in range(8):
        e("v_dot2_f32_bf16 v%d, v%d, v54, 0" % (A8 + i, A8 + i))
    e("v_add_f32_dpp v51, v51, v51 row_ror:4 row_mask:0xf bank_mask:0xf")
    for b in (0, 4):
        e("v_permlane32_swap_b32 v%d, v%d" % (A8 + b, A8 + b + 2))
        e("v_permlane32_swap_b32 v%d, v%d" % (A8 + b + 1, A8 + b + 3))
    e("v_add_f32_dpp v51, v51, v51 row_ror:8 row_mask:0xf bank_mask:0xf")
    for b in (0, 4):
        e("v_add_f32 v%d, v%d, v%d" % (A8 + b, A8 + b, A8 + b + 2))
        e("v_add_f32 v%d, v%d, v%d" % (A8 + b + 1, A8 + b + 1, A8 + b + 3))
    e("v_mov_b32 v50, v51")
    e("v_permlane16_swap_b32 v%d, v%d" % (A8, A8 + 1))
    e("v_permlane16_swap_b32 v%d, v%d" % (A8 + 4, A8 + 5))
    e("v_permlane16_swap_b32 v50, v51")
    e("v_add_f32 v%d, v%d, v%d" % (A8, A8, A8 + 1))
    e("v_add_f32 v%d, v%d, v%d" % (A8 + 4, A8 + 4, A8 + 5))
    e("v_add_f32 v51, v50, v51")
    e("v_add_f32_dpp v%d, v%d, v%d row_ror:4 row_mask:0xf bank_mask:0xf" % (A8, A8, A8))
    e("v_mov_b32 v50, v51")
    e("v_add_f32_dpp v%d, v%d, v%d row_ror:4 row_mask:0xf bank_mask:0xf" % (A8 + 4, A8 + 4, A8 + 4))
    e("v_add_f32_dpp v%d, v%d, v%d row_ror:8 row_mask:0xf bank_mask:0xf" % (A8, A8, A8))
    e("v_permlane32_swap_b32 v50, v51")
    e("v_add_f32 v51, v50, v51")
    e("v_add_f32_dpp v%d, v%d, v%d row_ror:8 row_mask:0xf bank_mask:0xf" % (A8 + 4, A8 + 4, A8 + 4))
    e("v_rcp_f32 v51, v51")
    X = (4, 5)
    e("v_mul_f32 v%d, v%d, v51" % (A8, A8))
    e("v_mul_f32 v%d, v%d, v51" % (A8 + 4, A8 + 4))
    e("v_cvt_pk_bf16_f32 v%d, v%d, v%d" % (X[0], A8, A8))
    e("v_cvt_pk_bf16_f32 v%d, v%d, v%d" % (X[1], A8 + 4, A8 + 4))
    dump(X[0], 1, 3)
    dump(X[1], 1, 4)
    stamp("ordy")
    OUT0, OUT1 = G1R, G1R + 4
    A4 = 56
    if hyb:
        e("s_mov_b32 exec_lo, 0x00080008\ns_mov_b32 exec_hi, 0x00080008")
        e("ds_write_b16 v23, v%d" % X[0])
        e("ds_write_b16 v23, v%d offset:32" % X[1])
        e("s_mov_b64 exec, -1")
        issue(16)
        build_a(AB[0], X[0], 0)
        for t in range(6):
            for c2, acc in ((0, OUT0), (1, OUT1)):
                arrive(32 + 2 * t + c2)
                e("v_mfma_f32_16x16x32_bf16 %s, %s, %s, %s" % (
                    vr(acc), vr(AB[t & 1]), vr(DATA + 8 * t + 4 * c2), "0" if t == 0 else vr(acc)))
                if c2 == 0 and t < 5:
                    build_a(AB[(t + 1) & 1], X[(t + 1) & 1], (t + 1) >> 1)
        for r in range(4):
            e("v_mov_b32 v%d, 0" % (R + r))
        e("s_mov_b32 exec_hi, 0")
        e("ds_write_b128 v44, %s" % vr(OUT0))
        e("ds_write_b128 v44, %s offset:512" % vr(OUT1))
        e("s_mov_b64 exec, -1")
        e("s_waitcnt lgkmcnt(0)")
        stamp("preB4", 1)
        e("s_barrier")
        stamp("B4", 1)
        XD = QOP + 8
        AU = KOP
        e("ds_read_b64 %s, v22" % vr(XD, 2))
        e("s_mov_b32 exec_lo, 0x00ff00ff\ns_mov_b32 exec_hi, 0")
        for w2 in range(4):
            e("ds_read_b128 %s, v61 offset:%d" % (vr(R + 4 * w2), 1024 * w2))
        e("s_mov_b64 exec, -1")
        e("s_waitcnt lgkmcnt(%d)" % (0 if o["stamps"] else 4))
        for u in range(4):
            for d in range(4):
                e("v_perm_b32 v%d, v%d, v%d, v%d" % (AU + 4 * u + d, XD + (u >> 1), XD + (u >> 1), SEL[2 * d + (u & 1)]))
        e("s_mov_b32 exec_lo, 0x00ff00ff\ns_mov_b32 exec_hi, 0")
        e("s_waitcnt lgkmcnt(0)")
        sum4(R)
        e("s_mov_b64 exec, -1")
        for u in range(4):
            arrive(44 + u)
            e("v_mfma_f32_16x16x32_bf16 %s, %s, %s, %s" % (vr(R), vr(AU + 4 * u), vr(DATA + 48 + 4 * u), vr(R)))
        stamp("opdone")
        for r in range(4):
            e("v_permlane32_swap_b32 v%d, v%d" % (R + r, R + 4 + r))
        for r in range(4):
            e("v_add_f32_dpp v%d, v%d, v%d row_ror:8 row_mask:0xf bank_mask:0xf" % (R + r, R + 4 + r, R + r))
        tag4(R)
        e("s_mov_b32 exec_lo, 0x00ff00ff\ns_mov_b32 exec_hi, 0")
        p.vm("buffer_store_dwordx4 %s, v25, s[36:39], s55 offen sc1" % vr(R))
    else:
        issue(16)
        build_a(AB[0], X[0], 0)
        for t in range(8):
            for c2, acc in ((0, OUT0), (1, OUT1)):
                if t == 7 and c2 == 1:
                    e("s_mov_b32 exec_hi, 0")
                    e("ds_write_b128 v44, %s" % vr(OUT0))
                    e("s_mov_b64 exec, -1")
                arrive(32 + 2 * t + c2)
                e("v_mfma_f32_16x16x32_bf16 %s, %s, %s, %s" % (
                    vr(acc), vr(AB[t & 1]), vr(DATA + 8 * t + 4 * c2), "0" if t == 0 else vr(acc)))
                if c2 == 0 and t < 7:
                    build_a(AB[(t + 1) & 1], X[(t + 1) & 1], (t + 1) >> 1)
        stamp("opdone")
        if o["hoist"] and o["lflag"]:
            e("""
            s_lshl_b32 s60, s3, 7
            s_add_u32 s60, s60, %d
            s_lshl2_add_u32 s61, s4, s60
            v_mov_b32 v50, s43
            v_mov_b32 v51, 0
            v_and_b32 v53, 31, v1
            v_lshlrev_b32 v53, 2, v53
            """ % FL)
        e("s_mov_b32 exec_hi, 0")
        e("ds_write_b128 v44, %s offset:512" % vr(OUT1))
        e("s_mov_b64 exec, 0xffff")
        e("s_waitcnt lgkmcnt(0)")
        stamp("preB4", 1)
        e("s_barrier")
        stamp("B4", 1)
        if o["swap3"]:
            e("s_cmp_eq_u32 s40, 0\ns_cbranch_scc1 L_cons")
            e("s_cmp_lg_u32 s40, 1\ns_cbranch_scc1 L_pub3")
            e("s_mov_b32 exec_lo, -1\ns_sub_u32 s55, s55, 256\nv_subrev_u32 v61, 256, v61\nL_pub3:")
        for w2 in range(4):
            e("ds_read_b128 %s, v61 offset:%d" % (vr(R + 4 * w2), 1024 * w2))
        e("s_waitcnt lgkmcnt(0)")
        sum4(R)
        tag4(R)
        p.vm("buffer_store_dwordx4 %s, v%d, s[36:39], s55 offen sc1" % (vr(R), 49 if o["inbox"] else 26))
    e("s_mov_b64 exec, -1")
    stamp("E3pub")
    def final_reduce():
        QR = VRAW
        e("L_retry3:")
        p.vm("buffer_load_dwordx4 %s, v48, s[36:39], s56 offen sc1" % vr(QR))
        e("s_waitcnt vmcnt(0)")
        for r in range(4):
            e("v_xor_b32 v%d, s41, v%d" % (A4 + r, QR + r))
        ortree(range(A4, A4 + 4), 52)
        e("s_cbranch_vccz L_got3")
        e("s_mov_b64 exec, vcc")
        e("s_sub_u32 s59, s59, 1")
        e("s_cbranch_scc0 L_retry3")
        e("s_branch L_end")
        e("L_got3:")
        e("s_mov_b64 exec, -1")
        stamp("got3", 1)
        e("v_permlane32_swap_b32 v%d, v%d" % (A4, A4 + 2))
        e("v_permlane32_swap_b32 v%d, v%d" % (A4 + 1, A4 + 3))
        e("v_add_f32 v%d, v%d, v%d" % (A4, A4, A4 + 2))
        e("v_add_f32 v%d, v%d, v%d" % (A4 + 1, A4 + 1, A4 + 3))
        e("v_permlane16_swap_b32 v%d, v%d" % (A4, A4 + 1))
        e("v_add_f32 v%d, v%d, v%d" % (A4, A4, A4 + 1))
        for k in (2, 4, 8):
            e("v_add_f32_dpp v%d, v%d, v%d row_ror:%d row_mask:0xf bank_mask:0xf" % (A4, A4, A4, k))
        e("v_cvt_pk_bf16_f32 v%d, v%d, v%d" % (A4, A4, A4))
        e("s_mov_b32 exec_lo, 0x00030003\ns_mov_b32 exec_hi, 0x00030003")
        p.vm("buffer_store_short v%d, v46, s[32:35], s57 offen %s" % (A4, o["outsc"]))
        e("s_and_b32 s60, s2, 0xfb")
        e("s_cbranch_scc1 L_hfin" if o["hcons"] else "s_cbranch_scc1 L_fin")
        e("s_mov_b64 exec, 1")
        e("v_mov_b32 v50, s43")
        e("v_mov_b32 v51, 0")
        p.vm("buffer_store_dword v50, v51, s[36:39], s7 offen %s" % o["epsc"])

    if o["hcons"]:
        note("the last wave leaves a completion hint for the group's helpers")
        e("""
        s_cmp_lg_u32 s40, %d
        s_cbranch_scc1 L_fin
        s_lshl_b32 s60, s3, 7
        s_add_u32 s60, s60, %d
        s_lshl2_add_u32 s61, s4, s60
        v_mov_b32 v50, s43
        v_mov_b32 v51, 0
        s_mov_b64 exec, 1
        buffer_store_dword v50, v51, s[36:39], s61 offen
        """ % (o["flw"], FL))
    else:
        if o["swap3"]:
            e("s_branch L_fin\nL_cons:\ns_mov_b64 exec, -1")
        else:
            e("s_cmp_lg_u32 s40, 0")
            e("s_cbranch_scc1 L_fin")
        if o["lflag"]:
            note("""leave a completion hint; with one L2 for the group wait for the group's hints, so that the slots of
            producers that are still running are not polled across dies (the hints only time the gather)""")
            if not o["hoist"]:
                e("""
                s_lshl_b32 s60, s3, 7
                s_add_u32 s60, s60, %d
                s_lshl2_add_u32 s61, s4, s60
                v_mov_b32 v50, s43
                v_mov_b32 v51, 0
                v_and_b32 v53, 31, v1
                v_lshlrev_b32 v53, 2, v53
                """ % FL)
            e("""
            s_mov_b64 exec, 1
            %s
            buffer_store_dword v50, v51, s[36:39], s61 offen
            s_mov_b64 exec, -1
            s_cmp_lg_u32 s69, 0
            s_cbranch_scc1 L_nofl
            L_flp:
            s_sub_u32 s59, s59, 1
            s_cbranch_scc1 L_end
            buffer_load_dword v52, v53, s[36:39], s60 offen sc1
            s_waitcnt vmcnt(0)
            v_cmp_ne_u32 vcc, s43, v52
            s_cbranch_vccnz L_flp
            L_nofl:
            """ % ("s_waitcnt vmcnt(0)" if o["flate"] else ""))
        e("s_waitcnt vmcnt(0)")
        stamp("ack3", 1)
        final_reduce()
    e("L_fin:")
    if o["probe"]:
        a, b, k, wg = o["probe"]
        stamp("fin")
        e("s_cmp_lg_u32 s2, %d\ns_cbranch_scc1 L_end\ns_cmp_lg_u32 s40, 0\ns_cbranch_scc1 L_end" % wg)
        e("s_waitcnt lgkmcnt(0)")
        e("s_sub_u32 s60, s%d, s%d" % (70 + 2 * names.index(b), 70 + 2 * names.index(a)))
        e("s_mul_i32 s60, s60, %d" % k)
        e("L_probe:")
        e("s_memrealtime s[62:63]\ns_waitcnt lgkmcnt(0)")
        e("s_sub_u32 s61, s62, s%d" % (70 + 2 * (stamp_n[0] - 1)))
        e("s_cmp_lt_u32 s61, s60\ns_cbranch_scc1 L_probe")
        e("s_branch L_end")
    elif o["stamps"]:
        stamp("fin")
        e("s_mov_b64 exec, 1")
        e("s_getreg_b32 s68, hwreg(HW_REG_XCC_ID)")
        e("s_mov_b32 s69, s59")
        e("s_waitcnt lgkmcnt(0)")
        for i in range(32):
            e("v_mov_b32 v%d, s%d" % (64 + i, 68 + i))
        e("s_lshl_b32 s60, s2, 2\ns_add_u32 s60, s60, s40\ns_lshl_b32 s60, s60, 7\ns_add_u32 s60, s60, %d" % TS_OFF)
        e("v_mov_b32 v51, 0")
        for i in range(8):
            p.vm("buffer_store_dwordx4 %s, v51, s[36:39], s60 offen offset:%d" % (vr(64 + 4 * i), 16 * i))
    e("L_end:")
    e("s_endpgm")

    note("""helper wave: clears the slots that carry bare bf16 data to the sentinel 0xffffffff, exchanges die ids
    with the group (word = epoch + 1 with the die id in bits 13:10) and leaves the store mode
    (0 = one L2 for the whole group) in LDS before it ends""")
    clears = ["buffer_store_dwordx4 v[52:55], v40, s[36:39], s51 offen",
              "buffer_store_dwordx4 v[52:55], v40, s[36:39], s52 offen"]
    e("""
    L_helper:
    v_and_b32 v1, 63, v0
    s_and_b32 s3, s2, 7
    s_lshr_b32 s4, s2, 3
    s_and_b32 s6, s2, 3
    s_mov_b32 s38, %d
    s_mov_b32 s39, 0x20000
    s_lshl_b32 s7, s5, 8
    v_lshlrev_b32 v40, 4, v3
    v_lshl_add_u32 v40, v2, 13, v40
    s_lshl_b32 s51, s3, 16
    s_lshl_b32 s61, s4, 8
    s_add_u32 s51, s51, s61
    s_add_u32 s51, s51, %d
    s_add_u32 s52, s51, 32768
    v_mov_b32 v52, -1
    v_mov_b32 v53, -1
    v_mov_b32 v54, -1
    v_mov_b32 v55, -1
    v_lshlrev_b32 v26, 4, v1
    s_waitcnt lgkmcnt(0)
    s_load_dword s43, s[36:37], s7
    """ % (WS_BYTES, E2O))
    for t in clears:
        e(t)
    extra = []
    if o["prew1"] or o["prewml"]:
        e("v_mov_b32 v64, 0\nv_mov_b32 v65, 1\nv_mov_b32 v66, 2\nv_mov_b32 v67, 3")
    if o["prew1"]:
        assert not e1bf
        e("""
        s_and_b32 s60, s4, 7
        s_lshl3_add_u32 s60, s3, s60
        s_lshr_b32 s61, s4, 3
        s_lshl2_add_u32 s49, s60, s61
        s_lshl_b32 s49, s49, 9
        s_add_u32 s49, s49, %d
        """ % E1)
        extra += ["s_mov_b32 exec_hi, 0", "buffer_store_dwordx4 v[64:67], v26, s[36:39], s49 offen"]
    if o["prewml"]:
        e("""
        s_lshl_b32 s53, s3, 11
        s_and_b32 s60, s4, 15
        s_lshl4_add_u32 s53, s60, s53
        s_lshr_b32 s60, s4, 4
        s_lshl3_add_u32 s53, s60, s53
        s_add_u32 s53, s53, %d
        v_lshlrev_b32 v41, 8, v1
        """ % ML)
        extra += ["s_mov_b64 exec, 0xff", "buffer_store_dwordx2 v[64:65], v41, s[36:39], s53 offen"]
    if extra:
        extra.append("s_mov_b64 exec, -1")
        for t in extra:
            e(t)
    if e1bf:
        e("""
        s_and_b32 s60, s4, 7
        s_lshl3_add_u32 s60, s3, s60
        s_lshr_b32 s61, s4, 3
        s_lshl2_add_u32 s49, s60, s61
        s_lshl_b32 s49, s49, 8
        s_add_u32 s49, s49, %d
        s_mov_b64 exec, 0xffff
        buffer_store_dwordx4 v[52:55], v26, s[36:39], s49 offen
        s_mov_b64 exec, -1
        """ % E1)
    e("""
    s_movk_i32 s42, %d
    s_mov_b32 s59, %d
    s_getreg_b32 s60, hwreg(HW_REG_XCC_ID, 0, 4)
    s_lshl_b32 s69, s60, 10
    s_lshl_b32 s68, s3, 7
    s_add_u32 s68, s68, %d
    s_lshl2_add_u32 s67, s4, s68
    v_mov_b32 v57, 0
    v_and_b32 v47, 31, v1
    v_lshlrev_b32 v47, 2, v47
    """ % (TAGMASK, o["retry"], E0))
    if o["prew3"] and o["inbox"]:
        e("""
        s_and_b32 s60, s4, 3
        s_lshl2_add_u32 s55, s5, s60
        s_lshl_b32 s55, s55, 15
        s_lshr_b32 s60, s4, 2
        s_lshl3_add_u32 s60, s6, s60
        s_lshl_b32 s60, s60, 5
        s_add_u32 s55, s55, s60
        s_add_u32 s55, s55, %d
        v_lshrrev_b32 v26, 1, v1
        v_lshlrev_b32 v26, 10, v26
        v_and_b32 v60, 1, v1
        v_lshl_add_u32 v26, v60, 4, v26
        """ % E3)
    elif o["prew3"]:
        e("""
        s_and_b32 s60, s4, 3
        s_lshl2_add_u32 s55, s5, s60
        s_lshl_b32 s55, s55, 5
        s_lshl3_add_u32 s55, s6, s55
        s_lshr_b32 s60, s4, 2
        s_add_u32 s55, s55, s60
        s_lshl_b32 s55, s55, 10
        s_add_u32 s55, s55, %d
        """ % E3)
    if o["prew3"]:
        e("""
        v_mov_b32 v60, 0
        v_mov_b32 v61, 1
        v_mov_b32 v62, 2
        v_mov_b32 v63, 3
        """)
    e("s_waitcnt vmcnt(0) lgkmcnt(0)" if e1bf else "s_waitcnt lgkmcnt(0)")
    e("""
    s_add_u32 s43, s43, 1
    s_and_b32 s41, s43, s42
    s_mov_b32 s42, 0xffffc3ff
    s_and_b32 s46, s43, s42
    s_or_b32 s69, s69, s46
    s_mov_b32 s46, s69
    v_mov_b32 v56, s69
    s_mov_b64 exec, 1
    buffer_store_dword v56, v57, s[36:39], s67 offen sc1
    """)
    if o["lflag"] & 2:
        e("s_add_u32 s60, s67, %d" % (FL - E0))
        e("buffer_store_dword v57, v57, s[36:39], s60 offen")
    e("s_mov_b64 exec, -1")
    if o["prew3"]:
        note("an invalid granule written ahead makes the later write-through of the output partials faster")
        e("buffer_store_dwordx4 v[60:63], v26, s[36:39], s55 offen sc1")
    if o["e0ack"]:
        e("s_waitcnt vmcnt(0)")
    if o["e0s"]:
        e("""
        s_add_u32 s10, s36, s68
        s_addc_u32 s11, s37, 0
        L_hpoll:
        s_sub_u32 s59, s59, 1
        s_cbranch_scc1 L_end
        s_load_dwordx16 s[68:83], s[10:11], 0 glc
        s_load_dwordx16 s[84:99], s[10:11], 64 glc
        s_waitcnt lgkmcnt(0)
        """.replace("s[68:83]", "s[64:79]").replace("s[84:99]", "s[80:95]"))
        e("s_xor_b32 s60, s64, s46")
        for i in range(1, 32):
            e("s_xor_b32 s61, s%d, s46" % (64 + i))
            e("s_or_b32 s60, s60, s61")
        e("""
        s_and_b32 s61, s60, s42
        s_cbranch_scc1 L_hpoll
        s_mov_b32 s69, s60
        s_waitcnt vmcnt(0)
        """)
    else:
        e("""
        L_hpoll:
        s_sub_u32 s59, s59, 1
        s_cbranch_scc1 L_end
        buffer_load_dword v58, v47, s[36:39], s68 offen sc1
        s_waitcnt vmcnt(0)
        v_xor_b32 v58, s69, v58
        v_and_b32 v59, s42, v58
        v_cmp_ne_u32 vcc, 0, v59
        s_cbranch_vccnz L_hpoll
        v_cmp_ne_u32 vcc, 0, v58
        s_or_b32 s69, vcc_lo, vcc_hi
        """)
    if o["force_global"]:
        e("s_mov_b32 s69, 1")
    e("""
    s_cmp_lg_u32 s69, 0
    s_cbranch_scc1 L_hglob
    L_hdone:
    v_mov_b32 v56, s69
    v_mov_b32 v57, %d
    ds_write_b32 v57, v56
    s_waitcnt lgkmcnt(0)
    """ % MODE)
    if o["hcons"]:
        e("""
        s_barrier
        s_load_dwordx2 s[32:33], s[0:1], 80
        s_movk_i32 s34, 4096
        s_mov_b32 s35, 0x20000
        s_movk_i32 s42, %d
        v_and_b32 v58, 1, v1
        v_lshrrev_b32 v48, 1, v1
        v_lshlrev_b32 v48, 10, v48
        v_lshl_add_u32 v48, v58, 4, v48
        v_lshl_add_u32 v46, v3, 2, v2
        v_lshlrev_b32 v46, 1, v46
        s_lshl_b32 s56, s3, 15
        s_lshl_b32 s60, s4, 5
        s_add_u32 s56, s56, s60
        s_add_u32 s56, s56, %d
        s_lshl_b32 s57, s3, 9
        s_lshl4_add_u32 s57, s4, s57
        s_lshl_b32 s60, s3, 7
        s_add_u32 s60, s60, %d
        s_waitcnt lgkmcnt(0)
        s_barrier
        s_barrier
        s_barrier
        s_cmp_lg_u32 s69, 0
        s_cbranch_scc1 L_nofl
        L_flp:
        s_sub_u32 s59, s59, 1
        s_cbranch_scc1 L_end
        buffer_load_dword v52, v47, s[36:39], s60 offen sc1
        s_waitcnt vmcnt(0)
        v_cmp_ne_u32 vcc, s43, v52
        s_cbranch_vccnz L_flp
        L_nofl:
        """ % (TAGMASK, E3, FL))
        if o["hdelay"]:
            for _ in range(o["hdelay"]):
                e("buffer_load_dword v52, v47, s[36:39], s60 offen sc1\ns_waitcnt vmcnt(0)")
        final_reduce()
        e("L_hfin:")
    e("s_endpgm")
    note("group spread over several dies: repeat the clears write-through" +
         (", then wait until the whole group has done so" if e1bf else ""))
    e("L_hglob:")
    for t in clears + extra:
        e(t + (" sc1" if t.startswith("buffer") else ""))
    if e1bf:
        e("""
        s_mov_b64 exec, 0xffff
        buffer_store_dwordx4 v[52:55], v26, s[36:39], s49 offen sc1
        s_mov_b64 exec, 1
        s_waitcnt vmcnt(0)
        buffer_store_dword v56, v57, s[36:39], s67 offen offset:1024 sc1
        s_mov_b64 exec, -1
        L_hpoll2:
        s_sub_u32 s59, s59, 1
        s_cbranch_scc1 L_end
        buffer_load_dword v58, v47, s[36:39], s68 offen offset:1024 sc1
        s_waitcnt vmcnt(0)
        v_xor_b32 v58, s46, v58
        v_and_b32 v58, s42, v58
        v_cmp_ne_u32 vcc, 0, v58
        s_cbranch_vccnz L_hpoll2
        """)
    else:
        e("s_waitcnt vmcnt(0)")
    e("s_branch L_hdone")
    for k, texts in cold:
        e("L_glob%d:" % k)
        for t in texts:
            e(t + (" sc1" if t.startswith("buffer") else ""))
        e("s_branch L_st%d" % k)

    ref = open("cdna_kernels/%s.s.ref" % KN).read()
    layout = "".join(l + "\n" for l in ref.split("\n") if l.startswith(";   offset") or l.startswith("; Kernarg"))
    head = layout + """; Fused decode attention for both branches: q = x Wq, GQA attention over the last 4096 keys, out = o Wo.
; One launch of 256 workgroups, 32 per (branch, kv head); all of them are resident at once.
; Every byte of Wq, K, V and Wo is loaded exactly once, as one paced stream per wave.  Three hand-offs go
; through d_ws: q partials and o partials inside a group, output partials across the four groups of a branch.
; A handed-off word is valid when it carries this launch's tag (f32 data, tag in the low 10 mantissa bits)
; or differs from the sentinel its slot was cleared to earlier in this launch (packed bf16 data).
; @launch grid=(256,1,1) block=(320,1,1) lds=%d
.amdgcn_target "amdgcn-amd-amdhsa--gfx950"
.text
%s.globl %s_kernel
.p2align 8
.type %s_kernel,@function
""" % (LDS_BYTES, "" if o["pageoff"] is None else ".p2align 12\n.fill %d, 4, 0xbf810000\n" % (((o["pageoff"] - 0x300) % 4096) // 4), KN, KN)
    tail = """.section .rodata,"a"
.p2align 6
.amdhsa_kernel %s_kernel
  .amdhsa_next_free_vgpr 256
  .amdhsa_next_free_sgpr 102
  .amdhsa_accum_offset 256
  .amdhsa_group_segment_fixed_size 0
  .amdhsa_kernarg_size 104
  .amdhsa_user_sgpr_count 2
  .amdhsa_user_sgpr_kernarg_segment_ptr 1
  .amdhsa_system_sgpr_workgroup_id_x 1
  .amdhsa_float_denorm_mode_32 3
.end_amdhsa_kernel
""" % KN
    gen.names = names
    return head + p.text() + tail


if __name__ == "__main__":
    kw = eval("dict(%s)" % (sys.argv[2] if len(sys.argv) > 2 else ""))
    open(sys.argv[1], "w").write(gen(**kw))
```
